```python
import torch

def _softmax(x, axis=-1):
    return torch.softmax(x, dim=axis)

def _gelu(x):
    return torch.nn.functional.gelu(x, approximate='tanh')

def _silu(x):
    return torch.nn.functional.silu(x)

def _sigmoid(x):
    return torch.sigmoid(x)

def _layernorm(x, axis=-1, eps=1e-05):
    m = x.mean(dim=axis, keepdim=True)
    v = x.var(dim=axis, keepdim=True, unbiased=False)
    return (x - m) / torch.sqrt(v + eps)

def _scatter_add(tgt, idx, src, axis=0):
    return tgt.clone().index_add_(axis, idx, src)

def _segment_sum(src, seg, n):
    out = torch.zeros((n,) + src.shape[1:], dtype=src.dtype)
    return out.index_add_(0, seg, src)

def _pad(x, pw):
    flat = tuple((v for pair in reversed(pw) for v in pair))
    return torch.nn.functional.pad(x, flat)
kernel_name = 'adaLN_cond__memory_aug_recurrent_mem_tr__glu_gated_bilinear__prompt'

def setup_inputs():

    _w = lambda a: (lambda t: t.to(torch.bfloat16) if t.is_floating_point() else t)(torch.as_tensor(a))

    def _A_setup():
        B, S, Dm = (1, 2048, 512)
        H, Dh = (32, 128)
        M, seg = (8, 32)
        seg = min(seg, S)
        S = S // seg * seg
        return {'x': _w((lambda *s: torch.randn(*s, dtype=torch.bfloat16) * 0.05)(B, S, Dm)), 'mem0': _w((lambda *s: torch.randn(*s, dtype=torch.bfloat16) * 0.8)(B, M, Dm)), 'Wq': _w((lambda *s: torch.randn(*s, dtype=torch.bfloat16) * 1.6)(Dm, H, Dh) * Dm ** (-0.5)), 'Wk': _w((lambda *s: torch.randn(*s, dtype=torch.bfloat16) * 1.6)(Dm, H, Dh) * Dm ** (-0.5)), 'Wv': _w((lambda *s: torch.randn(*s, dtype=torch.bfloat16) * 0.8)(Dm, H, Dh) * Dm ** (-0.5)), 'Wo': _w((lambda *s: torch.randn(*s, dtype=torch.bfloat16) * 0.8)(H, Dh, Dm) * (H * Dh) ** (-0.5)), 'seg_len': seg}
    _A_in = _A_setup()

    def _B_setup():
        B, S, D, F = (1, 2048, 512, 1792)
        return {'x': _w((lambda *s: torch.randn(*s, dtype=torch.bfloat16) * 0.05)(B, S, D)), 'w_gate': _w((lambda *s: torch.randn(*s, dtype=torch.bfloat16) * 0.8)(D, F) * D ** (-0.5)), 'w_up': _w((lambda *s: torch.randn(*s, dtype=torch.bfloat16) * 0.8)(D, F) * D ** (-0.5)), 'w_down': _w((lambda *s: torch.randn(*s, dtype=torch.bfloat16) * 0.8)(F, D) * F ** (-0.5))}
    _B_in = _B_setup()
    return {'A_x': _A_in['x'], 'A_mem0': _A_in['mem0'], 'A_Wq': _A_in['Wq'], 'A_Wk': _A_in['Wk'], 'A_Wv': _A_in['Wv'], 'A_Wo': _A_in['Wo'], 'A_seg_len': _A_in['seg_len'], 'B_x': _B_in['x'], 'B_w_gate': _B_in['w_gate'], 'B_w_up': _B_in['w_up'], 'B_w_down': _B_in['w_down'], 'c': _w((lambda *s: torch.randn(*s, dtype=torch.bfloat16) * 0.1)(1, 512) * 8.0), 'w_mod': _w((lambda *s: torch.randn(*s, dtype=torch.bfloat16) * 0.1)(512, 6 * 512) * 512 ** (-0.5) * 8.0)}

def reference(A_x, A_mem0, A_Wq, A_Wk, A_Wv, A_Wo, A_seg_len, B_x, B_w_gate, B_w_up, B_w_down, c, w_mod):

    def _A_ref(x, mem0, Wq, Wk, Wv, Wo, seg_len):
        B, S, Dm = x.shape
        H, Dh = (Wq.shape[1], Wq.shape[2])
        M = mem0.shape[1]
        scale = Dh ** (-0.5)
        n_seg = S // seg_len
        L = M + seg_len
        idx = torch.arange(L)
        mask = (idx[:, None] < M) | (idx[:, None] >= idx[None, :])
        mem = mem0
        outs = []
        for s in range(n_seg):
            xs = x[:, s * seg_len:(s + 1) * seg_len, :].clone()
            h = torch.concatenate([mem, xs], axis=1)
            q = torch.einsum('btd,dhe->bhte', h, Wq)
            k = torch.einsum('btd,dhe->bhte', h, Wk)
            v = torch.einsum('btd,dhe->bhte', h, Wv)
            scores = torch.einsum('bhqe,bhke->bhqk', q, k) * scale
            scores = torch.where(mask[None, None], scores, -1000000000.0)
            p = _softmax(scores, axis=-1)
            o = torch.einsum('bhqk,bhke->bhqe', p, v)
            o = torch.einsum('bhte,hed->btd', o, Wo)
            mem = o[:, :M, :].clone()
            outs.append(o[:, M:, :])
        return torch.concatenate(outs, axis=1)

    def _B_ref(x, w_gate, w_up, w_down):
        g = torch.einsum('bsd,df->bsf', x, w_gate)
        u = torch.einsum('bsd,df->bsf', x, w_up)
        h = g * u
        return torch.einsum('bsf,fd->bsd', h, w_down)
    x = A_x
    mod = (_silu(c) @ w_mod).reshape(c.shape[0], 6, 1, -1)
    sa, ca, ga, sb, cb, gb = (mod[:, 0].clone(), mod[:, 1].clone(), mod[:, 2].clone(), mod[:, 3].clone(), mod[:, 4].clone(), mod[:, 5].clone())
    h = _layernorm(x, axis=-1) * (1 + ca) + sa
    x = x + ga * _A_ref(h, A_mem0, A_Wq, A_Wk, A_Wv, A_Wo, A_seg_len)
    h = _layernorm(x, axis=-1) * (1 + cb) + sb
    x = x + gb * _B_ref(h, B_w_gate, B_w_up, B_w_down)
    return x
```

```python
import re

TRANS = ('v_exp_f32','v_log_f32','v_rcp_f32','v_rsq_f32','v_sqrt_f32','v_sin_f32','v_cos_f32','v_rcp_iflag_f32')

def parse_reg(tok):
    tok = tok.strip()
    neg = tok.startswith('-')
    if neg: tok = tok[1:]
    if tok.startswith('abs(') or tok.startswith('|'):
        tok = tok.strip('|')
        if tok.startswith('abs('): tok = tok[4:-1]
    m = re.fullmatch(r'([vas])(\d+)', tok)
    if m: return [(m.group(1), int(m.group(2)))]
    m = re.fullmatch(r'([vas])\[(\d+):(\d+)\]', tok)
    if m: return [(m.group(1), i) for i in range(int(m.group(2)), int(m.group(3))+1)]
    if tok == 'vcc': return [('vcc',0)]
    if tok in ('vcc_lo','vcc_hi'): return [('vcc',0)]
    if tok in ('exec','exec_lo','exec_hi'): return [('exec',0)]
    if tok == 'm0': return [('m0',0)]
    return []

class Ins:
    __slots__=('text','mn','ops','kind','wr','rd','passes','srcc','ab','dpp','ldst','sdata','target','is_label','states','lds_dma')
    def __init__(s, text):
        s.text=text; s.is_label=False; s.target=None; s.states=1
        s.wr=set(); s.rd=set(); s.passes=0; s.srcc=None; s.ab=set(); s.dpp=False; s.ldst=set(); s.sdata=set(); s.lds_dma=False
        code = text.split(';')[0].strip()
        if code.endswith(':'):
            s.is_label=True; s.mn=code[:-1]; s.kind='label'; s.states=0; return
        if not code or code.startswith('.'):
            s.mn=''; s.kind='dir'; s.states=0; return
        parts = code.split(None,1)
        mn = parts[0]; s.mn=mn
        rest = parts[1] if len(parts)>1 else ''
        ops=[]; cur=''; depth=0
        for ch in rest:
            if ch in '[(': depth+=1
            if ch in '])': depth-=1
            if ch==',' and depth==0: ops.append(cur.strip()); cur=''
            else: cur+=ch
        if cur.strip(): ops.append(cur.strip())
        mods=''
        if ops:
            sp = ops[-1].split(None,1)
            ops[-1]=sp[0]; mods = sp[1] if len(sp)>1 else ''
        s.ops=ops
        R=[parse_reg(o) for o in ops]
        if mn.startswith('v_mfma') or mn.startswith('v_smfmac'):
            s.kind='mfma'
            s.passes = 8 if '32x32' in mn else (2 if '4x4x4' in mn else 4)
            s.wr=set(R[0]); s.ab=set(R[1])|set(R[2])
            if mn.startswith('v_smfmac'):
                s.srcc=tuple(R[0]); s.ab|=set(R[3])
            else:
                s.srcc=tuple(R[3]) if R[3] else None
            s.rd=set(s.ab)|set(s.srcc or ())
        elif mn.startswith('v_'):
            s.kind='valu'
            s.dpp = ('row_' in mods) or ('quad_perm' in mods) or mn.endswith('_dpp') or 'wave_' in mods
            if mn.startswith('v_cmp'):
                s.wr=set(R[0]);
                for r in R[1:]: s.rd|=set(r)
            elif mn.startswith('v_permlane') or mn.startswith('v_swap'):
                s.wr=set(R[0])|set(R[1]); s.rd=set(s.wr)
            elif mn in ('v_add_co_u32','v_sub_co_u32','v_addc_co_u32','v_subb_co_u32','v_mad_u64_u32','v_div_scale_f32'):
                s.wr=set(R[0])|set(R[1])
                for r in R[2:]: s.rd|=set(r)
            elif mn=='v_nop':
                pass
            else:
                s.wr=set(R[0])
                for r in R[1:]: s.rd|=set(r)
                if mn.startswith('v_fmac') or mn.startswith('v_dot2c') or mn.startswith('v_writelane') or s.dpp: s.rd|=set(R[0])
                if mn.startswith('v_cndmask') and len(ops)==3: s.rd.add(('vcc',0))
        elif mn.startswith('buffer_') or mn.startswith('global_'):
            s.kind='vmem'
            allr=set()
            for r in R: allr|=set(r)
            if ' lds' in (' '+mods) or 'load_lds' in mn:
                s.lds_dma=True; s.rd=allr|{('m0',0)}
            elif '_load' in mn:
                s.ldst=set(R[0]); s.wr=set(R[0]);
                for r in R[1:]: s.rd|=set(r)
            elif 'atomic' in mn:
                s.rd=allr
                if 'sc0' in mods: s.ldst=set(R[0]); s.wr=set(R[0])
            elif '_store' in mn:
                s.rd=allr
                d = R[0] if mn.startswith('buffer_') else R[1]
                if len(d)>=3: s.sdata=set(d)
            else:
                s.rd=allr
        elif mn.startswith('ds_'):
            s.kind='ds'
            if 'read' in mn or 'permute' in mn or 'swizzle' in mn or '_rtn' in mn:
                s.ldst=set(R[0]); s.wr=set(R[0])
                for r in R[1:]: s.rd|=set(r)
            else:
                for r in R: s.rd|=set(r)
        elif mn.startswith('s_'):
            if mn=='s_nop':
                s.kind='nop'; s.states=int(ops[0],0)+1
            elif mn.startswith('s_cbranch') or mn=='s_branch':
                s.kind='branch'; s.target=ops[0]
            elif mn in ('s_waitcnt','s_barrier','s_endpgm','s_sleep','s_setprio'):
                s.kind='other'
            elif mn.startswith('s_load') or mn.startswith('s_buffer_load') or mn.startswith('s_mem'):
                s.kind='smem'; s.wr=set(R[0])
                for r in R[1:]: s.rd|=set(r)
            elif mn.startswith('s_cmp') or mn.startswith('s_bitcmp'):
                s.kind='salu'
                for r in R: s.rd|=set(r)
            else:
                s.kind='salu'; s.wr=set(R[0]) if R else set()
                for r in R[1:]: s.rd|=set(r)
                if 'saveexec' in mn: s.wr.add(('exec',0))
        else:
            raise ValueError('unknown instr '+text)

def need(P, C):
    n=0
    if P.kind=='valu':
        vw={r for r in P.wr if r[0] in 'va' }
        sw={r for r in P.wr if r[0] in ('s','vcc')}
        if C.kind=='mfma' and vw & C.rd: n=max(n,2)
        if C.kind=='valu':
            if P.mn in TRANS and (vw & (C.rd|C.wr)) : n=max(n,1)
            if (C.mn.startswith('v_permlane') or C.dpp) and vw & C.rd: n=max(n,2)
            if (C.mn.startswith('v_readlane') or C.mn.startswith('v_readfirstlane')) and vw & C.rd: n=max(n,1)
            if sw & C.rd:
                n=max(n, 4 if (C.mn.startswith('v_readlane') or C.mn.startswith('v_writelane')) else 2)
        if P.mn in TRANS and C.kind in ('vmem','ds') and vw & C.rd: n=max(n,1)
        if C.kind=='vmem' and sw & C.rd: n=max(n,5)
        if C.kind in('salu','smem') and sw & C.rd: n=max(n,1)
        if ('exec',0) in P.wr: n=max(n,5)
    elif P.kind=='mfma':
        big={2:5,4:8,8:12}[P.passes]; mid={2:4,4:6,8:10}[P.passes]; war={2:1,4:3,8:7}[P.passes]
        D=P.wr
        if C.kind=='mfma':
            if D & C.ab: n=max(n,big)
            if C.srcc and D & set(C.srcc):
                if set(C.srcc)==D and C.passes==P.passes: n=max(n, 2 if P.passes==2 else 0)
                else: n=max(n,mid)
            elif D & C.wr and not (C.wr==D and C.passes==P.passes): n=max(n,mid)
        elif C.kind=='valu':
            if D & (C.rd|C.wr): n=max(n,big)
            if P.srcc and set(P.srcc) & C.wr: n=max(n,war)
        elif C.kind in ('vmem','ds'):
            if D & (C.rd|C.ldst): n=max(n,big)
    elif P.kind=='salu':
        if ('m0',0) in P.wr and C.lds_dma: n=max(n,1)
    elif P.kind=='vmem':
        if P.sdata:
            if C.kind=='valu' and P.sdata & C.wr: n=max(n,2)
            elif P.sdata & C.wr: n=max(n,1)
    return n

class Asm:
    def __init__(s):
        s.lines=[]; s._lab=0
    def __call__(s, text):
        for t in text.split('\n'):
            t=t.strip()
            if t: s.lines.append(t)
    def label(s, name): s.lines.append(name+':')
    def newlabel(s, base='L'):
        s._lab+=1; return f'{base}_{s._lab}'
    def comment(s, t): s.lines.append('; '+t)
    def finalize(s, verbose=False):
        ins=[Ins(t) for t in s.lines]
        WIN=22
        total_added=0
        for it in range(6):
            saved={}
            prev_saved = getattr(s,'_saved',{})
            out=[]; state=[]
            added=0
            busy=0
            for I in ins:
                if I.is_label:
                    for src in (saved.get(I.mn,[]), prev_saved.get(I.mn,[])):
                        state = state + [list(x) for x in src]
                    busy=0
                    out.append(I); continue
                if I.kind=='dir':
                    out.append(I); continue
                req=0
                if I.kind=='mfma' and busy>0:
                    for e in state:
                        if e[2]: e[1]+=busy
                    busy=0
                for P,d,_ in state:
                    k=need(P,I)-d
                    if k>req: req=k
                if req>0:
                    r=req
                    while r>0:
                        c=min(r,16)
                        out.append(Ins(f's_nop {c-1}  ; hz'))
                        r-=c
                    for e in state: e[1]+=req
                    busy=max(0,busy-req)
                    added+=1
                out.append(I)
                busy = (I.passes-1) if I.kind=='mfma' else max(0,busy-I.states)
                for e in state: e[1]+=I.states
                state=[e for e in state if e[1]<WIN]
                if I.kind in ('valu','mfma','salu','vmem'):
                    state.append([I,0,False])
                if I.kind=='mfma':
                    for e in state: e[2]=True
                if I.kind=='branch':
                    saved.setdefault(I.target,[]).extend([list(e) for e in state])
                    if I.mn=='s_branch': state=[]
                if I.mn=='s_endpgm': state=[]
            ins=out; s._saved=saved; total_added+=added
            if added==0 and it>0: break
        if verbose: print('hazard nops inserted:', total_added)
        res=[]
        for I in ins:
            if I.is_label or I.kind=='dir': res.append(I.text)
            else: res.append('    '+I.text)
        return '\n'.join(res)+'\n'

def vr(base, n=1, k='v'):
    return f'{k}{base}' if n==1 else f'{k}[{base}:{base+n-1}]'
def ar(base, n=1): return vr(base,n,'a')
def sr(base, n=1): return vr(base,n,'s')
```

```python
from asmlib import *

NAME='adaLN_cond__memory_aug_recurrent_mem_tr__glu_gated_bilinear__prompt'
KA=dict(x=0,mem0=8,Wq=16,Wk=24,Wv=32,Wo=40,seg=48,Bx=56,wg=64,wu=72,wd=80,c=88,wmod=96,out=104,dbg=112,ws=120)
WS_BYTES=268435456
FLAGS=0x0; KVFLAG=0x0; RECFLAG=0x2000
MOD=0x10000
MRING=0x20000
PRING=0x40000
H1F=0x100000
X1=0x300000
H2F=0x500000
HH=0x800000
QF=0x1000000
KF=0x2000000
VF=0x3000000
OF=0x4000000
KM=0x5000000
VM=0x5800000

def srd(a, d, ptr, nbytes):
    a(f's_mov_b32 s{d}, s{ptr}')
    a(f's_and_b32 s{d+1}, s{ptr+1}, 0xffff')
    a(f's_mov_b32 s{d+2}, {nbytes}')
    a(f's_mov_b32 s{d+3}, 0x00020000')

def kernel_head(a, label):
    a('.p2align 8')
    a(f'.globl {label}')
    a(f'.type {label},@function')
    a.label(label)

def kernel_desc(label, vgpr, sgpr, accum):
    return f'''.p2align 6
.amdhsa_kernel {label}
  .amdhsa_next_free_vgpr {vgpr}
  .amdhsa_next_free_sgpr {sgpr}
  .amdhsa_accum_offset {accum}
  .amdhsa_group_segment_fixed_size 0
  .amdhsa_kernarg_size 128
  .amdhsa_user_sgpr_count 2
  .amdhsa_user_sgpr_kernarg_segment_ptr 1
  .amdhsa_system_sgpr_workgroup_id_x 1
  .amdhsa_float_denorm_mode_32 3
.end_amdhsa_kernel
'''

def round_bf16(a, r, tmp):
    a(f'v_cvt_pk_bf16_f32 v{tmp}, v{r}, v{r}')
    a(f'v_lshlrev_b32 v{r}, 16, v{tmp}')

def round_bf16_pair(a, r0, r1, tmp):
    a(f'v_cvt_pk_bf16_f32 v{tmp}, v{r0}, v{r1}')
    a(f'v_lshlrev_b32 v{r0}, 16, v{tmp}')
    a(f'v_and_b32 v{r1}, 0xffff0000, v{tmp}')

def xlane_reduce(a, op, r, t):
    a(f'v_mov_b32 v{t}, v{r}')
    a(f'v_permlane16_swap_b32 v{t}, v{r}')
    a(f'{op} v{r}, v{t}, v{r}')
    a(f'v_mov_b32 v{t}, v{r}')
    a(f'v_permlane32_swap_b32 v{t}, v{r}')
    a(f'{op} v{r}, v{t}, v{r}')
```

```python
from common import *

sWS=24; sDBG=28; sWQ=32; sWK=36; sWV=40; sWO=44; sM0=48
sMODE=52; sROLE=53; sW=54; sH=55; sSLOT=56; sXCC=57; sLB=58; sT0=59; sT1=60; sT2=61; sT3=62
sKT=64
L_M=0x0; L_K=0x2000; L_V=0x4000; L_QK=0x6000; L_SEL=0x7400; L_WO=0x8000
QK_RS=544
SPIN_MAX=1<<22

def srd4(b): return f's[{b}:{b+3}]'

def interleave(a, main, side, start=0, per=1):
    side=list(side)
    for k,m in enumerate(main):
        a(m)
        if k>=start:
            for _ in range(per):
                if side: a(side.pop(0))
    for s_ in side: a(s_)

def gen_entry(a, label, mode):
    kernel_head(a,label)
    a(f's_mov_b32 s{sMODE}, {mode}')
    a('s_branch main_common')

def wreg(X, tau, j):
    off=(tau*8+j)*8
    return ('a',X*128+off) if X<2 else ('v',128+off)

def gen_common(a):
    a('.p2align 8')
    a.label('main_common')
    a('s_cmp_ge_u32 s2, 256')
    a('s_cbranch_scc1 main_done')
    a(f's_load_dwordx8 s[8:15], s[0:1], {KA["mem0"]}')
    a(f's_load_dwordx2 s[16:17], s[0:1], {KA["Wo"]}')
    a(f's_load_dwordx4 s[20:23], s[0:1], {KA["dbg"]}')
    a(f's_getreg_b32 s{sXCC}, hwreg(HW_REG_XCC_ID)')
    a(f's_and_b32 s{sXCC}, s{sXCC}, 7')
    a('v_lshrrev_b32 v1, 6, v0')
    a(f'v_readfirstlane_b32 s{sW}, v1')
    a('v_and_b32 v0, 63, v0')
    a('s_waitcnt lgkmcnt(0)')
    srd(a,sWS,22,WS_BYTES); srd(a,sDBG,20,256)
    srd(a,sWQ,10,4<<20); srd(a,sWK,12,4<<20); srd(a,sWV,14,4<<20); srd(a,sWO,16,4<<20); srd(a,sM0,8,8192)
    a(f's_cmp_lg_u32 s{sW}, 0')
    a('s_cbranch_scc1 role_wait')
    a(f's_mov_b32 s{sT0}, s{sXCC}')
    a(f's_mov_b32 s{sT2}, 0')
    a('s_mov_b64 exec, 1')
    a.label('role_loop')
    a('v_mov_b32 v1, 1')
    a(f's_lshl_b32 s{sT1}, s{sT0}, 2')
    a(f'buffer_atomic_add v1, off, {srd4(sDBG)}, s{sT1} sc0')
    a('s_waitcnt vmcnt(0)')
    a(f'v_readfirstlane_b32 s{sT1}, v1')
    a(f's_cmp_lt_u32 s{sT1}, 32')
    a('s_cbranch_scc1 role_got')
    a(f's_add_u32 s{sT0}, s{sT0}, 1')
    a(f's_and_b32 s{sT0}, s{sT0}, 7')
    a(f's_add_u32 s{sT2}, s{sT2}, 1')
    a(f's_cmp_lt_u32 s{sT2}, 8')
    a('s_cbranch_scc1 role_loop')
    a(f's_mov_b32 s{sT0}, 8')
    a(f's_mov_b32 s{sT1}, 0')
    a.label('role_got')
    a(f's_lshl_b32 s{sT0}, s{sT0}, 5')
    a(f's_add_u32 s{sT0}, s{sT0}, s{sT1}')
    a(f'v_mov_b32 v1, s{sT0}')
    a('v_mov_b32 v2, 0')
    a('ds_write_b32 v2, v1')
    a('s_mov_b64 exec, -1')
    a('s_waitcnt lgkmcnt(0)')
    a.label('role_wait')
    a('s_barrier')
    a('v_mov_b32 v2, 0')
    a('ds_read_b32 v1, v2')
    a('s_waitcnt lgkmcnt(0)')
    a(f'v_readfirstlane_b32 s{sROLE}, v1')
    a('s_barrier')
    a(f's_cmp_ge_u32 s{sROLE}, 256')
    a('s_cbranch_scc1 main_done')
    a(f's_lshl_b32 s{sLB}, s{sW}, 15')
    a(f's_add_u32 s{sLB}, s{sLB}, {L_WO}')
    a(f's_cmp_lt_u32 s{sROLE}, 32')
    a('s_cbranch_scc1 rec_start')
    a('s_branch work_start')

def gen_loader(a, tag, rot_is_wave):
    for j in range(8):
        if rot_is_wave:
            a(f's_lshl_b32 s{sT0}, s{sW}, 1')
            a(f's_add_u32 s{sT0}, s{sT0}, {j}')
            a(f's_and_b32 s{sT0}, s{sT0}, 7')
            a(f's_lshl_b32 s{sKT+j}, s{sT0}, 19')
        else:
            a(f's_mov_b32 s{sKT+j}, {j<<19}')
    a('v_bfe_u32 v2, v0, 2, 1')
    a('v_bfe_u32 v3, v0, 4, 1')
    a('v_lshl_add_u32 v2, v3, 1, v2')
    a('v_bfe_u32 v3, v0, 3, 1')
    a('v_lshl_add_u32 v2, v3, 2, v2')
    a('v_bfe_u32 v3, v0, 5, 1')
    a('v_lshl_add_u32 v2, v3, 3, v2')
    a('v_lshlrev_b32 v1, 13, v2')
    a('v_lshlrev_b32 v3, 1, v3')
    a('v_xor_b32 v3, v3, v0')
    a('v_and_b32 v3, 3, v3')
    a('v_lshl_add_u32 v1, v3, 4, v1')
    a(f's_lshl_b32 s{sT0}, s{sH}, 8')
    a(f's_lshl_b32 s{sT1}, s{sW}, 6')
    a(f's_add_u32 s{sT0}, s{sT0}, s{sT1}')
    a(f'v_add_u32 v1, s{sT0}, v1')
    a('v_bfe_u32 v2, v0, 5, 1')
    a('v_lshlrev_b32 v4, 10, v2')
    a('v_bfe_u32 v2, v0, 3, 1')
    a('v_mul_u32_u24 v2, 544, v2')
    a('v_add_u32 v4, v4, v2')
    a('v_bfe_u32 v2, v0, 4, 1')
    a('v_lshl_add_u32 v4, v2, 7, v4')
    a('v_bfe_u32 v2, v0, 2, 1')
    a('v_lshl_add_u32 v4, v2, 6, v4')
    a('v_and_b32 v2, 3, v0')
    a('v_lshl_add_u32 v4, v2, 3, v4')
    a(f'v_add_u32 v4, s{sLB}, v4')
    a('v_xor_b32 v5, 32, v4')
    srds=[sWQ,sWK,sWV]
    def issue(u):
        X,j=u>>3,u&7
        for i in range(4):
            a(f's_add_u32 m0, s{sLB}, {j*4096+i*1024}')
            a(f's_add_u32 s{sT0}, s{sKT+j}, {i*131072}')
            a(f'buffer_load_dwordx4 v1, {srd4(srds[X])}, s{sT0} offen lds')
    def consume(u):
        X,j=u>>3,u&7
        for tau in range(2):
            k,b=wreg(X,tau,j)
            for hh in range(2):
                for y in range(2):
                    a(f'ds_read_b64_tr_b16 {k}[{b+4*hh+2*y}:{b+4*hh+2*y+1}], v{4+tau} offset:{j*4096+hh*2048+y*256}')
    return issue, consume

wS=72; wBa=73; wBb=74; wBc=75; wO=76; wPF=77; wPREV=78; wSPIN=79; wC=80; wMASK=82
def gen_worker(a):
    a.label('work_start')
    a(f's_sub_u32 s{sT0}, s{sROLE}, 32')
    a(f's_mul_i32 s{sH}, s{sT0}, 9363')
    a(f's_lshr_b32 s{sH}, s{sH}, 16')
    a(f's_mul_i32 s{sT1}, s{sH}, 7')
    a(f's_sub_u32 s{sSLOT}, s{sT0}, s{sT1}')
    vL=8; vA=9
    a(f'v_lshlrev_b32 v{vL}, 4, v0')
    a(f's_bitcmp1_b32 s{sMODE}, 0')
    a('s_cbranch_scc0 att_start')
    def dma(seg_s, buf_s):
        a(f's_min_u32 s{sT0}, s{seg_s}, 63')
        a(f's_lshl_b32 s{sT0}, s{sT0}, 15')
        a(f's_lshl_b32 s{sT1}, s{sW}, 13')
        a(f's_add_u32 s{sT0}, s{sT0}, s{sT1}')
        a(f's_add_u32 s{sT0}, s{sT0}, {H1F}')
        a(f's_add_u32 s{sT1}, s{sT1}, s{buf_s}')
        for hf in range(2):
            a(f's_add_u32 m0, s{sT1}, {hf*4096}')
            if hf: a(f's_add_u32 s{sT0}, s{sT0}, 4096')
            for i in range(4):
                a(f'buffer_load_dwordx4 v{vL}, {srd4(sWS)}, s{sT0} offen offset:{i*1024} lds')
    a(f's_mov_b32 s{wS}, s{sSLOT}')
    a(f's_mov_b32 s{wBa}, 0'); a(f's_mov_b32 s{wBb}, 0x8000'); a(f's_mov_b32 s{wBc}, 0x10000')
    dma(wS,wBa)
    issue,consume=gen_loader(a,'wk',False)
    for u in range(8): issue(u)
    out=32
    for u in range(24):
        a(f's_waitcnt vmcnt({out-4})'); out-=4
        consume(u)
        a('s_waitcnt lgkmcnt(0)')
        if u+8<24: issue(u+8); out+=4
    a('s_barrier')
    a(f's_add_u32 s{wPF}, s{wS}, 7')
    dma(wPF,wBb)
    a(f's_mov_b32 s{wPREV}, -1')
    a(f's_mov_b32 s{wO}, -1')
    ACC=16; HW=64; PK=96
    a.label('p1_loop')
    a('s_waitcnt vmcnt(14)')
    a('s_barrier')
    a(f's_cmp_lt_i32 s{wPREV}, 0')
    a('s_cbranch_scc1 p1_nofl')
    a(f's_cmp_lg_u32 s{sW}, 0')
    a('s_cbranch_scc1 p1_nofl')
    a(f's_lshl_b32 s{sT0}, s{sH}, 8')
    a(f's_lshl_b32 s{sT1}, s{wPREV}, 2')
    a(f's_add_u32 s{sT0}, s{sT0}, s{sT1}')
    a('v_mov_b32 v10, 1')
    a('s_mov_b64 exec, 1')
    a(f'buffer_store_dword v10, off, {srd4(sWS)}, s{sT0} sc1')
    a('s_mov_b64 exec, -1')
    a.label('p1_nofl')
    a(f's_add_u32 s{wPF}, s{wS}, 14')
    dma(wPF,wBc)
    a(f'v_add_u32 v{vA}, s{wBa}, v{vL}')
    frs=[(kap,mu) for kap in range(16) for mu in range(2)]
    def rd(i):
        kap,mu=frs[i]; b=HW+4*(i%8)
        return f'ds_read_b128 v[{b}:{b+3}], v{vA} offset:{mu*16384+kap*1024}'
    for i in range(6): a(rd(i))
    for i,(kap,mu) in enumerate(frs):
        issued=min(6+i,32)
        a(f's_waitcnt lgkmcnt({issued-i-1})')
        hb=HW+4*(i%8); t,hh=kap>>1,kap&1
        for X in range(3):
            for tau in range(2):
                k,b=wreg(X,tau,t); b+=4*hh
                acc=ACC+((X*2+tau)*2+mu)*4
                c='0' if kap==0 else f'v[{acc}:{acc+3}]'
                wf=f'{k}[{b}:{b+3}]'; hf=f'v[{hb}:{hb+3}]'
                if X<2: a(f'v_mfma_f32_16x16x32_bf16 v[{acc}:{acc+3}], {wf}, {hf}, {c}')
                else:   a(f'v_mfma_f32_16x16x32_bf16 v[{acc}:{acc+3}], {hf}, {wf}, {c}')
                if X==0 and tau==1 and 6+i<32: a(rd(6+i))
    a(f's_lshl_b32 s{sT0}, s{wS}, 18')
    a(f's_lshl_b32 s{sT1}, s{sH}, 13')
    a(f's_add_u32 s{sT0}, s{sT0}, s{sT1}')
    a(f's_lshl_b32 s{sT1}, s{sW}, 10')
    a(f's_add_u32 s{sT2}, s{sT0}, s{sT1}')
    a(f's_add_u32 s{sT3}, s{sT2}, s{sT1}')
    for X,base in ((0,QF_),(1,KF)):
        for mu in range(2):
            p=PK+(X*2+mu)*4
            a0=ACC+((X*2+0)*2+mu)*4; a1=ACC+((X*2+1)*2+mu)*4
            for r in range(4): a(f'v_cvt_pk_bf16_f32 v{p+r}, v{a0+r}, v{a1+r}')
            a(f's_add_u32 s{sT0}, s{sT2}, {base+mu*4096}')
            a(f'buffer_store_dwordx4 v[{p}:{p+3}], v{vL}, {srd4(sWS)}, s{sT0} offen sc1')
    a(f's_add_u32 s{sT0}, s{sT3}, {VF}')
    for tau in range(2):
        p=PK+16+tau*4
        a0=ACC+((4+tau)*2+0)*4; a1=ACC+((4+tau)*2+1)*4
        a(f'v_cvt_pk_bf16_f32 v{p}, v{a0}, v{a0+1}'); a(f'v_cvt_pk_bf16_f32 v{p+1}, v{a0+2}, v{a0+3}')
        a(f'v_cvt_pk_bf16_f32 v{p+2}, v{a1}, v{a1+1}'); a(f'v_cvt_pk_bf16_f32 v{p+3}, v{a1+2}, v{a1+3}')
        a(f'buffer_store_dwordx4 v[{p}:{p+3}], v{vL}, {srd4(sWS)}, s{sT0} offen offset:{tau*1024} sc1')
    a(f's_mov_b32 s{wPREV}, s{wO}')
    a(f's_mov_b32 s{wO}, s{wS}')
    a(f's_mov_b32 s{sT0}, s{wBa}'); a(f's_mov_b32 s{wBa}, s{wBb}'); a(f's_mov_b32 s{wBb}, s{wBc}'); a(f's_mov_b32 s{wBc}, s{sT0}')
    a(f's_add_u32 s{wS}, s{wS}, 7')
    a(f's_cmp_lt_u32 s{wS}, 64')
    a('s_cbranch_scc1 p1_loop')
    a('s_waitcnt vmcnt(0)')
    a('s_barrier')
    a(f's_cmp_lg_u32 s{sW}, 0')
    a('s_cbranch_scc1 att_start')
    a('v_mov_b32 v10, 1')
    a('s_mov_b64 exec, 1')
    for r in (wPREV,wO):
        a(f's_lshl_b32 s{sT0}, s{sH}, 8')
        a(f's_lshl_b32 s{sT1}, s{r}, 2')
        a(f's_add_u32 s{sT0}, s{sT0}, s{sT1}')
        a(f'buffer_store_dword v10, off, {srd4(sWS)}, s{sT0} sc1')
    a('s_mov_b64 exec, -1')
    a.label('att_start')
    a(f's_bitcmp1_b32 s{sMODE}, 2')
    a('s_cbranch_scc0 main_done')
    wNU=98; wEH=99
    a(f's_and_b32 s{wNU}, s{sW}, 1')
    a(f's_lshr_b32 s{wEH}, s{sW}, 1')
    a(f's_mov_b32 s{wC}, 0x3e0293ee')
    a(f's_mov_b32 s{wSPIN}, 0')
    a('v_and_b32 v1, 15, v0')
    a('v_lshrrev_b32 v2, 4, v0')
    a('v_lshlrev_b32 v3, 2, v2')
    a('v_sub_u32 v3, v3, v1')
    a(f's_lshl_b32 s{sT0}, s{wNU}, 4')
    a(f'v_subrev_u32 v3, s{sT0}, v3')
    for mu in range(2):
        for r in range(4):
            a(f'v_cmp_ge_i32 vcc, {-(r+16*mu)}, v3')
            a(f's_mov_b64 s[{wMASK+2*(4*mu+r)}:{wMASK+2*(4*mu+r)+1}], vcc')
    vKMo=10
    a('v_lshrrev_b32 v3, 2, v1')
    a(f'v_lshlrev_b32 v{vKMo}, 8, v3')
    a(f'v_lshl_add_u32 v{vKMo}, v2, 6, v{vKMo}')
    a('v_and_b32 v3, 1, v1')
    a(f'v_lshl_add_u32 v{vKMo}, v3, 2, v{vKMo}')
    ONES=12; NEG=11
    for i in range(4): a(f'v_mov_b32 v{ONES+i}, 0x3f803f80')
    a(f'v_mov_b32 v{NEG}, 0xf149f2ca')
    Q=16; K=32; V=64; KMr=80; VMr=96; VMp=100; SX=108; SM=116; LA=120; OA=128; PX=144; PM=148; T=152; OUT=156
    a(f's_mov_b32 s{wS}, s{sSLOT}')
    a.label('att_loop')
    a(f's_lshl_b32 s{wO}, s{wS}, 18')
    a(f's_lshl_b32 s{sT1}, s{sH}, 13')
    a(f's_add_u32 s{wO}, s{wO}, s{sT1}')
    a(f's_lshl_b32 s{sT1}, s{wNU}, 12')
    a(f's_add_u32 s{sT0}, s{wO}, s{sT1}')
    a(f's_add_u32 s{sT0}, s{sT0}, {QF_}')
    for u in range(4): a(f'buffer_load_dwordx4 v[{Q+4*u}:{Q+4*u+3}], v{vL}, {srd4(sWS)}, s{sT0} offen offset:{u*1024} sc1')
    for mu in range(2):
        a(f's_add_u32 s{sT0}, s{wO}, {KF+mu*4096}')
        for u in range(4): a(f'buffer_load_dwordx4 v[{K+16*mu+4*u}:{K+16*mu+4*u+3}], v{vL}, {srd4(sWS)}, s{sT0} offen offset:{u*1024} sc1')
    a(f's_lshl_b32 s{sT1}, s{wEH}, 12')
    a(f's_add_u32 s{sT0}, s{wO}, s{sT1}')
    a(f's_add_u32 s{sT0}, s{sT0}, {VF}')
    for t in range(4): a(f'buffer_load_dwordx4 v[{V+4*t}:{V+4*t+3}], v{vL}, {srd4(sWS)}, s{sT0} offen offset:{t*1024} sc1')
    a('s_waitcnt vmcnt(4)')
    for mu in range(2):
        for u in range(4):
            c='0' if u==0 else f'v[{SX+4*mu}:{SX+4*mu+3}]'
            a(f'v_mfma_f32_16x16x32_bf16 v[{SX+4*mu}:{SX+4*mu+3}], v[{K+16*mu+4*u}:{K+16*mu+4*u+3}], v[{Q+4*u}:{Q+4*u+3}], {c}')
    for i in range(8):
        a(f'v_cndmask_b32 v{SX+i}, v{NEG}, v{SX+i}, s[{wMASK+2*i}:{wMASK+2*i+1}]')
    a(f'v_max3_f32 v{T}, v{SX}, v{SX+1}, v{SX+2}')
    a(f'v_max3_f32 v{T+1}, v{SX+3}, v{SX+4}, v{SX+5}')
    a(f'v_max3_f32 v{T}, v{T}, v{SX+6}, v{SX+7}')
    a(f'v_max_f32 v{T}, v{T}, v{T+1}')
    a(f's_lshl_b32 s{sT0}, s{sH}, 7')
    a(f's_add_u32 s{sT0}, s{sT0}, {RECFLAG}')
    a.label('att_poll')
    a(f'buffer_load_dword v{T+2}, off, {srd4(sWS)}, s{sT0} sc1')
    a(f's_add_u32 s{wSPIN}, s{wSPIN}, 1')
    a('s_waitcnt vmcnt(0)')
    a(f'v_readfirstlane_b32 s{sT1}, v{T+2}')
    a(f's_cmp_gt_u32 s{sT1}, s{wS}')
    a('s_cbranch_scc1 att_go')
    a(f's_cmp_gt_u32 s{wSPIN}, {SPIN_MAX}')
    a('s_cbranch_scc1 att_go')
    a('s_sleep 4')
    a('s_branch att_poll')
    a.label('att_go')
    a(f's_lshr_b32 s{sT0}, s{wO}, 1')
    a(f's_add_u32 s{sT0}, s{sT0}, {KM}')
    for u in range(4):
        for d in range(4):
            a(f'buffer_load_dword v{KMr+4*u+d}, v{vKMo}, {srd4(sWS)}, s{sT0} offen offset:{u*1024+d*16} sc1')
    a(f's_lshl_b32 s{sT1}, s{wEH}, 11')
    a(f's_add_u32 s{sT0}, s{sT0}, s{sT1}')
    a(f's_add_u32 s{sT0}, s{sT0}, {1<<17}')
    for z in range(2):
        a(f'buffer_load_dwordx2 v[{VMr+2*z}:{VMr+2*z+1}], v{vL}, {srd4(sWS)}, s{sT0} offen offset:{z*1024+8} sc1')
    a('s_waitcnt vmcnt(2)')
    for u in range(4):
        c='0' if u==0 else f'v[{SM}:{SM+3}]'
        a(f'v_mfma_f32_16x16x32_bf16 v[{SM}:{SM+3}], v[{KMr+4*u}:{KMr+4*u+3}], v[{Q+4*u}:{Q+4*u+3}], {c}')
    a(f'v_max3_f32 v{T}, v{T}, v{SM}, v{SM+1}')
    xlane_reduce(a,'v_max_f32',T,T+1)
    a(f'v_mul_f32 v{T}, s{wC}, v{T}')
    sc=[SX+i for i in range(8)]+[SM,SM+1]
    for r in sc: a(f'v_fma_f32 v{r}, v{r}, s{wC}, -v{T}')
    for r in sc: a(f'v_exp_f32 v{r}, v{r}')
    for i in range(4): a(f'v_cvt_pk_bf16_f32 v{PX+i}, v{SX+2*i}, v{SX+2*i+1}')
    a(f'v_cvt_pk_bf16_f32 v{PM}, v{SM}, v{SM+1}')
    a(f'v_mov_b32 v{PM+1}, 0')
    a('s_waitcnt vmcnt(0)')
    for t in range(4):
        a(f'v_mov_b32 v{VMp+2*t}, v{VMr+t}')
        a(f'v_mov_b32 v{VMp+2*t+1}, 0')
    a(f'v_mfma_f32_16x16x32_bf16 v[{LA}:{LA+3}], v[{ONES}:{ONES+3}], v[{PX}:{PX+3}], 0')
    for t in range(4):
        a(f'v_mfma_f32_16x16x32_bf16 v[{OA+4*t}:{OA+4*t+3}], v[{V+4*t}:{V+4*t+3}], v[{PX}:{PX+3}], 0')
    a(f'v_mfma_f32_16x16x16_bf16 v[{LA}:{LA+3}], v[{ONES}:{ONES+1}], v[{PM}:{PM+1}], v[{LA}:{LA+3}]')
    for t in range(4):
        a(f'v_mfma_f32_16x16x16_bf16 v[{OA+4*t}:{OA+4*t+3}], v[{VMp+2*t}:{VMp+2*t+1}], v[{PM}:{PM+1}], v[{OA+4*t}:{OA+4*t+3}]')
    a(f'v_rcp_f32 v{LA}, v{LA}')
    for i in range(16): a(f'v_mul_f32 v{OA+i}, v{OA+i}, v{LA}')
    for i in range(8): a(f'v_cvt_pk_bf16_f32 v{OUT+i}, v{OA+2*i}, v{OA+2*i+1}')
    a(f's_lshl_b32 s{sT0}, s{wS}, 18')
    a(f's_lshl_b32 s{sT1}, s{wNU}, 17')
    a(f's_add_u32 s{sT0}, s{sT0}, s{sT1}')
    a(f's_lshl_b32 s{sT1}, s{sH}, 12')
    a(f's_add_u32 s{sT0}, s{sT0}, s{sT1}')
    a(f's_lshl_b32 s{sT1}, s{wEH}, 11')
    a(f's_add_u32 s{sT0}, s{sT0}, s{sT1}')
    a(f's_add_u32 s{sT0}, s{sT0}, {OF}')
    for z in range(2):
        a(f'buffer_store_dwordx4 v[{OUT+4*z}:{OUT+4*z+3}], v{vL}, {srd4(sWS)}, s{sT0} offen offset:{z*1024}')
    a(f's_add_u32 s{wS}, s{wS}, 7')
    a(f's_cmp_lt_u32 s{wS}, 64')
    a('s_cbranch_scc1 att_loop')
    a.label('main_done')
    a('s_endpgm')

import common
QF_=common.QF
```

```python
from common import *
from k_main import *
import os
E=lambda k,d: int(os.environ.get(k,str(d)))

R_K=0x0
R_V=0x4000
R_M=0x6000
R_QK=0x6000
R_O=0x7200
vT=0; vIDX=1; vL16=2; vQKW=3; vQR=4; vKR=5; vOW=6; vWO=7; vPST=8; vMST=9; NEG1=10; PM=14
MF=16; QA=48; KA_=56; VA=64; VC=72; ONES=80; VM0=84; VM1=86; KX=88
QFR=[16,20,120,124]
sS=72; sMa=73; sMb=74; sMc=75; sPa=76; sPb=77; sPc=78; sMa2=79; sKVM=80; sODD=82; sSPIN=84; sKB=85; sC=86
sU0=88; sU1=89; sKO=90; sVO=91; sFV=93; sHW=94; sRO=95
sPUB=96; sPR=97; sRG=98; sRG2=99; sHA=92; sHI=70; sFLA=100; sH13=101; sPUB0=63; sPq=64
sPM=68
sTS=4; sACC=32
STSEL=[x for x in os.environ.get('STSEL','').split(',') if x]
SOLO=E('SOLO',0)
ABL=[x for x in os.environ.get('ABL','').split(',') if x]
HINT=0x3000
def wo_reg(f):
    j,tau=f>>1,f&1
    return wreg(2,tau,j)[1]

def delay(a,cyc):
    n=cyc//4
    while n>0:
        c=min(n,16); a(f's_nop {c-1}'); n-=c

def gen_rec(a, stamps=False):
    global SPIN_MAX
    if stamps: SPIN_MAX=1<<30
    W=srd4(sWS)
    a.label('rec_start')
    a(f's_bitcmp1_b32 s{sMODE}, 1')
    a('s_cbranch_scc0 main_done')
    a(f's_mov_b32 s{sH}, s{sROLE}')
    a('v_lshlrev_b32 v9, 4, v0')
    for r in range(10,14): a(f'v_mov_b32 v{r}, -1')
    a(f's_lshl_b32 s{sT0}, s{sH}, 13')
    a(f's_lshl_b32 s{sT1}, s{sW}, 11')
    a(f's_add_u32 s{sT0}, s{sT0}, s{sT1}')
    for sl in range(3):
        a(f's_add_u32 s{sT1}, s{sT0}, {PRING+sl*0x40000}')
        a(f'buffer_store_dwordx4 v[10:13], v9, {W}, s{sT1} offen sc1')
        a(f'buffer_store_dwordx4 v[10:13], v9, {W}, s{sT1} offen offset:1024 sc1')
    a(f's_lshl_b32 s{sT0}, s{sH}, 8')
    a(f's_lshl_b32 s{sT1}, s{sW}, 13')
    a(f's_add_u32 s{sT0}, s{sT0}, s{sT1}')
    a(f's_add_u32 s{sT0}, s{sT0}, {MRING}')
    a('v_lshlrev_b32 v8, 2, v0')
    a(f'buffer_store_dword v10, v8, {W}, s{sT0} offen sc1')
    issue,consume=gen_loader(a,'rec',True)
    for u in range(8): issue(u)
    a('s_waitcnt vmcnt(32)')
    a('s_barrier')
    a(f's_cmp_lg_u32 s{sW}, 0')
    a('s_cbranch_scc1 rec_arrived')
    a(f's_cmp_eq_u32 s{sXCC}, 0')
    a(f's_cselect_b32 s{sT0}, 1, 0x10001')
    a('s_mov_b64 exec, 1')
    a(f'v_mov_b32 v14, s{sT0}')
    a(f's_mov_b32 s{sT1}, 64')
    a(f'buffer_atomic_add v14, off, {srd4(sDBG)}, s{sT1}')
    a('s_mov_b64 exec, -1')
    a('s_waitcnt vmcnt(0)')
    a.label('rec_arrived')
    a('v_bfe_u32 v2, v0, 4, 1')
    a('v_lshlrev_b32 v6, 14, v2')
    a('v_bfe_u32 v2, v0, 5, 1')
    a('v_lshl_add_u32 v6, v2, 13, v6')
    a('v_and_b32 v2, 15, v0')
    a('v_lshl_add_u32 v6, v2, 2, v6')
    a(f's_lshl_b32 s{sT0}, s{sW}, 6')
    a(f'v_add_u32 v6, s{sT0}, v6')
    a(f's_lshl_b32 s{sT3}, s{sH}, 17')
    def wo_issue(b,half):
        base=24+32*(b%3)
        a(f's_add_u32 s{sT1}, s{sT3}, {b*32768+half*4096}')
        for r in range(4*half,4*half+4):
            for c in range(4):
                a(f'buffer_load_dword v{base+4*r+c}, v6, {srd4(sWO)}, s{sT1} offen offset:{(r&3)*1024+c*256}')
    def wo_consume(b):
        base=24+32*(b%3); t2,hh=b>>1,b&1
        for T in range(8):
            f=2*T+t2
            d = wo_reg(f)+4*hh if f<8 else 16+4*(T&1)
            for rp,off in enumerate([0,4,2,6]):
                a(f'v_perm_b32 v{d+rp}, v{base+4*(off+1)+(T>>1)}, v{base+4*off+(T>>1)}, s{sU0+(T&1)}')
            if f>=8: a(f'ds_write_b128 v7, v[{d}:{d+3}] offset:{(f-8)*2048+hh*1024}')
    out=32
    for u in range(24):
        a(f's_waitcnt vmcnt({out-4})'); out-=4
        consume(u)
        a('s_waitcnt lgkmcnt(0)')
        if u+8<24: issue(u+8); out+=4
        elif u in (16,19,22): wo_issue(*[(0,0),(0,1),(1,0)][(u-16)//3]); out+=16
    a(f's_mov_b32 s{sU0}, 0x05040100')
    a(f's_mov_b32 s{sU1}, 0x07060302')
    a('v_lshlrev_b32 v7, 4, v0')
    a(f'v_add_u32 v7, s{sLB}, v7')
    for x in range(8):
        b=wo_reg(x)
        a(f'ds_write_b128 v7, v[{b}:{b+3}] offset:{16384+x*2048}')
        a(f'ds_write_b128 v7, v[{b+4}:{b+7}] offset:{16384+x*2048+1024}')
        if x==3: a('s_waitcnt lgkmcnt(0)')
    a('s_waitcnt lgkmcnt(0)')
    a('s_waitcnt vmcnt(16)'); wo_issue(1,1); wo_issue(2,0); wo_consume(0)
    a('s_waitcnt vmcnt(16)'); wo_issue(2,1); wo_issue(3,0); wo_consume(1)
    a('s_waitcnt vmcnt(16)'); wo_issue(3,1); wo_consume(2)
    a('s_waitcnt vmcnt(0)'); wo_consume(3)
    a('s_waitcnt lgkmcnt(0)')
    a(f'v_lshlrev_b32 v{vL16}, 4, v0')
    a('v_and_b32 v19, 1, v0')
    a(f'v_mov_b32 v{vIDX}, 0x4444')
    a('v_mov_b32 v16, 0xeeee')
    a('v_cmp_eq_u32 vcc, 1, v19')
    a(f'v_cndmask_b32 v{vIDX}, v{vIDX}, v16, vcc')
    a(f's_mov_b32 s{sODD}, 0xaaaaaaaa')
    a(f's_mov_b32 s{sODD+1}, 0xaaaaaaaa')
    a(f's_mov_b32 s{sPM}, 0x000f000f')
    a(f's_mov_b32 s{sPM+1}, 0x000f000f')
    a('v_and_b32 v16, 15, v0')
    a('v_lshrrev_b32 v17, 4, v0')
    a(f'v_mul_u32_u24 v{vQKW}, {2*QK_RS}, v17')
    a(f'v_lshl_add_u32 v{vQKW}, v16, 2, v{vQKW}')
    a(f's_lshl_b32 s{sT1}, s{sW}, 6')
    a(f's_add_u32 s{sT1}, s{sT1}, {R_QK}')
    a(f'v_add_u32 v{vQKW}, s{sT1}, v{vQKW}')
    a('v_lshrrev_b32 v18, 1, v16')
    a(f'v_mul_u32_u24 v{vQR}, {QK_RS}, v18')
    a(f'v_lshl_add_u32 v{vQR}, v17, 4, v{vQR}')
    a(f'v_add_u32 v{vQR}, {R_QK}, v{vQR}')
    a('v_lshrrev_b32 v18, 2, v16')
    a('v_lshlrev_b32 v18, 1, v18')
    a('v_add_u32 v18, v18, v19')
    a(f'v_mul_u32_u24 v{vKR}, {QK_RS}, v18')
    a(f'v_lshl_add_u32 v{vKR}, v17, 4, v{vKR}')
    a(f'v_add_u32 v{vKR}, {R_QK+256}, v{vKR}')
    a('v_lshrrev_b32 v18, 1, v17')
    a(f'v_lshlrev_b32 v{vOW}, 8, v18')
    a('v_lshrrev_b32 v18, 1, v16')
    a(f'v_lshl_add_u32 v{vOW}, v18, 5, v{vOW}')
    a('v_and_b32 v18, 1, v17')
    a(f'v_lshl_add_u32 v{vOW}, v18, 4, v{vOW}')
    a(f'v_lshl_add_u32 v{vOW}, v19, 3, v{vOW}')
    a(f's_lshl_b32 s{sT1}, s{sW}, 9')
    a(f's_add_u32 s{sT1}, s{sT1}, {R_O}')
    a(f'v_add_u32 v{vOW}, s{sT1}, v{vOW}')
    a('v_lshrrev_b32 v18, 3, v0')
    a(f'v_lshlrev_b32 v{vPST}, 11, v18')
    a('v_and_b32 v18, 7, v0')
    a(f'v_lshl_add_u32 v{vPST}, v18, 3, v{vPST}')
    a(f's_lshl_b32 s{sT1}, s{sW}, 14')
    a(f's_lshl_b32 s{sT2}, s{sH}, 6')
    a(f's_add_u32 s{sT1}, s{sT1}, s{sT2}')
    a(f'v_add_u32 v{vPST}, s{sT1}, v{vPST}')
    a('v_lshrrev_b32 v18, 1, v17')
    a(f'v_lshlrev_b32 v{vMST}, 5, v18')
    a('v_and_b32 v18, 3, v0')
    a(f'v_lshl_add_u32 v{vMST}, v18, 3, v{vMST}')
    a('v_and_b32 v18, 1, v17')
    a(f'v_lshl_add_u32 v{vMST}, v18, 2, v{vMST}')
    a(f's_lshr_b32 s{sT1}, s{sH}, 3')
    a(f's_lshl_b32 s{sT1}, s{sT1}, 9')
    a(f's_and_b32 s{sT2}, s{sH}, 1')
    a(f's_lshl_b32 s{sT2}, s{sT2}, 8')
    a(f's_add_u32 s{sT1}, s{sT1}, s{sT2}')
    a(f's_bfe_u32 s{sT2}, s{sH}, 0x20001')
    a(f's_lshl_b32 s{sT2}, s{sT2}, 6')
    a(f's_add_u32 s{sT1}, s{sT1}, s{sT2}')
    a(f's_lshl_b32 s{sT2}, s{sW}, 11')
    a(f's_add_u32 s{sT1}, s{sT1}, s{sT2}')
    a(f'v_add_u32 v{vMST}, s{sT1}, v{vMST}')
    a('v_mov_b32 v24, 0x3f80')
    a('v_mov_b32 v25, 0x3f800000')
    a('v_mov_b32 v26, 0x3f803f80')
    a('v_and_b32 v18, 3, v16')
    for d in range(4):
        lo=4*(d>>1)+2+(d&1)
        a(f'v_cmp_eq_u32 vcc, {lo}, v16')
        a(f'v_cndmask_b32 v{ONES+d}, 0, v24, vcc')
        a(f'v_cmp_eq_u32 vcc, {lo+8}, v16')
        a(f'v_cndmask_b32 v{ONES+d}, v{ONES+d}, v25, vcc')
        a('v_cmp_eq_u32 vcc, 0, v18')
        a(f'v_cndmask_b32 v{ONES+d}, v{ONES+d}, v26, vcc')
    for r in (VM0,VM0+1,VM1,VM1+1,PM+1): a(f'v_mov_b32 v{r}, 0')
    a(f's_mov_b32 s{sC}, 0x3e0293ee'); a(f's_mov_b32 s{sC+1}, 0x3e0293ee')
    a(f's_mov_b32 s{sS}, 0')
    a(f's_mov_b32 s{sMa}, {MRING}'); a(f's_mov_b32 s{sMb}, {MRING+8192}'); a(f's_mov_b32 s{sMc}, {MRING+16384}')
    a(f's_mov_b32 s{sPa}, {PRING}'); a(f's_mov_b32 s{sPb}, {PRING+0x40000}'); a(f's_mov_b32 s{sPc}, {PRING+0x80000}')
    a(f's_mov_b32 s{sSPIN}, 0')
    a(f's_lshl_b32 s{sH13}, s{sH}, 13')
    a(f's_lshl_b32 s{sT1}, s{sW}, 11')
    a(f's_add_u32 s{sHW}, s{sH13}, s{sT1}')
    a(f's_add_u32 s{sKO}, s{sHW}, {KF}')
    a(f's_add_u32 s{sVO}, s{sHW}, {VF}')
    a(f's_lshl_b32 s{sRO}, s{sW}, 16')
    a(f's_lshl_b32 s{sT2}, s{sH}, 11')
    a(f's_add_u32 s{sRO}, s{sRO}, s{sT2}')
    a(f's_lshl_b32 s{sFLA}, s{sH}, 7')
    a(f's_add_u32 s{sFLA}, s{sFLA}, {RECFLAG}')
    a(f's_lshr_b32 s{sPUB0}, s{sHW}, 1')
    a(f's_add_u32 s{sPUB}, s{sPUB0}, {KM}')
    a(f's_lshl_b32 s{sHA}, s{sH}, 2')
    a(f's_add_u32 s{sHA}, s{sHA}, {HINT}')
    a(f's_and_b32 s{sHI}, s{sH}, 7')
    a(f's_lshl_b32 s{sHI}, s{sHI}, 8')
    a(f's_add_u32 s{sHI}, s{sHI}, {HINT}')
    a(f's_mov_b32 s{sFV}, 0')
    a(f's_mov_b32 s{sKB}, 0')
    a.label('kvw_first')
    a(f's_add_u32 s{sSPIN}, s{sSPIN}, 1')
    a(f'v_lshrrev_b32 v24, 2, v{vL16}')
    a(f's_lshl_b32 s{sT0}, s{sH}, 8')
    a(f'buffer_load_dword v24, v24, {W}, s{sT0} offen sc1')
    a('s_waitcnt vmcnt(0)')
    a(f'v_cmp_ne_u32 s[{sKVM}:{sKVM+1}], 0, v24')
    a(f's_cmp_gt_u32 s{sSPIN}, {SPIN_MAX}')
    a('s_cbranch_scc1 kvok_first')
    a(f's_bitcmp1_b64 s[{sKVM}:{sKVM+1}], 0')
    a('s_cbranch_scc0 kvw_first')
    a.label('kvok_first')
    a(f's_add_u32 m0, s{sT1}, {R_K}')
    a(f'buffer_load_dwordx4 v{vL16}, {W}, s{sKO} offen sc1 lds')
    a(f'buffer_load_dwordx4 v{vL16}, {W}, s{sKO} offen offset:1024 sc1 lds')
    a(f's_add_u32 m0, s{sT1}, {R_V}')
    a(f'buffer_load_dwordx4 v{vL16}, {W}, s{sVO} offen sc1 lds')
    a(f'buffer_load_dwordx4 v{vL16}, {W}, s{sVO} offen offset:1024 sc1 lds')
    a(f's_mov_b32 s{sT1}, 64')
    a.label('rec_team')
    a(f'buffer_load_dword v24, off, {srd4(sDBG)}, s{sT1} sc1')
    a(f's_add_u32 s{sSPIN}, s{sSPIN}, 1')
    a('s_waitcnt vmcnt(0)')
    a(f'v_readfirstlane_b32 s{sT0}, v24')
    a(f's_cmp_gt_u32 s{sSPIN}, {SPIN_MAX}')
    a('s_cbranch_scc1 rec_team_ok')
    a(f's_and_b32 s{sT2}, s{sT0}, 0xffff')
    a(f's_cmp_lt_u32 s{sT2}, 32')
    a('s_cbranch_scc1 rec_team')
    a.label('rec_team_ok')
    a('v_lshrrev_b32 v18, 1, v17')
    a('v_lshlrev_b32 v24, 10, v18')
    a('v_and_b32 v18, 3, v0')
    a('v_lshl_add_u32 v24, v18, 3, v24')
    a('v_and_b32 v18, 1, v17')
    a('v_lshl_add_u32 v24, v18, 2, v24')
    a(f's_bfe_u32 s{sT1}, s{sH}, 0x20001')
    a(f's_lshl_b32 s{sT1}, s{sT1}, 11')
    a(f's_lshl_b32 s{sT2}, s{sW}, 8')
    a(f's_add_u32 s{sT1}, s{sT1}, s{sT2}')
    a(f's_lshr_b32 s{sT2}, s{sH}, 3')
    a(f's_lshl_b32 s{sT2}, s{sT2}, 6')
    a(f's_add_u32 s{sT1}, s{sT1}, s{sT2}')
    a(f's_and_b32 s{sT2}, s{sH}, 1')
    a(f's_lshl_b32 s{sT2}, s{sT2}, 5')
    a(f's_add_u32 s{sT1}, s{sT1}, s{sT2}')
    a(f'buffer_load_dword v26, v24, {srd4(sM0)}, s{sT1} offen')
    a('s_waitcnt vmcnt(0) lgkmcnt(0)')
    a(f's_mov_b64 exec, s[{sPM}:{sPM+1}]')
    a(f'buffer_store_dword v26, v{vMST}, {W}, s{sMa} offen sc1')
    a('s_mov_b64 exec, -1')
    a('s_barrier')
    for t in house_salu(first=True): a(t)
    a(f's_cmp_eq_u32 s{sT0}, 32')
    a('s_cbranch_scc0 rec_slow')
    for w in range(4):
        a(f's_cmp_eq_u32 s{sW}, {w}')
        a(f's_cbranch_scc1 rec_redo_f{w}')
    a.label('rec_slow')
    for w in range(3):
        a(f's_cmp_eq_u32 s{sW}, {w}')
        a(f's_cbranch_scc1 rec_redo_s{w}')
    a('s_branch rec_redo_s3')
    for fast in (True,False):
        for w in range(4):
            gen_loop(a, fast, w, stamps)
    a.label('rec_fin')
    a(f'v_mov_b32 v{KA_+2}, v{VM0}'); a(f'v_mov_b32 v{KA_+3}, v{VM1}')
    a(f's_add_u32 s{sU0}, s{sPUB}, {1<<17}')
    a(f'buffer_store_dwordx4 v[{KA_}:{KA_+3}], v{vL16}, {W}, s{sU0} offen sc1')
    if stamps:
        a('s_waitcnt lgkmcnt(0)')
        a(f's_sub_u32 s{sACC+14}, s{sSPIN}, s{sACC+14}')
        for k in range(16): a(f'v_writelane_b32 v126, s{sACC+k}, {k}')
        a(f's_lshl_b32 s{sU0}, s{sH}, 8')
        a(f's_lshl_b32 s{sU1}, s{sW}, 6')
        a(f's_add_u32 s{sU0}, s{sU0}, s{sU1}')
        a(f's_add_u32 s{sU0}, s{sU0}, 0x6000000')
        a(f'v_lshrrev_b32 v127, 2, v{vL16}')
        a('s_mov_b64 exec, 0xffff')
        a(f'buffer_store_dword v126, v127, {W}, s{sU0} offen')
        a('s_mov_b64 exec, -1')
    a('s_waitcnt vmcnt(0)')
    a('s_barrier')
    a(f's_cmp_lg_u32 s{sW}, 1')
    a('s_cbranch_scc1 main_done')
    a(f'v_mov_b32 v124, 64')
    a('s_mov_b64 exec, 1')
    a(f'buffer_store_dword v124, off, {W}, s{sFLA} sc1')
    a('s_branch main_done')

def xreg(x): return KX+8*(x&3)
def x_reads(lo,hi):
    r=[]
    for x in range(lo,hi):
        b=xreg(x)
        r+=[f'ds_read_b128 v[{b}:{b+3}], v{vWO} offset:{16384+x*2048}', f'ds_read_b128 v[{b+4}:{b+7}], v{vWO} offset:{16384+x*2048+1024}']
    return r
def zero_acc():
    return [f'v_mov_b64 v[{r}:{r+1}], 0' for r in range(QA,VA+8,2)]
def v_reads(w):
    return [f'ds_read_b128 v[{VC+4*t}:{VC+4*t+3}], v{vL16} offset:{R_V+w*2048+t*1024}' for t in range(2)]
def rot_m():
    return [f's_mov_b32 s{sU0}, s{sMa}', f's_mov_b32 s{sMa}, s{sMb}', f's_mov_b32 s{sMb}, s{sMc}', f's_mov_b32 s{sMc}, s{sU0}', f's_add_u32 s{sMa2}, s{sMa}, 4096']
def house_salu(first=False):
    r=[]
    if not first:
        r+=[f's_mov_b32 s{sU0}, s{sPa}', f's_mov_b32 s{sPa}, s{sPb}', f's_mov_b32 s{sPb}, s{sPc}', f's_mov_b32 s{sPc}, s{sU0}',
            f's_add_u32 s{sPUB}, s{sPUB}, {1<<17}', f's_mov_b32 s{sFV}, s{sS}',
            f's_add_u32 s{sS}, s{sS}, 1', f's_xor_b32 s{sKB}, s{sKB}, 0x2000']
    if first: r+=[f's_add_u32 s{sMa2}, s{sMa}, 4096']
    r+=[
        f's_add_u32 s{sU1}, s{sS}, 1', f's_min_u32 s{sU1}, s{sU1}, 63',
        f's_lshl_b32 s{sU0}, s{sU1}, 18', f's_add_u32 s{sU0}, s{sU0}, s{sHW}',
        f's_add_u32 s{sKO}, s{sU0}, {KF}', f's_add_u32 s{sVO}, s{sU0}, {VF}',
        f's_add_u32 s{sPR}, s{sPc}, s{sRO}', f's_add_u32 s{sRG}, s{sPa}, s{sRO}', f's_add_u32 s{sRG2}, s{sRG}, {2*65536}']
    r+=[f's_add_u32 s{sPq+c}, s{sPa}, {c*65536}' for c in range(1,4)]
    return r

def gen_loop(a, fast, w, stamps):
    tag=('f' if fast else 's')+str(w)
    sc='' if fast else ' sc1'
    W=srd4(sWS)
    nst=[0]; nall=[0]
    def stamp():
        nall[0]+=1
        if stamps and (not STSEL or str(nall[0]-1) in STSEL):
            k=nst[0]; nst[0]+=1
            return [f's_memtime s[{sTS+2*k}:{sTS+2*k+1}]']
        return []
    def emit(lst):
        for t in lst: a(t)
    def sm(X,tau,j):
        k,b=wreg(X,tau,j)
        if X==2 and j<4: b=xreg(2*j+tau)
        acc=[QA,KA_,VA][X]+4*tau
        return f'v_smfmac_f32_16x16x64_bf16 v[{acc}:{acc+3}], v[{MF+4*j}:{MF+4*j+3}], {k}[{b}:{b+7}], v{vIDX}'
    def moff(j): return R_M+((2*w+j)&7)*1024
    GB=40
    def gl(b):
        return [f'buffer_load_dwordx4 v[{b+4*L}:{b+4*L+3}], v{vL16}, {W}, s{sMa if w<2 else sMa2} offen offset:{(w&1)*2048+L*1024} sc1' for L in range(2)]
    def spin(inc):
        return [f's_add_u32 s{sSPIN}, s{sSPIN}, {inc if stamps else 1}', f's_cmp_gt_u32 s{sSPIN}, {SPIN_MAX}']
    T=vT; C2=PM
    def chk(b):
        return [f'v_max3_u32 v{T}, v{b}, v{b+1}, v{b+2}', f'v_max3_u32 v{C2}, v{b+3}, v{b+4}, v{b+5}',
                f'v_max3_u32 v{T}, v{T}, v{b+6}, v{b+7}', f'v_max_u32 v{T}, v{T}, v{C2}', f'v_cmp_eq_u32 vcc, -1, v{T}']
    a.label(f'rec_redo_{tag}')
    emit(x_reads(0,4)+v_reads(w))
    if w==3:
        emit(zero_acc()); emit(gl(GB)); emit(gl(32))
        a.label(f'rec_g0_{tag}')
        emit(gl(24))
        a.label(f'rec_gl_{tag}')
        sets=((GB,'a'),(32,'b'),(24,'c'))
        for (cur,tg) in sets:
            emit(spin(1))
            a('s_waitcnt vmcnt(4)')
            a(f's_cbranch_scc1 rec_gk{tg}_{tag}')
            emit(chk(cur))
            a(f's_cbranch_vccz rec_gk{tg}_{tag}')
            emit(gl(cur))
        a(f's_branch rec_gl_{tag}')
        for (cur,tg) in sets:
            a.label(f'rec_gk{tg}_{tag}')
            for r in range(0,8,2): a(f'v_mov_b64 v[{MF+r}:{MF+r+1}], v[{cur+r}:{cur+r+1}]')
            a('s_waitcnt lgkmcnt(0)')
            a(f's_branch rec_ok0_{tag}')
    else:
        a.label(f'rec_g0_{tag}')
        emit(gl(MF))
        emit(spin(1))
        a(f's_cbranch_scc1 rec_ok0_{tag}')
        emit(zero_acc())
        a(f's_branch rec_enter_{tag}')
    a.label(f'rec_kvw_{tag}')
    a(f's_add_u32 s{sT2}, s{sT2}, 1')
    a(f'v_lshrrev_b32 v{PM}, 2, v{vL16}')
    a(f's_lshr_b32 s{sU0}, s{sH13}, 5')
    a(f'buffer_load_dword v{PM}, v{PM}, {W}, s{sU0} offen sc1')
    a('s_waitcnt vmcnt(0)')
    a(f'v_cmp_ne_u32 s[{sKVM}:{sKVM+1}], 0, v{PM}')
    a(f's_cmp_gt_u32 s{sT2}, {1<<22}')
    a(f's_cbranch_scc1 rec_kvok_{tag}')
    a(f's_bitcmp1_b64 s[{sKVM}:{sKVM+1}], s{sU1}')
    a(f's_cbranch_scc0 rec_kvw_{tag}')
    a(f's_branch rec_kvok_{tag}')
    a('.p2align 6')
    a.label(f'rec_enter_{tag}')
    a(f's_waitcnt vmcnt({4 if w==3 else 0}) lgkmcnt(0)')
    if w==3:
        emit(chk(MF))
        a(f's_cbranch_vccnz rec_ok0_{tag}' if SOLO else f's_cbranch_vccnz rec_g0_{tag}')
        a.label(f'rec_ok0_{tag}')
    emit(stamp())
    seq=[]; ex={}
    def put(i,*ops): ex.setdefault(i,[]).extend(ops)
    def grp(X,c): return [sm(X,tau,j) for j in (2*c,2*c+1) for tau in range(2)]
    seq+=grp(2,0)+grp(0,0)+grp(1,0)
    seq+=grp(0,1)+grp(0,2)+grp(0,3)
    seq+=grp(2,1)
    seq+=grp(1,1)+grp(1,2)+grp(1,3)
    vv=[sm(2,0,4),sm(2,0,5),sm(2,0,6),sm(2,0,7),sm(2,1,4),sm(2,1,5),sm(2,1,6),sm(2,1,7)]
    seq+=vv[0:6]
    SX=QA; SM=KA_+4; KMF=KX; T2=KA_+2
    def sx(mu,u):
        c = '0' if u==0 else f'v[{SX+4*mu}:{SX+4*mu+3}]'
        f=KX+4*(mu*4+u)
        return f'v_mfma_f32_16x16x32_bf16 v[{SX+4*mu}:{SX+4*mu+3}], v[{f}:{f+3}], v[{QFR[u]}:{QFR[u]+3}], {c}'
    seq+=[sx(0,u) for u in range(4)]+[sx(1,u) for u in range(4)]
    seq+=[vv[6]]
    for u in range(4):
        c='0' if u==0 else f'v[{SM}:{SM+3}]'
        seq.append(f'v_mfma_f32_16x16x32_bf16 v[{SM}:{SM+3}], v[{KMF+4*u}:{KMF+4*u+3}], v[{QFR[u]}:{QFR[u]+3}], {c}')
    seq+=[vv[7]]
    put(0, f'ds_write_b128 v{vL16}, v[{MF}:{MF+3}] offset:{moff(0)}')
    put(1, f'ds_write_b128 v{vL16}, v[{MF+4}:{MF+7}] offset:{moff(1)}')
    if w<3:
        for i,o in enumerate(chk(MF)): put(i,o)
        put(5, f's_cbranch_vccnz rec_ok0_{tag}' if SOLO else f's_cbranch_vccnz rec_g0_{tag}', f'rec_ok0_{tag}:')
    B1=[E('B10',11),E('B11',11),E('B12',9),E('B13',6)][w]
    mr=[f'ds_read_b128 v[{MF+4*j}:{MF+4*j+3}], v{vL16} offset:{moff(j)}' for j in range(2,8)]
    put(B1,'s_waitcnt lgkmcnt(0)','s_barrier','s_waitcnt vmcnt(0)')
    if B1==11: put(11,*mr)
    else:
        put(B1,mr[0]); put(B1+1,*mr[1:4]); put(B1+2,*mr[4:6])
    put(11,'s_waitcnt lgkmcnt(5)'); put(13,'s_waitcnt lgkmcnt(4)'); put(15,'s_waitcnt lgkmcnt(0)')
    xr=x_reads(4,8)
    for i in range(4): put(16+i, *xr[2*i:2*i+2])
    put(23, 's_waitcnt lgkmcnt(0)', 's_barrier')
    put(12, f's_bitcmp1_b64 s[{sKVM}:{sKVM+1}], s{sU1}', f's_cbranch_scc0 rec_kvw_{tag}', f'rec_kvok_{tag}:')
    put(13, f's_xor_b32 s{sU0}, s{sKB}, {0x2000+w*2048}', f's_mov_b32 m0, s{sU0}')
    put(14, f'buffer_load_dwordx4 v{vL16}, {W}, s{sKO} offen sc1 lds')
    put(15, f'buffer_load_dwordx4 v{vL16}, {W}, s{sKO} offen offset:1024 sc1 lds', f's_mov_b32 m0, {R_V+w*2048}')
    put(16, f'buffer_load_dwordx4 v{vL16}, {W}, s{sVO} offen sc1 lds')
    put(17, f'buffer_load_dwordx4 v{vL16}, {W}, s{sVO} offen offset:1024 sc1 lds')
    put(14, f'v_add_u32 v{T}, s{sKB}, v{vL16}')
    for f in range(8): put(28+f, f'ds_read_b128 v[{KX+4*f}:{KX+4*f+3}], v{T} offset:{R_K+f*1024}')
    put(46+(w&1), f'buffer_store_dwordx4 v[{KA_}:{KA_+3}], v{vL16}, {W}, s{sPUB} offen sc1')
    put(44, f'v_mov_b32 v{KA_+2}, v{VM0}'); put(45, f'v_mov_b32 v{KA_+3}, v{VM1}')
    if w==0:
        put(15, f'v_mov_b32 v{PM}, s{sFV}')
        put(22, 's_mov_b64 exec, 1', f'buffer_store_dword v{PM}, off, {W}, s{sFLA} sc1', 's_mov_b64 exec, -1')
    put(20+(w&1), f'buffer_store_dwordx4 v[{NEG1}:{NEG1+3}], v{vL16}, {W}, s{sPR} offen{sc}')
    put(26+(w&1), f'buffer_store_dwordx4 v[{NEG1}:{NEG1+3}], v{vL16}, {W}, s{sPR} offen offset:1024{sc}')
    put(38, f's_mov_b64 exec, s[{sPM}:{sPM+1}]', f'buffer_store_dword v{NEG1}, v{vMST}, {W}, s{sMc} offen{sc}', 's_mov_b64 exec, -1')
    def pp(acc,d0,d1):
        return [f'v_add_f32 v{acc}, v{acc}, v{acc+1}', f'v_add_f32 v{acc+2}, v{acc+2}, v{acc+3}',
                f'v_add_f32 v{acc+4}, v{acc+4}, v{acc+5}', f'v_add_f32 v{acc+6}, v{acc+6}, v{acc+7}',
                f'v_cvt_pk_bf16_f32 v{d0}, v{acc}, v{acc+4}', f'v_cvt_pk_bf16_f32 v{d1}, v{acc+2}, v{acc+6}']
    q=pp(QA,QA,QA+1)
    for i in range(6): put(24+i,q[i])
    put(30, f'ds_write2_b32 v{vQKW}, v{QA}, v{QA+1} offset0:0 offset1:{QK_RS//4}')
    qf=[f'ds_read_b128 v[{QFR[u]}:{QFR[u]+3}], v{vQR} offset:{u*64}' for u in range(4)]
    put(36,'s_waitcnt lgkmcnt(5)','s_barrier'); put(37,*qf[0:2]); put(39,*qf[2:4])
    k=pp(KA_,KA_,KA_+1)
    put(40,k[0]); put(41,k[1],k[2]); put(42,k[3],k[4]); put(43,k[5])
    put(44, f'ds_write2_b32 v{vQKW}, v{KA_}, v{KA_+1} offset0:64 offset1:{QK_RS//4+64}')
    put(45, 's_waitcnt lgkmcnt(1)')
    WA=[24,28,32,36,72,76,48,52]
    z0=[f'v_mov_b64 v[{r}:{r+1}], 0' for r in range(24,40,2)]
    kmf=[f'ds_read_b128 v[{KMF+4*u}:{KMF+4*u+3}], v{vKR} offset:{u*64}' for u in range(4)]
    put(32,z0[0]); put(33,z0[1]); put(34,z0[2]); put(35,z0[3]); put(46,z0[4]); put(47,z0[5]); put(48,*z0[6:8])
    put(49,'s_waitcnt lgkmcnt(0)','s_barrier',kmf[0]); put(50,*kmf[1:4])
    put(51, f'v_add_f32 v{VA}, v{VA}, v{VA+1}', f'v_add_f32 v{VA+2}, v{VA+2}, v{VA+3}')
    put(52, f'v_cvt_pk_bf16_f32 v{VM0}, v{VA}, v{VA+2}', f'v_max3_f32 v{T}, v{SX}, v{SX+1}, v{SX+2}')
    put(54, 's_waitcnt lgkmcnt(0)')
    WIN=[104,112,88,96,16,120,40,64]
    def wrd(f):
        b=WIN[f]
        return [f'ds_read_b128 v[{b}:{b+3}], v{vWO} offset:{f*2048}', f'ds_read_b128 v[{b+4}:{b+7}], v{vWO} offset:{f*2048+1024}']
    put(55,*wrd(0)); put(56,*wrd(1))
    put(57, f'v_max3_f32 v{T2}, v{SX+3}, v{SX+4}, v{SX+5}', f'v_max3_f32 v{T}, v{T}, v{SX+6}, v{SX+7}')
    put(58, f'v_max_f32 v{T}, v{T}, v{T2}')
    put(59,*wrd(2)); put(59,*wrd(3))
    sta=[int(x) for x in os.environ.get('STA','17,37,58').split(',')]
    for i,m in enumerate(seq):
        a(m)
        ops=ex.get(i,[])
        if ABL:
            ops=[o for o in ops if not any(o.startswith(p) for p in ABL)]
        if i in sta: emit(stamp())
        emit([o for o in ops if not o.startswith('v_')]); emit([o for o in ops if o.startswith('v_')])
    assert max(ex)<len(seq)
    B=[]
    B+=[f'v_max3_f32 v{T}, v{T}, v{SM}, v{SM+1}', f'v_mov_b32 v{T2}, v{T}']+wrd(4)
    B+=[f'v_permlane16_swap_b32 v{T2}, v{T}', f'v_max_f32 v{T}, v{T2}, v{T}', f'v_mov_b32 v{T2}, v{T}',
        f'v_add_f32 v{VA+4}, v{VA+4}, v{VA+5}', f'v_add_f32 v{VA+6}, v{VA+6}, v{VA+7}',
        f'v_permlane32_swap_b32 v{T2}, v{T}', f'v_max_f32 v{T}, v{T2}, v{T}', f'v_mul_f32 v{T2}, s{sC}, v{T}']
    for r in (SM,SX,SX+2,SX+4,SX+6):
        B.append(f'v_pk_fma_f32 v[{r}:{r+1}], v[{r}:{r+1}], s[{sC}:{sC+1}], v[{T2}:{T2+1}] op_sel_hi:[1,1,0] neg_lo:[0,0,1] neg_hi:[0,0,1]')
    B+=[f'v_exp_f32 v{SM}, v{SM}', f'v_exp_f32 v{SM+1}, v{SM+1}', f'v_cvt_pk_bf16_f32 v{VM1}, v{VA+4}, v{VA+6}', f'v_cvt_pk_bf16_f32 v{PM}, v{SM}, v{SM+1}']
    OA=VA; LA=SM; PX=SX
    exs=[f'v_exp_f32 v{r}, v{r}' for r in range(SX,SX+8)]
    B+=exs[0:2]+[f'v_mfma_f32_16x16x16_bf16 v[{LA}:{LA+3}], v[{ONES}:{ONES+1}], v[{PM}:{PM+1}], 0']
    B+=exs[2:4]+[f'v_mfma_f32_16x16x16_bf16 v[{OA}:{OA+3}], v[{VM0}:{VM0+1}], v[{PM}:{PM+1}], 0']
    B+=exs[4:6]+[f'v_mfma_f32_16x16x16_bf16 v[{OA+4}:{OA+7}], v[{VM1}:{VM1+1}], v[{PM}:{PM+1}], 0']
    B+=exs[6:8]+[f'v_cvt_pk_bf16_f32 v{PX+i}, v{SX+2*i}, v{SX+2*i+1}' for i in range(4)]
    B+=wrd(5)
    B+=[f'v_mfma_f32_16x16x32_bf16 v[{LA}:{LA+3}], v[{ONES}:{ONES+3}], v[{PX}:{PX+3}], v[{LA}:{LA+3}]']
    B+=wrd(6)
    B+=[f'v_mfma_f32_16x16x32_bf16 v[{OA}:{OA+3}], v[{VC}:{VC+3}], v[{PX}:{PX+3}], v[{OA}:{OA+3}]', f's_cmp_eq_u32 s{sS}, 63',
        f'v_mfma_f32_16x16x32_bf16 v[{OA+4}:{OA+7}], v[{VC+4}:{VC+7}], v[{PX}:{PX+3}], v[{OA+4}:{OA+7}]', 's_cbranch_scc1 rec_fin',
        f'v_rcp_f32 v{LA}, v{LA}']
    z1=[f'v_mov_b64 v[{r}:{r+1}], 0' for r in list(range(72,80,2))+list(range(48,56,2))]
    B+=z1[0:5]
    B+=[f'v_cndmask_b32 v{OA+i}, v{OA+i}, v{OA+4+i}, s[{sODD}:{sODD+1}]' for i in range(4)]
    B+=[f'v_pk_mul_f32 v[{OA+i}:{OA+i+1}], v[{OA+i}:{OA+i+1}], v[{LA}:{LA+1}] op_sel_hi:[1,0]' for i in (0,2)]
    B+=[f'v_cvt_pk_bf16_f32 v{OA+4}, v{OA}, v{OA+1}', f'v_cvt_pk_bf16_f32 v{OA+5}, v{OA+2}, v{OA+3}', f'ds_write_b64 v{vOW}, v[{OA+4}:{OA+5}]']
    emit(B)
    emit(z1[5:8])
    emit(rot_m())
    a('s_waitcnt lgkmcnt(0)')
    a('s_barrier')
    OFR=56
    a(f'ds_read_b128 v[{OFR}:{OFR+3}], v{vL16} offset:{R_O}')
    a(f'ds_read_b128 v[{OFR+4}:{OFR+7}], v{vL16} offset:{R_O+1024}')
    emit(wrd(7))
    RA=124
    D=E('DP3',3) if w==3 else E('DP',1)
    RBs=[24,32,40][:D]
    vq=[]
    def rl(k):
        vq.extend([k,k])
        return [f'buffer_load_dwordx4 v[{RBs[k]+4*L}:{RBs[k]+4*L+3}], v{vL16}, {W}, s{sRG} offen offset:{L*1024} sc1' for L in range(2)]
    def epi(T_):
        r=WA[T_]; d=WA[T_&6]+(T_&1)
        return [f'v_add_f32 v{r}, v{r}, v{r+1}', f'v_add_f32 v{r+2}, v{r+2}, v{r+3}', f'v_cvt_pk_bf16_f32 v{d}, v{r}, v{r+2}']
    def pst(c):
        vq.append('s')
        return f'buffer_store_dwordx2 v[{WA[2*c]}:{WA[2*c]+1}], v{vPST}, {W}, s{sPa if c==0 else sPq+c} offen{sc}'
    nis=0
    pend=[]
    a('s_waitcnt lgkmcnt(3)')
    for i in range(16):
        T_,t2=i>>1,i&1
        b = wo_reg(i) if i<8 else WIN[i-8]
        a(f'v_smfmac_f32_16x16x64_bf16 v[{WA[T_]}:{WA[T_]+3}], v[{OFR+4*t2}:{OFR+4*t2+3}], v[{b}:{b+7}], v{vIDX}')
        if i==1: emit(stamp())
        if i in (7,11,15): a(pst((i-7)//4))
        if i==0: a('s_waitcnt lgkmcnt(2)')
        if i==12: a('s_waitcnt lgkmcnt(0)')
        if i>=3 and (i&1)==1: pend+=epi((i-3)//2)
        for _ in range(2 if i&1 else 1):
            if pend: a(pend.pop(0))
    emit(pend)
    if w==0 and E('RL0',0): emit(rl(0)); nis=1
    emit(epi(7))
    a(pst(3))
    emit(stamp())
    hk=zero_acc()+x_reads(0,4)
    RP=E('RP',60)
    gaps=[[E('HG0',0)],[E('HG1',12)],[E('HG2',20)],[12,4,4]][w]
    dls=[[E('R0',0)],[E('R1',0)],[E('R2',0)],[E('R3',60),RP-40,RP-40]][w]
    gi=0
    while nis<D:
        n=gaps[gi] if gi<len(gaps) else 0
        emit(hk[:n]); hk=hk[n:]
        delay(a,dls[gi] if gi<len(dls) else RP-16)
        emit(rl(nis)); nis+=1; gi+=1
    emit(hk)
    hsv=house_salu()
    def attempt(k, y, fail):
        RB=RBs[k]; c=chk(RB)
        a(f's_waitcnt vmcnt({y+1})')
        a(f'v_mfma_f32_16x16x32_bf16 v[{RA}:{RA+3}], v[{ONES}:{ONES+3}], v[{RB}:{RB+3}], 0')
        a(c[0])
        a(f's_waitcnt vmcnt({y})')
        a(f'v_mfma_f32_16x16x32_bf16 v[{RA}:{RA+3}], v[{ONES}:{ONES+3}], v[{RB+4}:{RB+7}], v[{RA}:{RA+3}]')
        emit(c[1:])
        a(fail)
    def younger(k):
        idx=[i for i,x in enumerate(vq) if x==k][-1]
        return len(vq)-1-idx
    attempt(0, younger(0), f's_cbranch_vccnz rec_go_{tag}' if SOLO else f's_cbranch_vccnz rec_f0_{tag}')
    a.label(f'rec_go_{tag}')
    for sh in (4,8):
        for r in (2,3): a(f'v_add_f32 v{RA+r}, v{RA+r}, v{RA+r} row_ror:{sh} row_mask:0xf bank_mask:0xf')
    a(f's_mov_b64 exec, s[{sPM}:{sPM+1}]')
    a(f'v_cvt_pk_bf16_f32 v{RA}, v{RA+2}, v{RA+3}')
    a(f'buffer_store_dword v{RA}, v{vMST}, {W}, s{sMa} offen{sc}')
    a('s_mov_b64 exec, -1')
    emit(stamp())
    emit(v_reads(w)); emit(hsv)
    delay(a,E(f'DG{w}',[150,100,60,0][w]))
    emit(gl(MF))
    if w==3:
        GPER=E('GPER',60)
        delay(a,GPER-16); emit(gl(GB)); delay(a,GPER-16); emit(gl(32))
    emit(stamp())
    if stamps:
        a('s_waitcnt lgkmcnt(0)')
        n=nst[0]
        for k in range(n):
            prev = f's{sACC+15}' if k==0 else f's{sTS+2*(k-1)}'
            a(f's_sub_u32 s{sU0}, s{sTS+2*k}, {prev}')
            a(f's_add_u32 s{sACC+k}, s{sACC+k}, s{sU0}')
        a(f's_mov_b32 s{sACC+15}, s{sTS+2*(n-1)}')
        a(f's_cmp_eq_u32 s{sS}, 9')
        for k in range(n): a(f's_cselect_b32 s{sACC+k}, 0, s{sACC+k}')
        a(f's_cselect_b32 s{sACC+14}, s{sSPIN}, s{sACC+14}')
    a(f's_branch rec_enter_{tag}')
    for k in range(D-1):
        a.label(f'rec_f{k}_{tag}')
        emit(rl(k))
        emit(spin(0x10000)[:1])
        attempt(k+1, younger(k+1), f's_cbranch_vccz rec_go_{tag}')
    if D==1: a.label(f'rec_f0_{tag}')
    a.label(f'rec_fl_{tag}')
    for k in range(D):
        emit(rl((k-1)%D))
        emit(spin(0x10000))
        a(f's_cbranch_scc1 rec_go_{tag}')
        attempt(k, 2*(D-1), f's_cbranch_vccz rec_go_{tag}')
    a(f's_branch rec_fl_{tag}')
```

```python
from common import *

def gen_prep(a):
    L='prep_kernel'
    kernel_head(a,L)
    a('s_cmp_ge_u32 s2, 96')
    a('s_cbranch_scc1 prep_done')
    a(f's_load_dwordx4 s[4:7], s[0:1], {KA["c"]}')
    a(f's_load_dwordx2 s[8:9], s[0:1], {KA["ws"]}')
    a('v_and_b32 v1, 3, v0')
    a('v_lshrrev_b32 v2, 2, v0')
    a('v_lshlrev_b32 v3, 4, v2')
    a('s_mov_b32 s24, 49152')
    a('v_mul_lo_u32 v8, v2, s24')
    a('s_lshl_b32 s25, s2, 6')
    a('v_lshl_add_u32 v8, v1, 4, v8')
    a('v_add_u32 v8, s25, v8')
    a('s_waitcnt lgkmcnt(0)')
    srd(a,12,4,1024); srd(a,16,6,512*3072*2); srd(a,20,8,WS_BYTES)
    a('buffer_load_dwordx4 v[4:7], v3, s[12:15], 0 offen')
    for i in range(8):
        a(f's_mov_b32 s{26+i}, {i*6144}')
    for i in range(8):
        a(f'buffer_load_dwordx4 v[{16+4*i}:{19+4*i}], v8, s[16:19], s{26+i} offen')
    a('s_cmp_ge_u32 s2, 16')
    a('s_cbranch_scc1 prep_noz')
    a('v_mov_b64 v[10:11], 0')
    a('v_mov_b64 v[12:13], 0')
    a('v_lshlrev_b32 v9, 4, v0')
    a('s_lshl_b32 s34, s2, 12')
    a(f'buffer_store_dwordx4 v[10:13], v9, s[20:23], s34 offen')
    a.label('prep_noz')
    a('s_waitcnt vmcnt(0)')
    for i in range(4):
        a(f'v_lshlrev_b32 v{48+2*i}, 16, v{4+i}')
        a(f'v_and_b32 v{49+2*i}, 0xffff0000, v{4+i}')
    for i in range(8):
        a(f'v_mul_f32 v{56+i}, 0xbfb8aa3b, v{48+i}')
    for i in range(8):
        a(f'v_exp_f32 v{56+i}, v{56+i}')
    for i in range(8):
        a(f'v_add_f32 v{56+i}, 1.0, v{56+i}')
    for i in range(8):
        a(f'v_rcp_f32 v{56+i}, v{56+i}')
    for i in range(8):
        a(f'v_mul_f32 v{48+i}, v{48+i}, v{56+i}')
    for i in range(4):
        round_bf16_pair(a,48+2*i,49+2*i,56)
    for i in range(8):
        for j in range(4):
            a(f'v_lshlrev_b32 v10, 16, v{16+4*i+j}')
            a(f'v_and_b32 v11, 0xffff0000, v{16+4*i+j}')
            if i==0:
                a(f'v_mul_f32 v{56+2*j}, v48, v10')
                a(f'v_mul_f32 v{57+2*j}, v48, v11')
            else:
                a(f'v_fmac_f32 v{56+2*j}, v{48+i}, v10')
                a(f'v_fmac_f32 v{57+2*j}, v{48+i}, v11')
    a('v_lshlrev_b32 v9, 5, v0')
    a('ds_write_b128 v9, v[56:59]')
    a('ds_write_b128 v9, v[60:63] offset:16')
    a('s_waitcnt lgkmcnt(0)')
    a('s_barrier')
    a('v_and_b32 v1, 31, v0')
    a('v_lshrrev_b32 v2, 5, v0')
    a('v_lshlrev_b32 v9, 10, v2')
    a('v_lshl_add_u32 v9, v1, 2, v9')
    for i in range(8):
        a(f'ds_read_b32 v{16+i}, v9 offset:{i*128}')
    a('s_waitcnt lgkmcnt(0)')
    for i in range(1,8):
        a(f'v_add_f32 v16, v16, v{16+i}')
    a('v_lshlrev_b32 v9, 2, v0')
    a('ds_write_b32 v9, v16 offset:8192')
    a('s_waitcnt lgkmcnt(0)')
    a('s_barrier')
    a('v_lshlrev_b32 v9, 2, v1')
    for i in range(8):
        a(f'ds_read_b32 v{16+i}, v9 offset:{8192+i*128}')
    a('s_waitcnt lgkmcnt(0)')
    for i in range(1,8):
        a(f'v_add_f32 v16, v16, v{16+i}')
    round_bf16(a,16,17)
    a('s_lshr_b32 s35, s2, 4')
    a('s_cmp_eq_u32 s35, 1')
    a('s_cbranch_scc1 prep_p1')
    a('s_cmp_eq_u32 s35, 4')
    a('s_cbranch_scc0 prep_st')
    a.label('prep_p1')
    a('v_add_f32 v16, 1.0, v16')
    round_bf16(a,16,17)
    a.label('prep_st')
    a('s_lshl_b32 s36, s2, 7')
    a(f's_add_u32 s36, s36, {MOD}')
    a('v_cmp_gt_u32 vcc, 32, v0')
    a('s_and_saveexec_b64 s[38:39], vcc')
    a('s_cbranch_execz prep_done')
    a('buffer_store_dword v16, v9, s[20:23], s36 offen')
    a.label('prep_done')
    a('s_endpgm')
    return (L, (96,1,1), (256,1,1), 9216, kernel_desc(L,64,48,64))

def gen_ln(a, L, src_is_x, sec_shift, sec_scale, dst):
    kernel_head(a,L)
    a('s_cmp_ge_u32 s2, 128')
    a(f's_cbranch_scc1 {L}_done')
    a(f's_load_dwordx2 s[4:5], s[0:1], {KA["x"]}')
    a(f's_load_dwordx2 s[8:9], s[0:1], {KA["ws"]}')
    a('v_and_b32 v1, 15, v0')
    a('v_bfe_u32 v2, v0, 4, 2')
    a('v_lshrrev_b32 v3, 6, v0')
    a('v_lshlrev_b32 v4, 10, v1')
    a('v_lshl_add_u32 v4, v3, 8, v4')
    a('v_lshl_add_u32 v4, v2, 4, v4')
    a('s_lshl_b32 s10, s2, 14')
    a('v_lshlrev_b32 v5, 9, v3')
    a('v_lshl_add_u32 v5, v2, 5, v5')
    a('s_waitcnt lgkmcnt(0)')
    srd(a,12,4,2048*1024); srd(a,20,8,WS_BYTES)
    if src_is_x:
        for k in range(4):
            a(f'buffer_load_dwordx4 v[{16+4*k}:{19+4*k}], v4, s[12:15], s10 offen offset:{k*64}')
    else:
        a(f's_add_u32 s10, s10, {X1}')
        for k in range(4):
            a(f'buffer_load_dwordx4 v[{16+4*k}:{19+4*k}], v4, s[20:23], s10 offen offset:{k*64}')
    a(f's_mov_b32 s24, {MOD+sec_scale*2048}')
    a(f's_mov_b32 s25, {MOD+sec_shift*2048}')
    for k in range(4):
        for hf in range(2):
            a(f'buffer_load_dwordx4 v[{64+8*k+4*hf}:{67+8*k+4*hf}], v5, s[20:23], s24 offen offset:{k*128+hf*16}')
            a(f'buffer_load_dwordx4 v[{96+8*k+4*hf}:{99+8*k+4*hf}], v5, s[20:23], s25 offen offset:{k*128+hf*16}')
    a('s_waitcnt vmcnt(16)')
    for j in range(16):
        a(f'v_lshlrev_b32 v{32+2*j}, 16, v{16+j}')
        a(f'v_and_b32 v{33+2*j}, 0xffff0000, v{16+j}')
    a('v_add_f32 v6, v32, v33')
    a('v_add_f32 v7, v34, v35')
    for j in range(4,32,2):
        a(f'v_add_f32 v6, v6, v{32+j}')
        a(f'v_add_f32 v7, v7, v{33+j}')
    a('v_add_f32 v6, v6, v7')
    xlane_reduce(a,'v_add_f32',6,7)
    a('v_lshlrev_b32 v8, 2, v1')
    a('v_lshl_add_u32 v9, v3, 6, v8')
    a('ds_write_b32 v9, v6')
    a('s_waitcnt lgkmcnt(0)')
    a('s_barrier')
    for k in range(4): a(f'ds_read_b32 v{10+k}, v8 offset:{k*64}')
    a('s_waitcnt lgkmcnt(0)')
    a('v_add_f32 v10, v10, v11')
    a('v_add_f32 v12, v12, v13')
    a('v_add_f32 v10, v10, v12')
    a('v_mul_f32 v10, 0x3b000000, v10')
    a('v_sub_f32 v11, v32, v10')
    a('v_mul_f32 v6, v11, v11')
    a('v_sub_f32 v12, v33, v10')
    a('v_mul_f32 v7, v12, v12')
    for j in range(2,32,2):
        a(f'v_sub_f32 v11, v{32+j}, v10')
        a(f'v_sub_f32 v12, v{33+j}, v10')
        a('v_fmac_f32 v6, v11, v11')
        a('v_fmac_f32 v7, v12, v12')
    a('v_add_f32 v6, v6, v7')
    xlane_reduce(a,'v_add_f32',6,7)
    a('ds_write_b32 v9, v6 offset:256')
    a('s_waitcnt lgkmcnt(0)')
    a('s_barrier')
    for k in range(4): a(f'ds_read_b32 v{11+k}, v8 offset:{256+k*64}')
    a('s_waitcnt lgkmcnt(0)')
    a('v_add_f32 v11, v11, v12')
    a('v_add_f32 v13, v13, v14')
    a('v_add_f32 v11, v11, v13')
    a('v_mul_f32 v11, 0x3b000000, v11')
    round_bf16_pair(a,10,11,12)
    a('v_add_f32 v11, 0x3727c5ac, v11')
    round_bf16(a,11,12)
    a('v_sqrt_f32 v11, v11')
    round_bf16(a,11,12)
    a('v_rcp_f32 v11, v11')
    a('s_waitcnt vmcnt(0)')
    perm=[0,2,1,3]
    for k in range(4):
        for j in range(4):
            e0=32+8*k+2*j; e1=e0+1
            a(f'v_sub_f32 v{e0}, v{e0}, v10')
            a(f'v_sub_f32 v{e1}, v{e1}, v10')
            round_bf16_pair(a,e0,e1,12)
            a(f'v_mul_f32 v{e0}, v{e0}, v11')
            a(f'v_mul_f32 v{e1}, v{e1}, v11')
            round_bf16_pair(a,e0,e1,12)
            a(f'v_mul_f32 v{e0}, v{e0}, v{e0+32}')
            a(f'v_mul_f32 v{e1}, v{e1}, v{e1+32}')
            round_bf16_pair(a,e0,e1,12)
            a(f'v_add_f32 v{e0}, v{e0}, v{e0+64}')
            a(f'v_add_f32 v{e1}, v{e1}, v{e1+64}')
            a(f'v_cvt_pk_bf16_f32 v{16+4*k+perm[j]}, v{e0}, v{e1}')
    a('v_and_b32 v4, 63, v0')
    a('v_lshlrev_b32 v4, 4, v4')
    a('v_lshl_add_u32 v4, v3, 12, v4')
    a('s_lshl_b32 s10, s2, 14')
    a(f's_add_u32 s10, s10, {dst}')
    for k in range(4):
        a(f'v_permlane16_swap_b32 v{16+4*k}, v{17+4*k}')
        a(f'v_permlane16_swap_b32 v{18+4*k}, v{19+4*k}')
        a(f'buffer_store_dwordx4 v[{16+4*k}:{19+4*k}], v4, s[20:23], s10 offen offset:{k*1024}')
    a.label(f'{L}_done')
    a('s_endpgm')
    return (L, (128,1,1), (256,1,1), 512, kernel_desc(L,128,48,128))
```

```python
from common import *
import os
def srd4(b): return f's[{b}:{b+3}]'

tWS=24; tB=28; tRES=32; tOUT=36; tW=40; tCS=41; tU=42; tT0=43; tT1=44; tT2=45; tLB=46; tUS=47; tUE=48

def ksplit_body(a, L, NK, brow_stride, a_base, a_rt_stride, gate_sec, res_off, out_off, sc_in='', sc_out='', wait=None, post=None):
    WB=0
    a('v_lshlrev_b32 v2, 4, v0')
    a('v_lshrrev_b32 v3, 2, v0')
    a(f's_mov_b32 s{tT0}, {brow_stride}')
    a(f'v_mul_lo_u32 v1, v3, s{tT0}')
    a('v_and_b32 v3, 3, v0')
    a('v_lshl_add_u32 v1, v3, 4, v1')
    a(f's_lshl_b32 s{tT0}, s{tCS}, 6')
    a(f'v_add_u32 v1, s{tT0}, v1')
    a(f's_lshl_b32 s{tLB}, s{tW}, 15')
    a('v_lshrrev_b32 v3, 2, v0')
    a('v_lshlrev_b32 v4, 6, v3')
    a('v_and_b32 v3, 3, v0')
    a('v_lshl_add_u32 v4, v3, 3, v4')
    a(f'v_add_u32 v4, s{tLB}, v4')
    a(f's_mul_i32 s{tT2}, s{tW}, {NK*32*brow_stride}')
    def issue(kk):
        for i in range(2):
            a(f's_add_u32 m0, s{tLB}, {(kk%16)*2048+i*1024}')
            a(f's_add_u32 s{tT0}, s{tT2}, {(kk*32+i*16)*brow_stride}')
            a(f'buffer_load_dwordx4 v1, {srd4(tB)}, s{tT0} offen lds')
    n0=min(16,NK)
    for kk in range(n0): issue(kk)
    out=2*n0
    for k0 in range(0,NK,2):
        a(f's_waitcnt vmcnt({out-4})'); out-=4
        for kk in (k0,k0+1):
            for tau in range(2):
                for i in range(2):
                    r=WB+(kk*2+tau)*4+2*i
                    a(f'ds_read_b64_tr_b16 a[{r}:{r+1}], v4 offset:{(kk%16)*2048+i*1024+tau*32}')
        if k0+16<NK:
            a('s_waitcnt lgkmcnt(0)')
            issue(k0+16); issue(k0+17); out+=4
    a('v_and_b32 v5, 15, v0')
    a('v_lshrrev_b32 v6, 4, v0')
    a('v_lshlrev_b32 v7, 10, v5')
    a('v_lshl_add_u32 v7, v6, 3, v7')
    a(f's_lshl_b32 s{tT0}, s{tCS}, 6')
    a(f's_and_b32 s{tT1}, s{tW}, 1')
    a(f's_lshl_b32 s{tT1}, s{tT1}, 5')
    a(f's_add_u32 s{tT0}, s{tT0}, s{tT1}')
    a(f'v_add_u32 v7, s{tT0}, v7')
    a('v_lshlrev_b32 v8, 4, v6')
    a(f's_lshl_b32 s{tT0}, s{tT0}, 1')
    a(f's_add_u32 s{tT0}, s{tT0}, {MOD+gate_sec*2048}')
    a(f'buffer_load_dwordx4 v[12:15], v8, {srd4(tWS)}, s{tT0} offen')
    RED=0x20000
    a(f's_lshl_b32 s{tT0}, s{tW}, 11')
    a(f's_add_u32 s{tT0}, s{tT0}, {RED}')
    a(f'v_add_u32 v9, s{tT0}, v2')
    a(f's_lshl_b32 s{tT0}, s{tT1}, 5')
    a(f's_add_u32 s{tT0}, s{tT0}, {RED}')
    a(f'v_add_u32 v10, s{tT0}, v2')
    a('s_waitcnt vmcnt(0) lgkmcnt(0)')
    AF=32; ACC=16
    a.label(f'{L}_loop')
    a(f's_cmp_ge_u32 s{tU}, s{tUE}')
    a(f's_cbranch_scc1 {L}_end')
    if wait: wait(a)
    a(f's_mul_i32 s{tT0}, s{tU}, {a_rt_stride}')
    a(f's_mul_i32 s{tT1}, s{tW}, {NK*1024}')
    a(f's_add_u32 s{tT0}, s{tT0}, s{tT1}')
    a(f's_add_u32 s{tT0}, s{tT0}, {a_base}')
    for kk in range(NK):
        if kk and kk%4==0: a(f's_add_u32 s{tT0}, s{tT0}, 4096')
        a(f'buffer_load_dwordx4 v[{AF+4*kk}:{AF+4*kk+3}], v2, {srd4(tWS)}, s{tT0} offen offset:{(kk%4)*1024}{sc_in}')
    a(f's_lshl_b32 s{tT2}, s{tU}, 14')
    a(f's_add_u32 s{tT1}, s{tT2}, {res_off}')
    a(f'buffer_load_dwordx2 v[24:25], v7, {srd4(tRES)}, s{tT1} offen{sc_in}')
    for kk in range(NK):
        a(f's_waitcnt vmcnt({NK-kk})')
        for tau in range(2):
            r=WB+(kk*2+tau)*4; acc=ACC+4*tau
            c='0' if kk==0 else f'v[{acc}:{acc+3}]'
            a(f'v_mfma_f32_16x16x32_bf16 v[{acc}:{acc+3}], a[{r}:{r+3}], v[{AF+4*kk}:{AF+4*kk+3}], {c}')
    a(f'ds_write_b128 v9, v[{ACC}:{ACC+3}]')
    a(f'ds_write_b128 v9, v[{ACC+4}:{ACC+7}] offset:1024')
    a('s_waitcnt lgkmcnt(0)')
    a('s_barrier')
    for w in range(4): a(f'ds_read_b128 v[{AF+4*w}:{AF+4*w+3}], v10 offset:{w*2048}')
    a('s_waitcnt lgkmcnt(0) vmcnt(0)')
    a('s_barrier')
    a(f's_cmp_ge_u32 s{tW}, 2')
    a(f's_cbranch_scc1 {L}_next')
    for r in range(4):
        a(f'v_add_f32 v{AF+r}, v{AF+r}, v{AF+4+r}')
        a(f'v_add_f32 v{AF+8+r}, v{AF+8+r}, v{AF+12+r}')
    for r in range(4): a(f'v_add_f32 v{AF+r}, v{AF+r}, v{AF+8+r}')
    round_bf16_pair(a,AF,AF+1,26); round_bf16_pair(a,AF+2,AF+3,26)
    for r in range(4): a(f'v_mul_f32 v{AF+r}, v{AF+r}, v{12+r}')
    round_bf16_pair(a,AF,AF+1,26); round_bf16_pair(a,AF+2,AF+3,26)
    a('v_lshlrev_b32 v26, 16, v24'); a('v_and_b32 v27, 0xffff0000, v24')
    a('v_lshlrev_b32 v28, 16, v25'); a('v_and_b32 v29, 0xffff0000, v25')
    for r in range(4): a(f'v_add_f32 v{AF+r}, v{AF+r}, v{26+r}')
    a(f'v_cvt_pk_bf16_f32 v24, v{AF}, v{AF+1}')
    a(f'v_cvt_pk_bf16_f32 v25, v{AF+2}, v{AF+3}')
    a(f's_add_u32 s{tT1}, s{tT2}, {out_off}')
    a(f'buffer_store_dwordx2 v[24:25], v7, {srd4(tOUT)}, s{tT1} offen{sc_out}')
    a.label(f'{L}_next')
    if post: post(a)
    a(f's_add_u32 s{tU}, s{tU}, s{tUS}')
    a(f's_branch {L}_loop')
    a.label(f'{L}_end')

def gen_ksplit_kernel(a, L, which):
    kernel_head(a,L)
    a('s_cmp_ge_u32 s2, 256')
    a(f's_cbranch_scc1 {L}_done')
    a(f's_load_dwordx2 s[4:5], s[0:1], {KA["Wo" if which=="wo" else "wd"]}')
    a(f's_load_dwordx2 s[6:7], s[0:1], {KA["x"]}')
    a(f's_load_dwordx2 s[8:9], s[0:1], {KA["ws"]}')
    a(f's_load_dwordx2 s[10:11], s[0:1], {KA["out"]}')
    a('v_lshrrev_b32 v1, 6, v0')
    a(f'v_readfirstlane_b32 s{tW}, v1')
    a('v_and_b32 v0, 63, v0')
    a(f's_lshr_b32 s{tCS}, s2, 4')
    a(f's_and_b32 s{tU}, s2, 15')
    a(f's_mov_b32 s{tUS}, 16')
    a(f's_mov_b32 s{tUE}, 128')
    a('s_waitcnt lgkmcnt(0)')
    srd(a,tWS,8,WS_BYTES)
    if which=='wo':
        srd(a,tB,4,4<<20); srd(a,tRES,6,2<<20); srd(a,tOUT,8,WS_BYTES)
        ksplit_body(a,L,32,1024,OF,131072,2,0,X1)
    else:
        srd(a,tB,4,1792*1024); srd(a,tRES,8,WS_BYTES); srd(a,tOUT,10,2<<20)
        ksplit_body(a,L,14,1024,HH,56*1024,5,X1,0)
    a.label(f'{L}_done')
    a('s_endpgm')
    return (L,(256,1,1),(256,1,1),0x22000,kernel_desc(L,512,64,256))

def gen_up_kernel(a):
    L='up_kernel'
    kernel_head(a,L)
    a('s_cmp_ge_u32 s2, 252')
    a(f's_cbranch_scc1 {L}_done')
    a(f's_load_dwordx4 s[4:7], s[0:1], {KA["wg"]}')
    a(f's_load_dwordx2 s[8:9], s[0:1], {KA["ws"]}')
    a('v_lshrrev_b32 v1, 6, v0')
    a(f'v_readfirstlane_b32 s{tW}, v1')
    a('v_and_b32 v0, 63, v0')
    a(f's_mul_i32 s{tCS}, s2, 3641')
    a(f's_lshr_b32 s{tCS}, s{tCS}, 16')
    a(f's_mul_i32 s{tT0}, s{tCS}, 18')
    a(f's_sub_u32 s{tU}, s2, s{tT0}')
    a('s_waitcnt lgkmcnt(0)')
    srd(a,tWS,8,WS_BYTES); srd(a,tB,4,512*3584); srd(a,tRES,6,512*3584)
    RS=3584
    a('v_lshlrev_b32 v8, 4, v0')
    a(f's_lshl_b32 s{tLB}, s{tW}, 15')
    a('v_bfe_u32 v2, v0, 2, 1'); a('v_bfe_u32 v3, v0, 4, 1'); a('v_lshl_add_u32 v2, v3, 1, v2')
    a('v_bfe_u32 v3, v0, 3, 1'); a('v_lshl_add_u32 v2, v3, 2, v2')
    a('v_bfe_u32 v3, v0, 5, 1'); a('v_lshl_add_u32 v2, v3, 3, v2')
    a(f'v_mul_u32_u24 v1, {RS}, v2')
    a('v_lshlrev_b32 v3, 1, v3'); a('v_xor_b32 v3, v3, v0'); a('v_and_b32 v3, 3, v3')
    a('v_lshl_add_u32 v1, v3, 4, v1')
    a(f's_lshl_b32 s{tT0}, s{tCS}, 8'); a(f's_lshl_b32 s{tT1}, s{tW}, 6'); a(f's_add_u32 s{tT0}, s{tT0}, s{tT1}')
    a(f'v_add_u32 v1, s{tT0}, v1')
    a('v_bfe_u32 v2, v0, 5, 1'); a('v_lshlrev_b32 v4, 10, v2')
    a('v_bfe_u32 v2, v0, 3, 1'); a('v_mul_u32_u24 v2, 544, v2'); a('v_add_u32 v4, v4, v2')
    a('v_bfe_u32 v2, v0, 4, 1'); a('v_lshl_add_u32 v4, v2, 7, v4')
    a('v_bfe_u32 v2, v0, 2, 1'); a('v_lshl_add_u32 v4, v2, 6, v4')
    a('v_and_b32 v2, 3, v0'); a('v_lshl_add_u32 v4, v2, 3, v4')
    a(f'v_add_u32 v4, s{tLB}, v4'); a('v_xor_b32 v5, 32, v4')
    def issue(u):
        X,j=u>>3,u&7
        for i in range(4):
            a(f's_add_u32 m0, s{tLB}, {j*4096+i*1024}')
            a(f's_mov_b32 s{tT0}, {(j*64+i*16)*RS}')
            a(f'buffer_load_dwordx4 v1, {srd4([tB,tRES][X])}, s{tT0} offen lds')
    for u in range(8): issue(u)
    out=32
    for u in range(16):
        X,j=u>>3,u&7
        a(f's_waitcnt vmcnt({out-4})'); out-=4
        for tau in range(2):
            b=X*128+(tau*8+j)*8
            for hh in range(2):
                for y in range(2):
                    a(f'ds_read_b64_tr_b16 a[{b+4*hh+2*y}:{b+4*hh+2*y+1}], v{4+tau} offset:{j*4096+hh*2048+y*256}')
        a('s_waitcnt lgkmcnt(0)')
        if u+8<16: issue(u+8); out+=4
    AF=32; ACC=16
    a.label(f'{L}_loop')
    a(f's_lshl_b32 s{tT0}, s{tU}, 14')
    a(f's_add_u32 s{tT0}, s{tT0}, {H2F}')
    for kap in range(16):
        if kap and kap%4==0: a(f's_add_u32 s{tT0}, s{tT0}, 4096')
        a(f'buffer_load_dwordx4 v[{AF+4*kap}:{AF+4*kap+3}], v8, {srd4(tWS)}, s{tT0} offen offset:{(kap%4)*1024}')
    for kap in range(16):
        a(f's_waitcnt vmcnt({15-kap})')
        t,hh=kap>>1,kap&1
        for X in range(2):
            for tau in range(2):
                b=X*128+(tau*8+t)*8+4*hh; acc=ACC+(X*2+tau)*4
                c='0' if kap==0 else f'v[{acc}:{acc+3}]'
                a(f'v_mfma_f32_16x16x32_bf16 v[{acc}:{acc+3}], a[{b}:{b+3}], v[{AF+4*kap}:{AF+4*kap+3}], {c}')
    for r in range(0,16,2): round_bf16_pair(a,ACC+r,ACC+r+1,10)
    for r in range(8): a(f'v_mul_f32 v{ACC+r}, v{ACC+r}, v{ACC+8+r}')
    for r in range(4): a(f'v_cvt_pk_bf16_f32 v{12+r}, v{ACC+2*r}, v{ACC+2*r+1}')
    a(f's_mul_i32 s{tT0}, s{tU}, {56*1024}')
    a(f's_lshl_b32 s{tT1}, s{tCS}, 12'); a(f's_add_u32 s{tT0}, s{tT0}, s{tT1}')
    a(f's_lshl_b32 s{tT1}, s{tW}, 10'); a(f's_add_u32 s{tT0}, s{tT0}, s{tT1}')
    a(f's_add_u32 s{tT0}, s{tT0}, {HH}')
    a(f'buffer_store_dwordx4 v[12:15], v8, {srd4(tWS)}, s{tT0} offen')
    a(f's_add_u32 s{tU}, s{tU}, 18')
    a(f's_cmp_lt_u32 s{tU}, 128')
    a(f's_cbranch_scc1 {L}_loop')
    a.label(f'{L}_done')
    a('s_endpgm')
    return (L,(252,1,1),(256,1,1),0x20000,kernel_desc(L,512,64,256))

def gen_all(a):
    import k_small
    return [gen_ksplit_kernel(a,'wo_kernel','wo'), k_small.gen_ln(a,'ln2_kernel',False,3,4,H2F), gen_up_kernel(a), gen_ksplit_kernel(a,'dn_kernel','dn')]
```

```python
import sys
from common import *
import k_small, k_main, k_rec

HEADER=open('cdna_kernels/'+NAME+'.s.ref').read().split('; Override launch')[0]

def build(out, plan, stamps=False):
    a=Asm()
    K={}
    def reg(t): K[t[0]]=t
    reg(k_small.gen_prep(a))
    reg(k_small.gen_ln(a,'ln1_kernel',True,0,1,H1F))
    for lab,mode in (('main_kernel',7),('mainA_kernel',1),('mainB_kernel',2),('mainC_kernel',4),('mainAB_kernel',3)):
        if lab in plan:
            k_main.gen_entry(a,lab,mode)
            reg((lab,(256,1,1),(256,1,1),163840,kernel_desc(lab,512,102,256)))
    k_main.gen_common(a)
    k_rec.gen_rec(a,stamps)
    k_main.gen_worker(a)
    try:
        import k_tail
        for t in k_tail.gen_all(a): reg(t)
    except ImportError:
        pass
    body=a.finalize(verbose=True)
    txt=HEADER
    for p in plan:
        l,g,b,lds,_=K[p]
        txt+=f'; @launch kernel={l} grid=({g[0]},{g[1]},{g[2]}) block=({b[0]},{b[1]},{b[2]}) lds={lds}\n'
    txt+='.amdgcn_target "amdgcn-amd-amdhsa--gfx950"\n.text\n'+body
    txt+='.section .rodata,"a"\n'
    for p in K: txt+=K[p][4]
    open(out,'w').write(txt)

if __name__=='__main__':
    out=sys.argv[1]; plan=sys.argv[2].split(','); stamps=len(sys.argv)>3 and sys.argv[3]=='stamps'
    build(out,plan,stamps)
```

```python
from asmlib import *

NAME='adaLN_cond__memory_aug_recurrent_mem_tr__glu_gated_bilinear__prompt'
KA=dict(x=0,mem0=8,Wq=16,Wk=24,Wv=32,Wo=40,seg=48,Bx=56,wg=64,wu=72,wd=80,c=88,wmod=96,out=104,dbg=112,ws=120)
WS_BYTES=268435456
FLAGS=0x700000; KVFLAG=FLAGS; RECFLAG=FLAGS+0x2000
MOD=0x10000
MRING=0x20000
PRING=0x40000
H1F=0x100000
X1=0x300000
H2F=0x500000
HH=0x800000
QF=0x1000000
KF=0x2000000
VF=0x3000000
OF=0x4000000
KM=0x5000000
VM=0x5800000

def srd(a, d, ptr, nbytes):
    a(f's_mov_b32 s{d}, s{ptr}')
    a(f's_and_b32 s{d+1}, s{ptr+1}, 0xffff')
    a(f's_mov_b32 s{d+2}, {nbytes}')
    a(f's_mov_b32 s{d+3}, 0x00020000')

def kernel_head(a, label):
    a('.p2align 8')
    a(f'.globl {label}')
    a(f'.type {label},@function')
    a.label(label)

def kernel_desc(label, vgpr, sgpr, accum):
    return f'''.p2align 6
.amdhsa_kernel {label}
  .amdhsa_next_free_vgpr {vgpr}
  .amdhsa_next_free_sgpr {sgpr}
  .amdhsa_accum_offset {accum}
  .amdhsa_group_segment_fixed_size 0
  .amdhsa_kernarg_size 128
  .amdhsa_user_sgpr_count 2
  .amdhsa_user_sgpr_kernarg_segment_ptr 1
  .amdhsa_system_sgpr_workgroup_id_x 1
  .amdhsa_float_denorm_mode_32 3
.end_amdhsa_kernel
'''

def round_bf16(a, r, tmp):
    a(f'v_cvt_pk_bf16_f32 v{tmp}, v{r}, v{r}')
    a(f'v_lshlrev_b32 v{r}, 16, v{tmp}')

def round_bf16_pair(a, r0, r1, tmp):
    a(f'v_cvt_pk_bf16_f32 v{tmp}, v{r0}, v{r1}')
    a(f'v_lshlrev_b32 v{r0}, 16, v{tmp}')
    a(f'v_and_b32 v{r1}, 0xffff0000, v{tmp}')

def xlane_reduce(a, op, r, t):
    a(f'v_mov_b32 v{t}, v{r}')
    a(f'v_permlane16_swap_b32 v{t}, v{r}')
    a(f'{op} v{r}, v{t}, v{r}')
    a(f'v_mov_b32 v{t}, v{r}')
    a(f'v_permlane32_swap_b32 v{t}, v{r}')
    a(f'{op} v{r}, v{t}, v{r}')

import os as _os
RT=int(_os.environ.get('RT','0'))
def rtstamp(a, idx, role_s=53, wave_s=54, ws=24, vt=127, idx_s=None):
    if not RT: return
    l=a.newlabel('rt')
    a(f's_cmp_lg_u32 s{wave_s}, 0')
    a(f's_cbranch_scc1 {l}')
    a('s_memrealtime s[4:5]')
    a(f's_lshl_b32 s6, s{role_s}, 8')
    a(f's_add_u32 s6, s6, {0x6200000+idx*4}')
    if idx_s is not None:
        a(f's_lshl_b32 s7, s{idx_s}, 2'); a('s_add_u32 s6, s6, s7')
    a('s_waitcnt lgkmcnt(0)')
    a(f'v_mov_b32 v{vt}, s4')
    a('s_mov_b64 exec, 1')
    a(f'buffer_store_dword v{vt}, off, s[{ws}:{ws+3}], s6')
    a('s_mov_b64 exec, -1')
    a('s_waitcnt vmcnt(0)')
    a.label(l)
```

```python
from common import *
import os

sWS=24; sDBG=28; sWQ=32; sWK=36; sWV=40; sWO=44; sM0=48
sMODE=52; sROLE=53; sW=54; sH=55; sSLOT=56; sXCC=57; sLB=58; sT0=59; sT1=60; sT2=61; sT3=62
sKT=64
L_M=0x0; L_K=0x2000; L_V=0x4000; L_QK=0x6000; L_SEL=0x7400; L_WO=0x8000
QK_RS=544
SPIN_MAX=1<<22

def srd4(b): return f's[{b}:{b+3}]'

def interleave(a, main, side, start=0, per=1):
    side=list(side)
    for k,m in enumerate(main):
        a(m)
        if k>=start:
            for _ in range(per):
                if side: a(side.pop(0))
    for s_ in side: a(s_)


def wreg(X, tau, j):
    off=(tau*8+j)*8
    return ('a',X*128+off) if X<2 else ('v',128+off)

def gen_common(a, label):
    kernel_head(a,label)
    a('s_cmp_ge_u32 s2, 256')
    a('s_cbranch_scc1 main_done')
    a(f's_load_dwordx8 s[8:15], s[0:1], {KA["mem0"]}')
    a(f's_load_dwordx2 s[16:17], s[0:1], {KA["Wo"]}')
    a(f's_load_dwordx4 s[20:23], s[0:1], {KA["dbg"]}')
    a(f's_getreg_b32 s{sXCC}, hwreg(HW_REG_XCC_ID)')
    a(f's_and_b32 s{sXCC}, s{sXCC}, 7')
    a('v_lshrrev_b32 v1, 6, v0')
    a(f'v_readfirstlane_b32 s{sW}, v1')
    a('v_and_b32 v0, 63, v0')
    a('s_waitcnt lgkmcnt(0)')
    srd(a,sWS,22,WS_BYTES); srd(a,sDBG,20,256)
    srd(a,sWQ,10,4<<20); srd(a,sWK,12,4<<20); srd(a,sWV,14,4<<20); srd(a,sWO,16,4<<20); srd(a,sM0,8,8192)
    a(f's_cmp_lg_u32 s{sW}, 0')
    a('s_cbranch_scc1 role_wait')
    a(f's_mov_b32 s{sT0}, s{sXCC}')
    a(f's_mov_b32 s{sT2}, 0')
    a('s_mov_b64 exec, 1')
    a.label('role_loop')
    a('v_mov_b32 v1, 1')
    a(f's_lshl_b32 s{sT1}, s{sT0}, 2')
    a(f'buffer_atomic_add v1, off, {srd4(sDBG)}, s{sT1} sc0')
    a('s_waitcnt vmcnt(0)')
    a(f'v_readfirstlane_b32 s{sT1}, v1')
    a(f's_cmp_lt_u32 s{sT1}, 32')
    a('s_cbranch_scc1 role_got')
    a(f's_add_u32 s{sT0}, s{sT0}, 1')
    a(f's_and_b32 s{sT0}, s{sT0}, 7')
    a(f's_add_u32 s{sT2}, s{sT2}, 1')
    a(f's_cmp_lt_u32 s{sT2}, 8')
    a('s_cbranch_scc1 role_loop')
    a(f's_mov_b32 s{sT0}, 8')
    a(f's_mov_b32 s{sT1}, 0')
    a.label('role_got')
    a(f's_lshl_b32 s{sT0}, s{sT0}, 5')
    a(f's_add_u32 s{sT0}, s{sT0}, s{sT1}')
    a(f'v_mov_b32 v1, s{sT0}')
    a('v_mov_b32 v2, 0')
    a('ds_write_b32 v2, v1')
    a('s_mov_b64 exec, -1')
    a('s_waitcnt lgkmcnt(0)')
    a.label('role_wait')
    a('s_barrier')
    a('v_mov_b32 v2, 0')
    a('ds_read_b32 v1, v2')
    a('s_waitcnt lgkmcnt(0)')
    a(f'v_readfirstlane_b32 s{sROLE}, v1')
    a('s_barrier')
    a(f's_cmp_ge_u32 s{sROLE}, 256')
    a('s_cbranch_scc1 main_done')
    a(f's_lshl_b32 s{sLB}, s{sW}, 15')
    a(f's_add_u32 s{sLB}, s{sLB}, {L_WO}')
    a(f's_cmp_lt_u32 s{sROLE}, 32')
    a('s_cbranch_scc1 rec_start')
    a('s_branch work_start')

def gen_loader(a, tag, rot_is_wave):
    for j in range(8):
        if rot_is_wave:
            a(f's_lshl_b32 s{sT0}, s{sW}, 1')
            a(f's_add_u32 s{sT0}, s{sT0}, {j}')
            a(f's_and_b32 s{sT0}, s{sT0}, 7')
            a(f's_lshl_b32 s{sKT+j}, s{sT0}, 19')
        else:
            a(f's_mov_b32 s{sKT+j}, {j<<19}')
    a('v_bfe_u32 v2, v0, 2, 1')
    a('v_bfe_u32 v3, v0, 4, 1')
    a('v_lshl_add_u32 v2, v3, 1, v2')
    a('v_bfe_u32 v3, v0, 3, 1')
    a('v_lshl_add_u32 v2, v3, 2, v2')
    a('v_bfe_u32 v3, v0, 5, 1')
    a('v_lshl_add_u32 v2, v3, 3, v2')
    a('v_lshlrev_b32 v1, 13, v2')
    a('v_lshlrev_b32 v3, 1, v3')
    a('v_xor_b32 v3, v3, v0')
    a('v_and_b32 v3, 3, v3')
    a('v_lshl_add_u32 v1, v3, 4, v1')
    a(f's_lshl_b32 s{sT0}, s{sH}, 8')
    a(f's_lshl_b32 s{sT1}, s{sW}, 6')
    a(f's_add_u32 s{sT0}, s{sT0}, s{sT1}')
    a(f'v_add_u32 v1, s{sT0}, v1')
    a('v_bfe_u32 v2, v0, 5, 1')
    a('v_lshlrev_b32 v4, 10, v2')
    a('v_bfe_u32 v2, v0, 3, 1')
    a('v_mul_u32_u24 v2, 544, v2')
    a('v_add_u32 v4, v4, v2')
    a('v_bfe_u32 v2, v0, 4, 1')
    a('v_lshl_add_u32 v4, v2, 7, v4')
    a('v_bfe_u32 v2, v0, 2, 1')
    a('v_lshl_add_u32 v4, v2, 6, v4')
    a('v_and_b32 v2, 3, v0')
    a('v_lshl_add_u32 v4, v2, 3, v4')
    a(f'v_add_u32 v4, s{sLB}, v4')
    a('v_xor_b32 v5, 32, v4')
    srds=[sWQ,sWK,sWV]
    def issue(u):
        X,j=u>>3,u&7
        for i in range(4):
            a(f's_add_u32 m0, s{sLB}, {j*4096+i*1024}')
            a(f's_add_u32 s{sT0}, s{sKT+j}, {i*131072}')
            a(f'buffer_load_dwordx4 v1, {srd4(srds[X])}, s{sT0} offen lds')
    def consume(u):
        X,j=u>>3,u&7
        for tau in range(2):
            k,b=wreg(X,tau,j)
            for hh in range(2):
                for y in range(2):
                    a(f'ds_read_b64_tr_b16 {k}[{b+4*hh+2*y}:{b+4*hh+2*y+1}], v{4+tau} offset:{j*4096+hh*2048+y*256}')
    return issue, consume
```

```python
from common import *
from k_main import *
import os
E=lambda k,d: int(os.environ.get(k,str(d)))

R_K=0x0
R_V=0x4000
R_M=0x6000
R_QK=0x6000
R_O=0x7200
vT=0; vIDX=1; vL16=2; vQKW=3; vQR=4; vKR=5; vOW=6; vWO=7; vPST=8; vMST=9; NEG1=10; PM=14
MF=16; QA=48; KA_=56; VA=64; VC=72; ONES=80; VM0=84; VM1=86; KX=88
QFR=[16,20,120,124]
sS=72; sMa=73; sMb=74; sMc=75; sPa=76; sPb=77; sPc=78; sMa2=79; sKVM=80; sODD=82; sSPIN=84; sKB=85; sC=86
sU0=88; sU1=89; sKO=90; sVO=91; sFV=93; sHW=94; sRO=95
sPUB=96; sPR=97; sRG=98; sRG2=99; sHA=92; sHI=70; sFLA=100; sH13=101; sPUB0=63; sPq=64
sPM=68
sTS=4; sACC=32
STSEL=[x for x in os.environ.get('STSEL','').split(',') if x]
SOLO=E('SOLO',0)
ABL=[x for x in os.environ.get('ABL','').split(',') if x]
HINT=0x3000
def wo_reg(f):
    j,tau=f>>1,f&1
    return wreg(2,tau,j)[1]

def delay(a,cyc):
    n=cyc//4
    while n>0:
        c=min(n,16); a(f's_nop {c-1}'); n-=c

def gen_rec(a, stamps=False):
    global SPIN_MAX
    if stamps: SPIN_MAX=1<<30
    W=srd4(sWS)
    a.label('rec_start')
    a(f's_mov_b32 s{sH}, s{sROLE}')
    rtstamp(a,0)
    a('v_lshlrev_b32 v9, 4, v0')
    for r in range(10,14): a(f'v_mov_b32 v{r}, -1')
    a(f's_lshl_b32 s{sT0}, s{sH}, 13')
    a(f's_lshl_b32 s{sT1}, s{sW}, 11')
    a(f's_add_u32 s{sT0}, s{sT0}, s{sT1}')
    for sl in range(3):
        a(f's_add_u32 s{sT1}, s{sT0}, {PRING+sl*0x40000}')
        a(f'buffer_store_dwordx4 v[10:13], v9, {W}, s{sT1} offen sc1')
        a(f'buffer_store_dwordx4 v[10:13], v9, {W}, s{sT1} offen offset:1024 sc1')
    a(f's_lshl_b32 s{sT0}, s{sH}, 8')
    a(f's_lshl_b32 s{sT1}, s{sW}, 13')
    a(f's_add_u32 s{sT0}, s{sT0}, s{sT1}')
    a(f's_add_u32 s{sT0}, s{sT0}, {MRING}')
    a('v_lshlrev_b32 v8, 2, v0')
    a(f'buffer_store_dword v10, v8, {W}, s{sT0} offen sc1')
    issue,consume=gen_loader(a,'rec',True)
    for u in range(8): issue(u)
    a('s_waitcnt vmcnt(32)')
    a('s_barrier')
    a(f's_cmp_lg_u32 s{sW}, 0')
    a('s_cbranch_scc1 rec_arrived')
    a(f's_cmp_eq_u32 s{sXCC}, 0')
    a(f's_cselect_b32 s{sT0}, 1, 0x10001')
    a('s_mov_b64 exec, 1')
    a(f'v_mov_b32 v14, s{sT0}')
    a(f's_mov_b32 s{sT1}, 64')
    a(f'buffer_atomic_add v14, off, {srd4(sDBG)}, s{sT1}')
    a('s_mov_b64 exec, -1')
    a('s_waitcnt vmcnt(0)')
    a.label('rec_arrived')
    a('v_bfe_u32 v2, v0, 4, 1')
    a('v_lshlrev_b32 v6, 14, v2')
    a('v_bfe_u32 v2, v0, 5, 1')
    a('v_lshl_add_u32 v6, v2, 13, v6')
    a('v_and_b32 v2, 15, v0')
    a('v_lshl_add_u32 v6, v2, 2, v6')
    a(f's_lshl_b32 s{sT0}, s{sW}, 6')
    a(f'v_add_u32 v6, s{sT0}, v6')
    a(f's_lshl_b32 s{sT3}, s{sH}, 17')
    def wo_issue(b,half):
        base=24+32*(b%3)
        a(f's_add_u32 s{sT1}, s{sT3}, {b*32768+half*4096}')
        for r in range(4*half,4*half+4):
            for c in range(4):
                a(f'buffer_load_dword v{base+4*r+c}, v6, {srd4(sWO)}, s{sT1} offen offset:{(r&3)*1024+c*256}')
    def wo_consume(b):
        base=24+32*(b%3); t2,hh=b>>1,b&1
        for T in range(8):
            f=2*T+t2
            d = wo_reg(f)+4*hh if f<8 else 16+4*(T&1)
            for rp,off in enumerate([0,4,2,6]):
                a(f'v_perm_b32 v{d+rp}, v{base+4*(off+1)+(T>>1)}, v{base+4*off+(T>>1)}, s{sU0+(T&1)}')
            if f>=8: a(f'ds_write_b128 v7, v[{d}:{d+3}] offset:{(f-8)*2048+hh*1024}')
    out=32
    for u in range(24):
        a(f's_waitcnt vmcnt({out-4})'); out-=4
        consume(u)
        a('s_waitcnt lgkmcnt(0)')
        if u+8<24: issue(u+8); out+=4
        elif u in (16,19,22): wo_issue(*[(0,0),(0,1),(1,0)][(u-16)//3]); out+=16
    a(f's_mov_b32 s{sU0}, 0x05040100')
    a(f's_mov_b32 s{sU1}, 0x07060302')
    a('v_lshlrev_b32 v7, 4, v0')
    a(f'v_add_u32 v7, s{sLB}, v7')
    for x in range(8):
        b=wo_reg(x)
        a(f'ds_write_b128 v7, v[{b}:{b+3}] offset:{16384+x*2048}')
        a(f'ds_write_b128 v7, v[{b+4}:{b+7}] offset:{16384+x*2048+1024}')
        if x==3: a('s_waitcnt lgkmcnt(0)')
    a('s_waitcnt lgkmcnt(0)')
    a('s_waitcnt vmcnt(16)'); wo_issue(1,1); wo_issue(2,0); wo_consume(0)
    a('s_waitcnt vmcnt(16)'); wo_issue(2,1); wo_issue(3,0); wo_consume(1)
    a('s_waitcnt vmcnt(16)'); wo_issue(3,1); wo_consume(2)
    a('s_waitcnt vmcnt(0)'); wo_consume(3)
    a('s_waitcnt lgkmcnt(0)')
    rtstamp(a,1)
    a(f'v_lshlrev_b32 v{vL16}, 4, v0')
    a('v_and_b32 v19, 1, v0')
    a(f'v_mov_b32 v{vIDX}, 0x4444')
    a('v_mov_b32 v16, 0xeeee')
    a('v_cmp_eq_u32 vcc, 1, v19')
    a(f'v_cndmask_b32 v{vIDX}, v{vIDX}, v16, vcc')
    a(f's_mov_b32 s{sODD}, 0xaaaaaaaa')
    a(f's_mov_b32 s{sODD+1}, 0xaaaaaaaa')
    a(f's_mov_b32 s{sPM}, 0x000f000f')
    a(f's_mov_b32 s{sPM+1}, 0x000f000f')
    a('v_and_b32 v16, 15, v0')
    a('v_lshrrev_b32 v17, 4, v0')
    a(f'v_mul_u32_u24 v{vQKW}, {2*QK_RS}, v17')
    a(f'v_lshl_add_u32 v{vQKW}, v16, 2, v{vQKW}')
    a(f's_lshl_b32 s{sT1}, s{sW}, 6')
    a(f's_add_u32 s{sT1}, s{sT1}, {R_QK}')
    a(f'v_add_u32 v{vQKW}, s{sT1}, v{vQKW}')
    a('v_lshrrev_b32 v18, 1, v16')
    a(f'v_mul_u32_u24 v{vQR}, {QK_RS}, v18')
    a(f'v_lshl_add_u32 v{vQR}, v17, 4, v{vQR}')
    a(f'v_add_u32 v{vQR}, {R_QK}, v{vQR}')
    a('v_lshrrev_b32 v18, 2, v16')
    a('v_lshlrev_b32 v18, 1, v18')
    a('v_add_u32 v18, v18, v19')
    a(f'v_mul_u32_u24 v{vKR}, {QK_RS}, v18')
    a(f'v_lshl_add_u32 v{vKR}, v17, 4, v{vKR}')
    a(f'v_add_u32 v{vKR}, {R_QK+256}, v{vKR}')
    a('v_lshrrev_b32 v18, 1, v17')
    a(f'v_lshlrev_b32 v{vOW}, 8, v18')
    a('v_lshrrev_b32 v18, 1, v16')
    a(f'v_lshl_add_u32 v{vOW}, v18, 5, v{vOW}')
    a('v_and_b32 v18, 1, v17')
    a(f'v_lshl_add_u32 v{vOW}, v18, 4, v{vOW}')
    a(f'v_lshl_add_u32 v{vOW}, v19, 3, v{vOW}')
    a(f's_lshl_b32 s{sT1}, s{sW}, 9')
    a(f's_add_u32 s{sT1}, s{sT1}, {R_O}')
    a(f'v_add_u32 v{vOW}, s{sT1}, v{vOW}')
    a('v_lshrrev_b32 v18, 3, v0')
    a(f'v_lshlrev_b32 v{vPST}, 11, v18')
    a('v_and_b32 v18, 7, v0')
    a(f'v_lshl_add_u32 v{vPST}, v18, 3, v{vPST}')
    a(f's_lshl_b32 s{sT1}, s{sW}, 14')
    a(f's_lshl_b32 s{sT2}, s{sH}, 6')
    a(f's_add_u32 s{sT1}, s{sT1}, s{sT2}')
    a(f'v_add_u32 v{vPST}, s{sT1}, v{vPST}')
    a('v_lshrrev_b32 v18, 1, v17')
    a(f'v_lshlrev_b32 v{vMST}, 5, v18')
    a('v_and_b32 v18, 3, v0')
    a(f'v_lshl_add_u32 v{vMST}, v18, 3, v{vMST}')
    a('v_and_b32 v18, 1, v17')
    a(f'v_lshl_add_u32 v{vMST}, v18, 2, v{vMST}')
    a(f's_lshr_b32 s{sT1}, s{sH}, 3')
    a(f's_lshl_b32 s{sT1}, s{sT1}, 9')
    a(f's_and_b32 s{sT2}, s{sH}, 1')
    a(f's_lshl_b32 s{sT2}, s{sT2}, 8')
    a(f's_add_u32 s{sT1}, s{sT1}, s{sT2}')
    a(f's_bfe_u32 s{sT2}, s{sH}, 0x20001')
    a(f's_lshl_b32 s{sT2}, s{sT2}, 6')
    a(f's_add_u32 s{sT1}, s{sT1}, s{sT2}')
    a(f's_lshl_b32 s{sT2}, s{sW}, 11')
    a(f's_add_u32 s{sT1}, s{sT1}, s{sT2}')
    a(f'v_add_u32 v{vMST}, s{sT1}, v{vMST}')
    a('v_mov_b32 v24, 0x3f80')
    a('v_mov_b32 v25, 0x3f800000')
    a('v_mov_b32 v26, 0x3f803f80')
    a('v_and_b32 v18, 3, v16')
    for d in range(4):
        lo=4*(d>>1)+2+(d&1)
        a(f'v_cmp_eq_u32 vcc, {lo}, v16')
        a(f'v_cndmask_b32 v{ONES+d}, 0, v24, vcc')
        a(f'v_cmp_eq_u32 vcc, {lo+8}, v16')
        a(f'v_cndmask_b32 v{ONES+d}, v{ONES+d}, v25, vcc')
        a('v_cmp_eq_u32 vcc, 0, v18')
        a(f'v_cndmask_b32 v{ONES+d}, v{ONES+d}, v26, vcc')
    for r in (VM0,VM0+1,VM1,VM1+1,PM+1): a(f'v_mov_b32 v{r}, 0')
    a(f's_mov_b32 s{sC}, 0x3e0293ee'); a(f's_mov_b32 s{sC+1}, 0x3e0293ee')
    a(f's_mov_b32 s{sS}, 0')
    a(f's_mov_b32 s{sMa}, {MRING}'); a(f's_mov_b32 s{sMb}, {MRING+8192}'); a(f's_mov_b32 s{sMc}, {MRING+16384}')
    a(f's_mov_b32 s{sPa}, {PRING}'); a(f's_mov_b32 s{sPb}, {PRING+0x40000}'); a(f's_mov_b32 s{sPc}, {PRING+0x80000}')
    a(f's_mov_b32 s{sSPIN}, 0')
    a(f's_lshl_b32 s{sH13}, s{sH}, 13')
    a(f's_lshl_b32 s{sT1}, s{sW}, 11')
    a(f's_add_u32 s{sHW}, s{sH13}, s{sT1}')
    a(f's_add_u32 s{sKO}, s{sHW}, {KF}')
    a(f's_add_u32 s{sVO}, s{sHW}, {VF}')
    a(f's_lshl_b32 s{sRO}, s{sW}, 16')
    a(f's_lshl_b32 s{sT2}, s{sH}, 11')
    a(f's_add_u32 s{sRO}, s{sRO}, s{sT2}')
    a(f's_lshl_b32 s{sFLA}, s{sH}, 7')
    a(f's_add_u32 s{sFLA}, s{sFLA}, {RECFLAG}')
    a(f's_lshr_b32 s{sPUB0}, s{sHW}, 1')
    a(f's_add_u32 s{sPUB}, s{sPUB0}, {KM}')
    a(f's_lshl_b32 s{sHA}, s{sH}, 2')
    a(f's_add_u32 s{sHA}, s{sHA}, {HINT}')
    a(f's_and_b32 s{sHI}, s{sH}, 7')
    a(f's_lshl_b32 s{sHI}, s{sHI}, 8')
    a(f's_add_u32 s{sHI}, s{sHI}, {HINT}')
    a(f's_mov_b32 s{sFV}, 0')
    a(f's_mov_b32 s{sKB}, 0')
    a(f's_mov_b32 s{sT2}, 192')
    a.label('rec_rdy')
    a(f'buffer_load_dword v24, off, {srd4(sDBG)}, s{sT2} sc1')
    a(f's_add_u32 s{sSPIN}, s{sSPIN}, 1')
    a('s_waitcnt vmcnt(0)')
    a(f'v_readfirstlane_b32 s{sT0}, v24')
    a(f's_cmp_gt_u32 s{sSPIN}, {SPIN_MAX}')
    a('s_cbranch_scc1 kvw_first')
    a(f's_cmp_lt_u32 s{sT0}, 144')
    a('s_cbranch_scc1 rec_rdy')
    a.label('kvw_first')
    a(f's_add_u32 s{sSPIN}, s{sSPIN}, 1')
    a(f'v_lshrrev_b32 v24, 2, v{vL16}')
    a(f's_lshl_b32 s{sT0}, s{sH}, 8')
    a(f'buffer_load_dword v24, v24, {W}, s{sT0} offen sc1')
    a('s_waitcnt vmcnt(0)')
    a(f'v_cmp_ne_u32 s[{sKVM}:{sKVM+1}], 0, v24')
    a(f's_cmp_gt_u32 s{sSPIN}, {SPIN_MAX}')
    a('s_cbranch_scc1 kvok_first')
    a(f's_bitcmp1_b64 s[{sKVM}:{sKVM+1}], 0')
    a('s_cbranch_scc0 kvw_first')
    a.label('kvok_first')
    rtstamp(a,2)
    a(f's_add_u32 m0, s{sT1}, {R_K}')
    a(f'buffer_load_dwordx4 v{vL16}, {W}, s{sKO} offen sc1 lds')
    a(f'buffer_load_dwordx4 v{vL16}, {W}, s{sKO} offen offset:1024 sc1 lds')
    a(f's_add_u32 m0, s{sT1}, {R_V}')
    a(f'buffer_load_dwordx4 v{vL16}, {W}, s{sVO} offen sc1 lds')
    a(f'buffer_load_dwordx4 v{vL16}, {W}, s{sVO} offen offset:1024 sc1 lds')
    a(f's_mov_b32 s{sT1}, 64')
    a.label('rec_team')
    a(f'buffer_load_dword v24, off, {srd4(sDBG)}, s{sT1} sc1')
    a(f's_add_u32 s{sSPIN}, s{sSPIN}, 1')
    a('s_waitcnt vmcnt(0)')
    a(f'v_readfirstlane_b32 s{sT0}, v24')
    a(f's_cmp_gt_u32 s{sSPIN}, {SPIN_MAX}')
    a('s_cbranch_scc1 rec_team_ok')
    a(f's_and_b32 s{sT2}, s{sT0}, 0xffff')
    a(f's_cmp_lt_u32 s{sT2}, 32')
    a('s_cbranch_scc1 rec_team')
    a.label('rec_team_ok')
    a('v_lshrrev_b32 v18, 1, v17')
    a('v_lshlrev_b32 v24, 10, v18')
    a('v_and_b32 v18, 3, v0')
    a('v_lshl_add_u32 v24, v18, 3, v24')
    a('v_and_b32 v18, 1, v17')
    a('v_lshl_add_u32 v24, v18, 2, v24')
    a(f's_bfe_u32 s{sT1}, s{sH}, 0x20001')
    a(f's_lshl_b32 s{sT1}, s{sT1}, 11')
    a(f's_lshl_b32 s{sT2}, s{sW}, 8')
    a(f's_add_u32 s{sT1}, s{sT1}, s{sT2}')
    a(f's_lshr_b32 s{sT2}, s{sH}, 3')
    a(f's_lshl_b32 s{sT2}, s{sT2}, 6')
    a(f's_add_u32 s{sT1}, s{sT1}, s{sT2}')
    a(f's_and_b32 s{sT2}, s{sH}, 1')
    a(f's_lshl_b32 s{sT2}, s{sT2}, 5')
    a(f's_add_u32 s{sT1}, s{sT1}, s{sT2}')
    a(f'buffer_load_dword v26, v24, {srd4(sM0)}, s{sT1} offen')
    a('s_waitcnt vmcnt(0) lgkmcnt(0)')
    a(f's_mov_b64 exec, s[{sPM}:{sPM+1}]')
    a(f'buffer_store_dword v26, v{vMST}, {W}, s{sMa} offen sc1')
    a('s_mov_b64 exec, -1')
    a('s_barrier')
    rtstamp(a,3)
    for t in house_salu(first=True): a(t)
    a(f's_cmp_eq_u32 s{sT0}, 32')
    a('s_cbranch_scc0 rec_slow')
    for w in range(4):
        a(f's_cmp_eq_u32 s{sW}, {w}')
        a(f's_cbranch_scc1 rec_redo_f{w}')
    a.label('rec_slow')
    for w in range(3):
        a(f's_cmp_eq_u32 s{sW}, {w}')
        a(f's_cbranch_scc1 rec_redo_s{w}')
    a('s_branch rec_redo_s3')
    for fast in (True,False):
        for w in range(4):
            gen_loop(a, fast, w, stamps)
    a.label('rec_fin')
    rtstamp(a,4)
    a(f'v_mov_b32 v{KA_+2}, v{VM0}'); a(f'v_mov_b32 v{KA_+3}, v{VM1}')
    a(f's_add_u32 s{sU0}, s{sPUB}, {1<<17}')
    a(f'buffer_store_dwordx4 v[{KA_}:{KA_+3}], v{vL16}, {W}, s{sU0} offen sc1')
    if stamps:
        a('s_waitcnt lgkmcnt(0)')
        a(f's_sub_u32 s{sACC+14}, s{sSPIN}, s{sACC+14}')
        for k in range(16): a(f'v_writelane_b32 v126, s{sACC+k}, {k}')
        a(f's_lshl_b32 s{sU0}, s{sH}, 8')
        a(f's_lshl_b32 s{sU1}, s{sW}, 6')
        a(f's_add_u32 s{sU0}, s{sU0}, s{sU1}')
        a(f's_add_u32 s{sU0}, s{sU0}, 0x6000000')
        a(f'v_lshrrev_b32 v127, 2, v{vL16}')
        a('s_mov_b64 exec, 0xffff')
        a(f'buffer_store_dword v126, v127, {W}, s{sU0} offen')
        a('s_mov_b64 exec, -1')
    a('s_waitcnt vmcnt(0)')
    a('s_barrier')
    a(f's_cmp_lg_u32 s{sW}, 1')
    a('s_cbranch_scc1 main_done')
    a(f'v_mov_b32 v124, 64')
    a('s_mov_b64 exec, 1')
    a(f'buffer_store_dword v124, off, {W}, s{sFLA} sc1')
    a('s_branch main_done')

def xreg(x): return KX+8*(x&3)
def x_reads(lo,hi):
    r=[]
    for x in range(lo,hi):
        b=xreg(x)
        r+=[f'ds_read_b128 v[{b}:{b+3}], v{vWO} offset:{16384+x*2048}', f'ds_read_b128 v[{b+4}:{b+7}], v{vWO} offset:{16384+x*2048+1024}']
    return r
def zero_acc():
    return [f'v_mov_b64 v[{r}:{r+1}], 0' for r in range(QA,VA+8,2)]
def v_reads(w):
    return [f'ds_read_b128 v[{VC+4*t}:{VC+4*t+3}], v{vL16} offset:{R_V+w*2048+t*1024}' for t in range(2)]
def rot_m():
    return [f's_mov_b32 s{sU0}, s{sMa}', f's_mov_b32 s{sMa}, s{sMb}', f's_mov_b32 s{sMb}, s{sMc}', f's_mov_b32 s{sMc}, s{sU0}', f's_add_u32 s{sMa2}, s{sMa}, 4096']
def house_salu(first=False):
    r=[]
    if not first:
        r+=[f's_mov_b32 s{sU0}, s{sPa}', f's_mov_b32 s{sPa}, s{sPb}', f's_mov_b32 s{sPb}, s{sPc}', f's_mov_b32 s{sPc}, s{sU0}',
            f's_add_u32 s{sPUB}, s{sPUB}, {1<<17}', f's_mov_b32 s{sFV}, s{sS}',
            f's_add_u32 s{sS}, s{sS}, 1', f's_xor_b32 s{sKB}, s{sKB}, 0x2000']
    if first: r+=[f's_add_u32 s{sMa2}, s{sMa}, 4096']
    r+=[
        f's_add_u32 s{sU1}, s{sS}, 1', f's_min_u32 s{sU1}, s{sU1}, 63',
        f's_lshl_b32 s{sU0}, s{sU1}, 18', f's_add_u32 s{sU0}, s{sU0}, s{sHW}',
        f's_add_u32 s{sKO}, s{sU0}, {KF}', f's_add_u32 s{sVO}, s{sU0}, {VF}',
        f's_add_u32 s{sPR}, s{sPc}, s{sRO}', f's_add_u32 s{sRG}, s{sPa}, s{sRO}', f's_add_u32 s{sRG2}, s{sRG}, {2*65536}']
    r+=[f's_add_u32 s{sPq+c}, s{sPa}, {c*65536}' for c in range(1,4)]
    return r

def gen_loop(a, fast, w, stamps):
    tag=('f' if fast else 's')+str(w)
    sc='' if fast else ' sc1'
    W=srd4(sWS)
    nst=[0]; nall=[0]
    def stamp():
        nall[0]+=1
        if stamps and (not STSEL or str(nall[0]-1) in STSEL):
            k=nst[0]; nst[0]+=1
            return [f's_memtime s[{sTS+2*k}:{sTS+2*k+1}]']
        return []
    def emit(lst):
        for t in lst: a(t)
    def sm(X,tau,j):
        k,b=wreg(X,tau,j)
        if X==2 and j<4: b=xreg(2*j+tau)
        acc=[QA,KA_,VA][X]+4*tau
        return f'v_smfmac_f32_16x16x64_bf16 v[{acc}:{acc+3}], v[{MF+4*j}:{MF+4*j+3}], {k}[{b}:{b+7}], v{vIDX}'
    def moff(j): return R_M+((2*w+j)&7)*1024
    GB=40
    def gl(b):
        return [f'buffer_load_dwordx4 v[{b+4*L}:{b+4*L+3}], v{vL16}, {W}, s{sMa if w<2 else sMa2} offen offset:{(w&1)*2048+L*1024} sc1' for L in range(2)]
    def spin(inc):
        return [f's_add_u32 s{sSPIN}, s{sSPIN}, {inc if stamps else 1}', f's_cmp_gt_u32 s{sSPIN}, {SPIN_MAX}']
    T=vT; C2=PM
    def chk(b):
        return [f'v_max3_u32 v{T}, v{b}, v{b+1}, v{b+2}', f'v_max3_u32 v{C2}, v{b+3}, v{b+4}, v{b+5}',
                f'v_max3_u32 v{T}, v{T}, v{b+6}, v{b+7}', f'v_max_u32 v{T}, v{T}, v{C2}', f'v_cmp_eq_u32 vcc, -1, v{T}']
    a.label(f'rec_redo_{tag}')
    emit(x_reads(0,4)+v_reads(w))
    if w==3:
        emit(zero_acc()); emit(gl(GB)); emit(gl(32))
        a.label(f'rec_g0_{tag}')
        emit(gl(24))
        a.label(f'rec_gl_{tag}')
        sets=((GB,'a'),(32,'b'),(24,'c'))
        for (cur,tg) in sets:
            emit(spin(1))
            a('s_waitcnt vmcnt(4)')
            a(f's_cbranch_scc1 rec_gk{tg}_{tag}')
            emit(chk(cur))
            a(f's_cbranch_vccz rec_gk{tg}_{tag}')
            emit(gl(cur))
        a(f's_branch rec_gl_{tag}')
        for (cur,tg) in sets:
            a.label(f'rec_gk{tg}_{tag}')
            for r in range(0,8,2): a(f'v_mov_b64 v[{MF+r}:{MF+r+1}], v[{cur+r}:{cur+r+1}]')
            a('s_waitcnt lgkmcnt(0)')
            a(f's_branch rec_ok0_{tag}')
    else:
        a.label(f'rec_g0_{tag}')
        emit(gl(MF))
        emit(spin(1))
        a(f's_cbranch_scc1 rec_ok0_{tag}')
        emit(zero_acc())
        a(f's_branch rec_enter_{tag}')
    a.label(f'rec_kvw_{tag}')
    a(f's_add_u32 s{sT2}, s{sT2}, 1')
    a(f'v_lshrrev_b32 v{PM}, 2, v{vL16}')
    a(f's_lshr_b32 s{sU0}, s{sH13}, 5')
    a(f'buffer_load_dword v{PM}, v{PM}, {W}, s{sU0} offen sc1')
    a('s_waitcnt vmcnt(0)')
    a(f'v_cmp_ne_u32 s[{sKVM}:{sKVM+1}], 0, v{PM}')
    a(f's_cmp_gt_u32 s{sT2}, {1<<22}')
    a(f's_cbranch_scc1 rec_kvok_{tag}')
    a(f's_bitcmp1_b64 s[{sKVM}:{sKVM+1}], s{sU1}')
    a(f's_cbranch_scc0 rec_kvw_{tag}')
    a(f's_branch rec_kvok_{tag}')
    a('.p2align 6')
    a.label(f'rec_enter_{tag}')
    a(f's_waitcnt vmcnt({4 if w==3 else 0}) lgkmcnt(0)')
    if w==3:
        emit(chk(MF))
        a(f's_cbranch_vccnz rec_ok0_{tag}' if SOLO else f's_cbranch_vccnz rec_g0_{tag}')
        a.label(f'rec_ok0_{tag}')
    emit(stamp())
    seq=[]; ex={}
    def put(i,*ops): ex.setdefault(i,[]).extend(ops)
    def grp(X,c): return [sm(X,tau,j) for j in (2*c,2*c+1) for tau in range(2)]
    seq+=grp(2,0)+grp(0,0)+grp(1,0)
    seq+=grp(0,1)+grp(0,2)+grp(0,3)
    seq+=grp(2,1)
    seq+=grp(1,1)+grp(1,2)+grp(1,3)
    vv=[sm(2,0,4),sm(2,0,5),sm(2,0,6),sm(2,0,7),sm(2,1,4),sm(2,1,5),sm(2,1,6),sm(2,1,7)]
    seq+=vv[0:6]
    SX=QA; SM=KA_+4; KMF=KX; T2=KA_+2
    def sx(mu,u):
        c = '0' if u==0 else f'v[{SX+4*mu}:{SX+4*mu+3}]'
        f=KX+4*(mu*4+u)
        return f'v_mfma_f32_16x16x32_bf16 v[{SX+4*mu}:{SX+4*mu+3}], v[{f}:{f+3}], v[{QFR[u]}:{QFR[u]+3}], {c}'
    seq+=[sx(0,u) for u in range(4)]+[sx(1,u) for u in range(4)]
    seq+=[vv[6]]
    for u in range(4):
        c='0' if u==0 else f'v[{SM}:{SM+3}]'
        seq.append(f'v_mfma_f32_16x16x32_bf16 v[{SM}:{SM+3}], v[{KMF+4*u}:{KMF+4*u+3}], v[{QFR[u]}:{QFR[u]+3}], {c}')
    seq+=[vv[7]]
    put(0, f'ds_write_b128 v{vL16}, v[{MF}:{MF+3}] offset:{moff(0)}')
    put(1, f'ds_write_b128 v{vL16}, v[{MF+4}:{MF+7}] offset:{moff(1)}')
    if w<3:
        for i,o in enumerate(chk(MF)): put(i,o)
        put(5, f's_cbranch_vccnz rec_ok0_{tag}' if SOLO else f's_cbranch_vccnz rec_g0_{tag}', f'rec_ok0_{tag}:')
    B1=[E('B10',11),E('B11',11),E('B12',9),E('B13',6)][w]
    mr=[f'ds_read_b128 v[{MF+4*j}:{MF+4*j+3}], v{vL16} offset:{moff(j)}' for j in range(2,8)]
    put(B1,'s_waitcnt lgkmcnt(0)','s_barrier','s_waitcnt vmcnt(0)')
    if B1==11: put(11,*mr)
    else:
        put(B1,mr[0]); put(B1+1,*mr[1:4]); put(B1+2,*mr[4:6])
    put(11,'s_waitcnt lgkmcnt(5)'); put(13,'s_waitcnt lgkmcnt(4)'); put(15,'s_waitcnt lgkmcnt(0)')
    xr=x_reads(4,8)
    for i in range(4): put(16+i, *xr[2*i:2*i+2])
    put(23, 's_waitcnt lgkmcnt(0)', 's_barrier')
    put(12, f's_bitcmp1_b64 s[{sKVM}:{sKVM+1}], s{sU1}', f's_cbranch_scc0 rec_kvw_{tag}', f'rec_kvok_{tag}:')
    put(13, f's_xor_b32 s{sU0}, s{sKB}, {0x2000+w*2048}', f's_mov_b32 m0, s{sU0}')
    put(14, f'buffer_load_dwordx4 v{vL16}, {W}, s{sKO} offen sc1 lds')
    put(15, f'buffer_load_dwordx4 v{vL16}, {W}, s{sKO} offen offset:1024 sc1 lds', f's_mov_b32 m0, {R_V+w*2048}')
    put(16, f'buffer_load_dwordx4 v{vL16}, {W}, s{sVO} offen sc1 lds')
    put(17, f'buffer_load_dwordx4 v{vL16}, {W}, s{sVO} offen offset:1024 sc1 lds')
    put(14, f'v_add_u32 v{T}, s{sKB}, v{vL16}')
    R_F=0x7A00+w*256
    put(22, f'v_lshrrev_b32 v16, 2, v{vL16}')
    put(24, f's_mov_b32 m0, {R_F}', f's_lshr_b32 s{sU0}, s{sH13}, 5')
    put(25, f'buffer_load_dword v16, {W}, s{sU0} offen sc1 lds')
    for f in range(8): put(28+f, f'ds_read_b128 v[{KX+4*f}:{KX+4*f+3}], v{T} offset:{R_K+f*1024}')
    put(46+(w&1), f'buffer_store_dwordx4 v[{KA_}:{KA_+3}], v{vL16}, {W}, s{sPUB} offen sc1')
    put(44, f'v_mov_b32 v{KA_+2}, v{VM0}'); put(45, f'v_mov_b32 v{KA_+3}, v{VM1}')
    if w==0:
        put(15, f'v_mov_b32 v{PM}, s{sFV}')
        put(22, 's_mov_b64 exec, 1', f'buffer_store_dword v{PM}, off, {W}, s{sFLA} sc1', 's_mov_b64 exec, -1')
    put(20+(w&1), f'buffer_store_dwordx4 v[{NEG1}:{NEG1+3}], v{vL16}, {W}, s{sPR} offen{sc}')
    put(26+(w&1), f'buffer_store_dwordx4 v[{NEG1}:{NEG1+3}], v{vL16}, {W}, s{sPR} offen offset:1024{sc}')
    put(38, f's_mov_b64 exec, s[{sPM}:{sPM+1}]', f'buffer_store_dword v{NEG1}, v{vMST}, {W}, s{sMc} offen{sc}', 's_mov_b64 exec, -1')
    def pp(acc,d0,d1):
        return [f'v_add_f32 v{acc}, v{acc}, v{acc+1}', f'v_add_f32 v{acc+2}, v{acc+2}, v{acc+3}',
                f'v_add_f32 v{acc+4}, v{acc+4}, v{acc+5}', f'v_add_f32 v{acc+6}, v{acc+6}, v{acc+7}',
                f'v_cvt_pk_bf16_f32 v{d0}, v{acc}, v{acc+4}', f'v_cvt_pk_bf16_f32 v{d1}, v{acc+2}, v{acc+6}']
    q=pp(QA,QA,QA+1)
    for i in range(6): put(24+i,q[i])
    put(30, f'ds_write2_b32 v{vQKW}, v{QA}, v{QA+1} offset0:0 offset1:{QK_RS//4}')
    qf=[f'ds_read_b128 v[{QFR[u]}:{QFR[u]+3}], v{vQR} offset:{u*64}' for u in range(4)]
    put(36,'s_waitcnt lgkmcnt(5)','s_barrier'); put(37,*qf[0:2]); put(39,*qf[2:4])
    k=pp(KA_,KA_,KA_+1)
    put(40,k[0]); put(41,k[1],k[2]); put(42,k[3],k[4]); put(43,k[5])
    put(44, f'ds_write2_b32 v{vQKW}, v{KA_}, v{KA_+1} offset0:64 offset1:{QK_RS//4+64}')
    put(45, 's_waitcnt lgkmcnt(1)')
    WA=[24,28,32,36,72,76,48,52]
    z0=[f'v_mov_b64 v[{r}:{r+1}], 0' for r in range(24,40,2)]
    kmf=[f'ds_read_b128 v[{KMF+4*u}:{KMF+4*u+3}], v{vKR} offset:{u*64}' for u in range(4)]
    put(32,z0[0]); put(33,z0[1]); put(34,z0[2]); put(35,z0[3]); put(46,z0[4]); put(47,z0[5]); put(48,*z0[6:8])
    put(49,'s_waitcnt lgkmcnt(0)','s_barrier',kmf[0]); put(50,*kmf[1:4])
    put(51, f'v_add_f32 v{VA}, v{VA}, v{VA+1}', f'v_add_f32 v{VA+2}, v{VA+2}, v{VA+3}')
    put(52, f'v_cvt_pk_bf16_f32 v{VM0}, v{VA}, v{VA+2}', f'v_max3_f32 v{T}, v{SX}, v{SX+1}, v{SX+2}')
    put(54, 's_waitcnt lgkmcnt(0)')
    WIN=[104,112,88,96,16,120,40,64]
    def wrd(f):
        b=WIN[f]
        return [f'ds_read_b128 v[{b}:{b+3}], v{vWO} offset:{f*2048}', f'ds_read_b128 v[{b+4}:{b+7}], v{vWO} offset:{f*2048+1024}']
    put(55,*wrd(0)); put(56,*wrd(1))
    put(57, f'v_max3_f32 v{T2}, v{SX+3}, v{SX+4}, v{SX+5}', f'v_max3_f32 v{T}, v{T}, v{SX+6}, v{SX+7}')
    put(58, f'v_max_f32 v{T}, v{T}, v{T2}')
    put(59,*wrd(2)); put(59,*wrd(3))
    sta=[int(x) for x in os.environ.get('STA','17,37,58').split(',')]
    for i,m in enumerate(seq):
        a(m)
        ops=ex.get(i,[])
        if ABL:
            ops=[o for o in ops if not any(o.startswith(p) for p in ABL)]
        if i in sta: emit(stamp())
        emit([o for o in ops if not o.startswith('v_')]); emit([o for o in ops if o.startswith('v_')])
    assert max(ex)<len(seq)
    B=[]
    B+=[f'v_max3_f32 v{T}, v{T}, v{SM}, v{SM+1}', f'v_mov_b32 v{T2}, v{T}']+wrd(4)
    B+=[f'v_permlane16_swap_b32 v{T2}, v{T}', f'v_max_f32 v{T}, v{T2}, v{T}', f'v_mov_b32 v{T2}, v{T}',
        f'v_add_f32 v{VA+4}, v{VA+4}, v{VA+5}', f'v_add_f32 v{VA+6}, v{VA+6}, v{VA+7}',
        f'v_permlane32_swap_b32 v{T2}, v{T}', f'v_max_f32 v{T}, v{T2}, v{T}', f'v_mul_f32 v{T2}, s{sC}, v{T}']
    for r in (SM,SX,SX+2,SX+4,SX+6):
        B.append(f'v_pk_fma_f32 v[{r}:{r+1}], v[{r}:{r+1}], s[{sC}:{sC+1}], v[{T2}:{T2+1}] op_sel_hi:[1,1,0] neg_lo:[0,0,1] neg_hi:[0,0,1]')
    B+=[f'v_exp_f32 v{SM}, v{SM}', f'v_exp_f32 v{SM+1}, v{SM+1}', f'v_cvt_pk_bf16_f32 v{VM1}, v{VA+4}, v{VA+6}', f'v_cvt_pk_bf16_f32 v{PM}, v{SM}, v{SM+1}']
    OA=VA; LA=SM; PX=SX
    exs=[f'v_exp_f32 v{r}, v{r}' for r in range(SX,SX+8)]
    B+=exs[0:2]+[f'v_mfma_f32_16x16x16_bf16 v[{LA}:{LA+3}], v[{ONES}:{ONES+1}], v[{PM}:{PM+1}], 0']
    B+=exs[2:4]+[f'v_mfma_f32_16x16x16_bf16 v[{OA}:{OA+3}], v[{VM0}:{VM0+1}], v[{PM}:{PM+1}], 0']
    B+=exs[4:6]+[f'v_mfma_f32_16x16x16_bf16 v[{OA+4}:{OA+7}], v[{VM1}:{VM1+1}], v[{PM}:{PM+1}], 0']
    B+=exs[6:8]+[f'v_cvt_pk_bf16_f32 v{PX+i}, v{SX+2*i}, v{SX+2*i+1}' for i in range(4)]
    B+=wrd(5)
    B+=[f'v_mfma_f32_16x16x32_bf16 v[{LA}:{LA+3}], v[{ONES}:{ONES+3}], v[{PX}:{PX+3}], v[{LA}:{LA+3}]']
    B+=wrd(6)
    B+=[f'v_mfma_f32_16x16x32_bf16 v[{OA}:{OA+3}], v[{VC}:{VC+3}], v[{PX}:{PX+3}], v[{OA}:{OA+3}]', f's_cmp_eq_u32 s{sS}, 63',
        f'v_mfma_f32_16x16x32_bf16 v[{OA+4}:{OA+7}], v[{VC+4}:{VC+7}], v[{PX}:{PX+3}], v[{OA+4}:{OA+7}]', 's_cbranch_scc1 rec_fin',
        f'v_rcp_f32 v{LA}, v{LA}']
    z1=[f'v_mov_b64 v[{r}:{r+1}], 0' for r in list(range(72,80,2))+list(range(48,56,2))]
    B+=z1[0:5]
    B+=[f'v_cndmask_b32 v{OA+i}, v{OA+i}, v{OA+4+i}, s[{sODD}:{sODD+1}]' for i in range(4)]
    B+=[f'v_pk_mul_f32 v[{OA+i}:{OA+i+1}], v[{OA+i}:{OA+i+1}], v[{LA}:{LA+1}] op_sel_hi:[1,0]' for i in (0,2)]
    B+=[f'v_cvt_pk_bf16_f32 v{OA+4}, v{OA}, v{OA+1}', f'v_cvt_pk_bf16_f32 v{OA+5}, v{OA+2}, v{OA+3}', f'ds_write_b64 v{vOW}, v[{OA+4}:{OA+5}]']
    emit(B)
    emit(z1[5:8])
    emit(rot_m())
    a('s_waitcnt lgkmcnt(0)')
    a('s_barrier')
    OFR=56
    a(f'ds_read_b128 v[{OFR}:{OFR+3}], v{vL16} offset:{R_O}')
    a(f'ds_read_b128 v[{OFR+4}:{OFR+7}], v{vL16} offset:{R_O+1024}')
    emit(wrd(7))
    RA=124
    D=E('DP3',3) if w==3 else E('DP',1)
    RBs=[24,32,40][:D]
    vq=[]
    def rl(k):
        vq.extend([k,k])
        return [f'buffer_load_dwordx4 v[{RBs[k]+4*L}:{RBs[k]+4*L+3}], v{vL16}, {W}, s{sRG} offen offset:{L*1024} sc1' for L in range(2)]
    def epi(T_):
        r=WA[T_]; d=WA[T_&6]+(T_&1)
        return [f'v_add_f32 v{r}, v{r}, v{r+1}', f'v_add_f32 v{r+2}, v{r+2}, v{r+3}', f'v_cvt_pk_bf16_f32 v{d}, v{r}, v{r+2}']
    def pst(c):
        vq.append('s')
        return f'buffer_store_dwordx2 v[{WA[2*c]}:{WA[2*c]+1}], v{vPST}, {W}, s{sPa if c==0 else sPq+c} offen{sc}'
    nis=0
    pend=[]
    a('s_waitcnt lgkmcnt(3)')
    for i in range(16):
        T_,t2=i>>1,i&1
        b = wo_reg(i) if i<8 else WIN[i-8]
        a(f'v_smfmac_f32_16x16x64_bf16 v[{WA[T_]}:{WA[T_]+3}], v[{OFR+4*t2}:{OFR+4*t2+3}], v[{b}:{b+7}], v{vIDX}')
        if i==1: emit(stamp())
        if i in (7,11,15): a(pst((i-7)//4))
        if i==0: a('s_waitcnt lgkmcnt(2)')
        if i==12: a('s_waitcnt lgkmcnt(0)')
        if i>=3 and (i&1)==1: pend+=epi((i-3)//2)
        for _ in range(2 if i&1 else 1):
            if pend: a(pend.pop(0))
    emit(pend)
    if w==0 and E('RL0',0): emit(rl(0)); nis=1
    emit(epi(7))
    a(pst(3))
    emit(stamp())
    hk=zero_acc()+x_reads(0,4)
    RP=E('RP',60)
    gaps=[[E('HG0',0)],[E('HG1',12)],[E('HG2',20)],[12,4,4]][w]
    dls=[[E('R0',0)],[E('R1',0)],[E('R2',0)],[E('R3',60),RP-40,RP-40]][w]
    gi=0
    while nis<D:
        n=gaps[gi] if gi<len(gaps) else 0
        emit(hk[:n]); hk=hk[n:]
        delay(a,dls[gi] if gi<len(dls) else RP-16)
        emit(rl(nis)); nis+=1; gi+=1
    emit(hk)
    hsv=house_salu()
    def attempt(k, y, fail):
        RB=RBs[k]; c=chk(RB)
        a(f's_waitcnt vmcnt({y+1})')
        a(f'v_mfma_f32_16x16x32_bf16 v[{RA}:{RA+3}], v[{ONES}:{ONES+3}], v[{RB}:{RB+3}], 0')
        a(c[0])
        a(f's_waitcnt vmcnt({y})')
        a(f'v_mfma_f32_16x16x32_bf16 v[{RA}:{RA+3}], v[{ONES}:{ONES+3}], v[{RB+4}:{RB+7}], v[{RA}:{RA+3}]')
        emit(c[1:])
        a(fail)
    def younger(k):
        idx=[i for i,x in enumerate(vq) if x==k][-1]
        return len(vq)-1-idx
    attempt(0, younger(0), f's_cbranch_vccnz rec_go_{tag}' if SOLO else f's_cbranch_vccnz rec_f0_{tag}')
    a.label(f'rec_go_{tag}')
    for sh in (4,8):
        for r in (2,3): a(f'v_add_f32 v{RA+r}, v{RA+r}, v{RA+r} row_ror:{sh} row_mask:0xf bank_mask:0xf')
    a(f's_mov_b64 exec, s[{sPM}:{sPM+1}]')
    a(f'v_cvt_pk_bf16_f32 v{RA}, v{RA+2}, v{RA+3}')
    a(f'buffer_store_dword v{RA}, v{vMST}, {W}, s{sMa} offen{sc}')
    a('s_mov_b64 exec, -1')
    emit(stamp())
    a(f'v_lshrrev_b32 v{T}, 2, v{vL16}')
    a(f'ds_read_b32 v{PM}, v{T} offset:{R_F}')
    emit(v_reads(w)); emit(hsv)
    a('s_waitcnt lgkmcnt(2)')
    a(f'v_cmp_ne_u32 s[{sKVM}:{sKVM+1}], 0, v{PM}')
    delay(a,E(f'DG{w}',[150,100,60,0][w]))
    emit(gl(MF))
    if w==3:
        GPER=E('GPER',60)
        delay(a,GPER-16); emit(gl(GB)); delay(a,GPER-16); emit(gl(32))
    emit(stamp())
    if stamps:
        a('s_waitcnt lgkmcnt(0)')
        n=nst[0]
        for k in range(n):
            prev = f's{sACC+15}' if k==0 else f's{sTS+2*(k-1)}'
            a(f's_sub_u32 s{sU0}, s{sTS+2*k}, {prev}')
            a(f's_add_u32 s{sACC+k}, s{sACC+k}, s{sU0}')
        a(f's_mov_b32 s{sACC+15}, s{sTS+2*(n-1)}')
        a(f's_cmp_eq_u32 s{sS}, 9')
        for k in range(n): a(f's_cselect_b32 s{sACC+k}, 0, s{sACC+k}')
        a(f's_cselect_b32 s{sACC+14}, s{sSPIN}, s{sACC+14}')
    if RT and w==0:
        l=a.newlabel('rs')
        a(f's_and_b32 s8, s{sS}, 7'); a('s_cmp_lg_u32 s8, 0'); a(f's_cbranch_scc1 {l}')
        a(f's_lshr_b32 s8, s{sS}, 3')
        rtstamp(a,8,idx_s=8)
        a.label(l)
    a(f's_branch rec_enter_{tag}')
    for k in range(D-1):
        a.label(f'rec_f{k}_{tag}')
        emit(rl(k))
        emit(spin(0x10000)[:1])
        attempt(k+1, younger(k+1), f's_cbranch_vccz rec_go_{tag}')
    if D==1: a.label(f'rec_f0_{tag}')
    a.label(f'rec_fl_{tag}')
    for k in range(D):
        emit(rl((k-1)%D))
        emit(spin(0x10000))
        a(f's_cbranch_scc1 rec_go_{tag}')
        attempt(k, 2*(D-1), f's_cbranch_vccz rec_go_{tag}')
    a(f's_branch rec_fl_{tag}')
```

```python
from common import *
from k_main import *
import common
QF_=common.QF
OFLAG=0x4000; X1FLAG=0x6000; HHFLAG=0xA000
D_MODA=128; D_READY=192
sIDX=63; sSP=52
W=srd4(sWS)

def dbg_add(a):
    pass

def wait_dbg(a, off, target, tag):
    a(f's_mov_b32 s{sT1}, {off}')
    a.label(f'{tag}_w')
    a(f'buffer_load_dword v127, off, {srd4(sDBG)}, s{sT1} sc1')
    a(f's_add_u32 s{sSP}, s{sSP}, 1')
    a('s_waitcnt vmcnt(0)')
    a(f'v_readfirstlane_b32 s{sT0}, v127')
    a(f's_cmp_ge_u32 s{sT0}, {target}')
    a(f's_cbranch_scc1 {tag}_ok')
    a(f's_cmp_gt_u32 s{sSP}, {SPIN_MAX}')
    a(f's_cbranch_scc1 {tag}_ok')
    a('s_sleep 2')
    a(f's_branch {tag}_w')
    a.label(f'{tag}_ok')

def wait_dbg_wg(a, off, target, tag):
    a(f's_cmp_lg_u32 s{sW}, 0')
    a(f's_cbranch_scc1 {tag}_ok')
    wait_dbg(a,off,target,tag)
    a('s_barrier')

def arrive_dbg(a, off, tag):
    a('s_waitcnt vmcnt(0)')
    a('s_barrier')
    a(f's_cmp_lg_u32 s{sW}, 0')
    a(f's_cbranch_scc1 {tag}_na')
    a('v_mov_b32 v127, 1')
    a(f's_mov_b32 s{sT1}, {off}')
    a('s_mov_b64 exec, 1')
    a(f'buffer_atomic_add v127, off, {srd4(sDBG)}, s{sT1}')
    a('s_mov_b64 exec, -1')
    a.label(f'{tag}_na')

def set_flag(a, addr_s, tag, wave=0):
    a(f's_cmp_lg_u32 s{sW}, {wave}')
    a(f's_cbranch_scc1 {tag}_nf')
    a('v_mov_b32 v127, 1')
    a('s_mov_b64 exec, 1')
    a(f'buffer_store_dword v127, off, {W}, s{addr_s} sc1')
    a('s_mov_b64 exec, -1')
    a.label(f'{tag}_nf')

def wait_flags(a, addr_s, n, voff, tag, sleep=3):
    a.label(f'{tag}_pw')
    a(f'buffer_load_dword v127, v{voff}, {W}, s{addr_s} offen sc1')
    a(f's_add_u32 s{sSP}, s{sSP}, 1')
    a(f's_cmp_gt_u32 s{sSP}, {SPIN_MAX}')
    a('s_waitcnt vmcnt(0)')
    a('v_cmp_eq_u32 vcc, 0, v127')
    a(f's_cbranch_scc1 {tag}_pk')
    a(f's_cbranch_vccz {tag}_pk')
    a(f's_sleep {sleep}')
    a(f's_branch {tag}_pw')
    a.label(f'{tag}_pk')

def mod_body(a):
    a(f's_load_dwordx4 s[4:7], s[0:1], {KA["c"]}')
    a(f's_lshl_b32 s{sT0}, s{sW}, 6')
    a(f'v_add_u32 v64, s{sT0}, v0')
    a('v_and_b32 v1, 3, v64')
    a('v_lshrrev_b32 v2, 2, v64')
    a('v_lshlrev_b32 v3, 4, v2')
    a(f's_mov_b32 s{sT0}, 49152')
    a(f'v_mul_lo_u32 v8, v2, s{sT0}')
    a(f's_lshl_b32 s{sT0}, s{sIDX}, 6')
    a('v_lshl_add_u32 v8, v1, 4, v8')
    a(f'v_add_u32 v8, s{sT0}, v8')
    a('s_waitcnt lgkmcnt(0)')
    srd(a,32,4,1024); srd(a,36,6,512*3072*2)
    a('buffer_load_dwordx4 v[4:7], v3, s[32:35], 0 offen')
    for i in range(8):
        a(f's_mov_b32 s{sT0}, {i*6144}')
        a(f'buffer_load_dwordx4 v[{16+4*i}:{19+4*i}], v8, s[36:39], s{sT0} offen')
    a('s_waitcnt vmcnt(8)')
    for i in range(4):
        a(f'v_lshlrev_b32 v{48+2*i}, 16, v{4+i}')
        a(f'v_and_b32 v{49+2*i}, 0xffff0000, v{4+i}')
    for i in range(8): a(f'v_mul_f32 v{56+i}, 0xbfb8aa3b, v{48+i}')
    for i in range(8): a(f'v_exp_f32 v{56+i}, v{56+i}')
    for i in range(8): a(f'v_add_f32 v{56+i}, 1.0, v{56+i}')
    for i in range(8): a(f'v_rcp_f32 v{56+i}, v{56+i}')
    for i in range(8): a(f'v_mul_f32 v{48+i}, v{48+i}, v{56+i}')
    for i in range(4): round_bf16_pair(a,48+2*i,49+2*i,56)
    a('s_waitcnt vmcnt(0)')
    for i in range(8):
        for j in range(4):
            a(f'v_lshlrev_b32 v10, 16, v{16+4*i+j}')
            a(f'v_and_b32 v11, 0xffff0000, v{16+4*i+j}')
            if i==0:
                a(f'v_mul_f32 v{56+2*j}, v48, v10'); a(f'v_mul_f32 v{57+2*j}, v48, v11')
            else:
                a(f'v_fmac_f32 v{56+2*j}, v{48+i}, v10'); a(f'v_fmac_f32 v{57+2*j}, v{48+i}, v11')
    a('v_lshlrev_b32 v9, 5, v64')
    a('ds_write_b128 v9, v[56:59]')
    a('ds_write_b128 v9, v[60:63] offset:16')
    a('s_waitcnt lgkmcnt(0)')
    a('s_barrier')
    a('v_and_b32 v1, 31, v64')
    a('v_lshrrev_b32 v2, 5, v64')
    a('v_lshlrev_b32 v9, 10, v2')
    a('v_lshl_add_u32 v9, v1, 2, v9')
    for i in range(8): a(f'ds_read_b32 v{16+i}, v9 offset:{i*128}')
    a('s_waitcnt lgkmcnt(0)')
    for i in range(1,8): a(f'v_add_f32 v16, v16, v{16+i}')
    a('v_lshlrev_b32 v9, 2, v64')
    a('ds_write_b32 v9, v16 offset:8192')
    a('s_waitcnt lgkmcnt(0)')
    a('s_barrier')
    a('v_lshlrev_b32 v9, 2, v1')
    for i in range(8): a(f'ds_read_b32 v{16+i}, v9 offset:{8192+i*128}')
    a('s_waitcnt lgkmcnt(0)')
    for i in range(1,8): a(f'v_add_f32 v16, v16, v{16+i}')
    round_bf16(a,16,17)
    a(f's_lshr_b32 s{sT0}, s{sIDX}, 4')
    a(f's_cmp_eq_u32 s{sT0}, 1')
    a('s_cbranch_scc1 mod_p1')
    a(f's_cmp_eq_u32 s{sT0}, 4')
    a('s_cbranch_scc0 mod_st')
    a.label('mod_p1')
    a('v_add_f32 v16, 1.0, v16')
    round_bf16(a,16,17)
    a.label('mod_st')
    a(f's_lshl_b32 s{sT0}, s{sIDX}, 7')
    a(f's_add_u32 s{sT0}, s{sT0}, {MOD}')
    a(f's_cmp_lg_u32 s{sW}, 0')
    a('s_cbranch_scc1 mod_ns')
    a(f'buffer_store_dword v16, v9, {W}, s{sT0} offen sc1')
    a(f's_cmp_ge_u32 s{sIDX}, 32')
    a('s_cbranch_scc1 mod_ns')
    a('s_waitcnt vmcnt(0)')
    a('v_mov_b32 v127, 1')
    a(f's_mov_b32 s{sT1}, {D_MODA}')
    a('s_mov_b64 exec, 1')
    a(f'buffer_atomic_add v127, off, {srd4(sDBG)}, s{sT1}')
    a('s_mov_b64 exec, -1')
    a.label('mod_ns')

LX=16; LF=32; LSC=64; LSH=96
LRED=0x27C00
def ln_setup(a):
    a('v_and_b32 v1, 15, v0')
    a('v_lshrrev_b32 v2, 4, v0')
    a('v_lshlrev_b32 v4, 10, v1')
    a('v_lshl_add_u32 v4, v2, 4, v4')
    a(f's_lshl_b32 s{sT0}, s{sW}, 8')
    a(f'v_add_u32 v4, s{sT0}, v4')
    a('v_lshlrev_b32 v5, 5, v2')
    a(f's_lshl_b32 s{sT0}, s{sW}, 9')
    a(f'v_add_u32 v5, s{sT0}, v5')
    a('v_lshlrev_b32 v8, 2, v1')
    a(f'v_add_u32 v8, {LRED}, v8')
    a(f's_lshl_b32 s{sT0}, s{sW}, 6')
    a(f'v_add_u32 v9, s{sT0}, v8')
    a('v_lshlrev_b32 v3, 4, v0')
def ln_load_mod(a, sec_shift, sec_scale):
    a(f's_mov_b32 s{sT0}, {MOD+sec_scale*2048}')
    a(f's_mov_b32 s{sT1}, {MOD+sec_shift*2048}')
    for k in range(4):
        for hf in range(2):
            a(f'buffer_load_dwordx4 v[{LSC+8*k+4*hf}:{LSC+3+8*k+4*hf}], v5, {W}, s{sT0} offen offset:{k*128+hf*16} sc1')
            a(f'buffer_load_dwordx4 v[{LSH+8*k+4*hf}:{LSH+3+8*k+4*hf}], v5, {W}, s{sT1} offen offset:{k*128+hf*16} sc1')
def ln_load_x(a, srdname, soff, sc=''):
    for k in range(4):
        a(f'buffer_load_dwordx4 v[{LX+4*k}:{LX+3+4*k}], v4, {srdname}, s{soff} offen offset:{k*64}{sc}')
def ln_stats(a):
    for j in range(16):
        a(f'v_lshlrev_b32 v{LF+2*j}, 16, v{LX+j}')
        a(f'v_and_b32 v{LF+1+2*j}, 0xffff0000, v{LX+j}')
    a(f'v_add_f32 v6, v{LF}, v{LF+1}'); a(f'v_add_f32 v7, v{LF+2}, v{LF+3}')
    for j in range(4,32,2):
        a(f'v_add_f32 v6, v6, v{LF+j}'); a(f'v_add_f32 v7, v7, v{LF+1+j}')
    a('v_add_f32 v6, v6, v7')
    xlane_reduce(a,'v_add_f32',6,7)
    a('ds_write_b32 v9, v6')
    a('s_waitcnt lgkmcnt(0)'); a('s_barrier')
    for k in range(4): a(f'ds_read_b32 v{10+k}, v8 offset:{k*64}')
    a('s_waitcnt lgkmcnt(0)')
    a('v_add_f32 v10, v10, v11'); a('v_add_f32 v12, v12, v13'); a('v_add_f32 v10, v10, v12')
    a('v_mul_f32 v10, 0x3b000000, v10')
    a(f'v_sub_f32 v11, v{LF}, v10'); a('v_mul_f32 v6, v11, v11')
    a(f'v_sub_f32 v12, v{LF+1}, v10'); a('v_mul_f32 v7, v12, v12')
    for j in range(2,32,2):
        a(f'v_sub_f32 v11, v{LF+j}, v10'); a(f'v_sub_f32 v12, v{LF+1+j}, v10')
        a('v_fmac_f32 v6, v11, v11'); a('v_fmac_f32 v7, v12, v12')
    a('v_add_f32 v6, v6, v7')
    xlane_reduce(a,'v_add_f32',6,7)
    a('ds_write_b32 v9, v6 offset:256')
    a('s_waitcnt lgkmcnt(0)'); a('s_barrier')
    for k in range(4): a(f'ds_read_b32 v{11+k}, v8 offset:{256+k*64}')
    a('s_waitcnt lgkmcnt(0)')
    a('v_add_f32 v11, v11, v12'); a('v_add_f32 v13, v13, v14'); a('v_add_f32 v11, v11, v13')
    a('v_mul_f32 v11, 0x3b000000, v11')
    round_bf16_pair(a,10,11,12)
    a('v_add_f32 v11, 0x3727c5ac, v11')
    round_bf16(a,11,12)
    a('v_sqrt_f32 v11, v11')
    round_bf16(a,11,12)
    a('v_rcp_f32 v11, v11')
def ln_apply(a):
    perm=[0,2,1,3]
    for k in range(4):
        for j in range(4):
            e0=LF+8*k+2*j; e1=e0+1
            a(f'v_sub_f32 v{e0}, v{e0}, v10'); a(f'v_sub_f32 v{e1}, v{e1}, v10')
            round_bf16_pair(a,e0,e1,12)
            a(f'v_mul_f32 v{e0}, v{e0}, v11'); a(f'v_mul_f32 v{e1}, v{e1}, v11')
            round_bf16_pair(a,e0,e1,12)
            a(f'v_mul_f32 v{e0}, v{e0}, v{e0+32}'); a(f'v_mul_f32 v{e1}, v{e1}, v{e1+32}')
            round_bf16_pair(a,e0,e1,12)
            a(f'v_add_f32 v{e0}, v{e0}, v{e0+64}'); a(f'v_add_f32 v{e1}, v{e1}, v{e1+64}')
            a(f'v_cvt_pk_bf16_f32 v{LX+4*k+perm[j]}, v{e0}, v{e1}')
    for k in range(4):
        a(f'v_permlane16_swap_b32 v{LX+4*k}, v{LX+1+4*k}')
        a(f'v_permlane16_swap_b32 v{LX+2+4*k}, v{LX+3+4*k}')

def ln_fast(a):
    for j in range(16):
        a(f'v_lshlrev_b32 v{LF+2*j}, 16, v{LX+j}')
        a(f'v_and_b32 v{LF+1+2*j}, 0xffff0000, v{LX+j}')
    a(f'v_pk_add_f32 v[6:7], v[{LF}:{LF+1}], v[{LF+2}:{LF+3}]')
    a(f'v_pk_add_f32 v[10:11], v[{LF+4}:{LF+5}], v[{LF+6}:{LF+7}]')
    for j in range(8,32,4):
        a(f'v_pk_add_f32 v[6:7], v[6:7], v[{LF+j}:{LF+j+1}]')
        a(f'v_pk_add_f32 v[10:11], v[10:11], v[{LF+j+2}:{LF+j+3}]')
    a('v_pk_add_f32 v[6:7], v[6:7], v[10:11]')
    a('v_add_f32 v6, v6, v7')
    xlane_reduce(a,'v_add_f32',6,7)
    a('v_mul_f32 v6, 0x3c000000, v6')
    a(f'v_pk_add_f32 v[12:13], v[{LF}:{LF+1}], v[6:7] op_sel_hi:[1,0] neg_lo:[0,1] neg_hi:[0,1]')
    a('v_pk_mul_f32 v[10:11], v[12:13], v[12:13]')
    for j in range(2,32,2):
        a(f'v_pk_add_f32 v[12:13], v[{LF+j}:{LF+j+1}], v[6:7] op_sel_hi:[1,0] neg_lo:[0,1] neg_hi:[0,1]')
        a('v_pk_fma_f32 v[10:11], v[12:13], v[12:13], v[10:11]')
    a('v_add_f32 v7, v10, v11')
    xlane_reduce(a,'v_add_f32',7,10)
    a('ds_write2_b32 v9, v6, v7 offset0:0 offset1:64')
    a('s_waitcnt lgkmcnt(0)'); a('s_barrier')
    a(f'ds_read2_b32 v[{LX}:{LX+1}], v8 offset0:0 offset1:16')
    a(f'ds_read2_b32 v[{LX+2}:{LX+3}], v8 offset0:32 offset1:48')
    a(f'ds_read2_b32 v[{LX+4}:{LX+5}], v8 offset0:64 offset1:80')
    a(f'ds_read2_b32 v[{LX+6}:{LX+7}], v8 offset0:96 offset1:112')
    a('s_waitcnt lgkmcnt(0)')
    a(f'v_add_f32 v10, v{LX}, v{LX+1}'); a(f'v_add_f32 v11, v{LX+2}, v{LX+3}'); a('v_add_f32 v10, v10, v11')
    a('v_mul_f32 v10, 0x3e800000, v10')
    a(f'v_add_f32 v11, v{LX+4}, v{LX+5}'); a(f'v_add_f32 v12, v{LX+6}, v{LX+7}'); a('v_add_f32 v11, v11, v12')
    a('v_mul_f32 v11, 0x3c000000, v11')
    for k in range(4):
        a(f'v_sub_f32 v12, v{LX+k}, v10'); a('v_fmac_f32 v11, v12, v12')
    a('v_mul_f32 v11, 0x3e800000, v11')
    round_bf16_pair(a,10,11,12)
    a('v_add_f32 v11, 0x3727c5ac, v11')
    round_bf16(a,11,12)
    a('v_sqrt_f32 v11, v11')
    round_bf16(a,11,12)
    a('v_rcp_f32 v12, v11')
    a('v_mul_f32 v10, v10, v12')
    perm=[0,2,1,3]
    for k in range(4):
        for j in range(4):
            e=LF+8*k+2*j
            a(f'v_pk_fma_f32 v[{e}:{e+1}], v[{e}:{e+1}], v[12:13], v[10:11] op_sel_hi:[1,0,0] neg_lo:[0,0,1] neg_hi:[0,0,1]')
        for j in range(4):
            e=LF+8*k+2*j
            a(f'v_pk_fma_f32 v[{e}:{e+1}], v[{e}:{e+1}], v[{e+32}:{e+33}], v[{e+64}:{e+65}]')
        for j in range(4):
            e=LF+8*k+2*j
            a(f'v_cvt_pk_bf16_f32 v{LX+4*k+perm[j]}, v{e}, v{e+1}')
    for k in range(4):
        a(f'v_permlane16_swap_b32 v{LX+4*k}, v{LX+1+4*k}')
        a(f'v_permlane16_swap_b32 v{LX+2+4*k}, v{LX+3+4*k}')

NWO=4; NUP=4; NDN=2
tB=32; tRES=36; tOUT=40; tCS=64; tU=65; tUS=66; tFA=67; tFB=68; tT2=69
def gen_workers(a):
    a.label('work_start')
    a(f's_mov_b32 s{sSP}, 0')
    a(f's_cmp_lt_u32 s{sROLE}, 96')
    a('s_cbranch_scc1 qkv_start')
    a(f's_sub_u32 s{sIDX}, s{sROLE}, 96')
    rtstamp(a,0)
    a(f's_cmp_ge_u32 s{sIDX}, 128')
    a('s_cbranch_scc1 pre_init')
    a(f's_cmp_ge_u32 s{sIDX}, 96')
    a('s_cbranch_scc1 pre_ln')
    mod_body(a)
    a.label('pre_ln')
    a(f's_load_dwordx2 s[4:5], s[0:1], {KA["x"]}')
    ln_setup(a)
    a('s_waitcnt lgkmcnt(0)')
    srd(a,32,4,2<<20)
    a(f's_lshl_b32 s{sT2}, s{sIDX}, 14')
    ln_load_x(a,'s[32:35]',sT2)
    a('s_waitcnt vmcnt(0)')
    ln_stats(a)
    wait_dbg_wg(a,D_MODA,32,'ln1m')
    ln_load_mod(a,0,1)
    a('s_waitcnt vmcnt(0)')
    ln_apply(a)
    a(f's_lshl_b32 s{sT0}, s{sW}, 12')
    a(f's_add_u32 s{sT2}, s{sT2}, s{sT0}')
    a(f's_add_u32 s{sT2}, s{sT2}, {H1F}')
    for k in range(4):
        a(f'buffer_store_dwordx4 v[{LX+4*k}:{LX+3+4*k}], v3, {W}, s{sT2} offen offset:{k*1024} sc1')
    arrive_dbg(a,D_READY,'ln1a')
    a('s_branch pre_done')
    a.label('pre_init')
    a(f's_cmp_ge_u32 s{sIDX}, 144')
    a('s_cbranch_scc1 pre_done')
    a('v_mov_b64 v[4:5], 0'); a('v_mov_b64 v[6:7], 0')
    a('v_lshlrev_b32 v3, 4, v0')
    a(f's_sub_u32 s{sT0}, s{sIDX}, 128')
    a(f's_lshl_b32 s{sT0}, s{sT0}, 12')
    a(f's_lshl_b32 s{sT1}, s{sW}, 10')
    a(f's_add_u32 s{sT0}, s{sT0}, s{sT1}')
    a(f'buffer_store_dwordx4 v[4:7], v3, {W}, s{sT0} offen sc1')
    arrive_dbg(a,D_READY,'inia')
    a.label('pre_done')
    rtstamp(a,1)
    a(f's_cmp_lt_u32 s{sIDX}, 64')
    a('s_cbranch_scc1 wo_start')
    a(f's_cmp_ge_u32 s{sIDX}, 128')
    a('s_cbranch_scc1 dn_start')
    a('s_branch up_start')
    gen_ksplit(a,'wo'); gen_ksplit(a,'dn'); gen_up(a); gen_qkv(a)
    a.label('main_done')
    a('s_endpgm')

def gen_ksplit(a, which):
    L=which
    a.label(f'{L}_start')
    if which=='wo':
        NK=32; a_base=OF; a_rt=131072; gate=2; nset=NWO
        a(f's_load_dwordx2 s[4:5], s[0:1], {KA["Wo"]}')
        a(f's_load_dwordx2 s[6:7], s[0:1], {KA["x"]}')
        a(f's_bfe_u32 s{tU}, s{sIDX}, 0x10004')
        a(f's_lshl_b32 s{tU}, s{tU}, 1')
        a(f's_lshr_b32 s{sT0}, s{sIDX}, 5')
        a(f's_add_u32 s{tU}, s{tU}, s{sT0}')
        a('s_waitcnt lgkmcnt(0)')
        srd(a,tB,4,4<<20); srd(a,tRES,6,2<<20)
        res=srd4(tRES); res_off=0; res_sc=''; out=W; out_off=X1; out_sc=' sc1'
    else:
        NK=14; a_base=HH; a_rt=56*1024; gate=5; nset=NDN
        a(f's_load_dwordx2 s[4:5], s[0:1], {KA["wd"]}')
        a(f's_load_dwordx2 s[6:7], s[0:1], {KA["out"]}')
        a(f's_sub_u32 s{tU}, s{sIDX}, 128')
        a(f's_lshr_b32 s{tU}, s{tU}, 4')
        a('s_waitcnt lgkmcnt(0)')
        srd(a,tB,4,1792*1024); srd(a,tOUT,6,2<<20)
        res=W; res_off=X1; res_sc=' sc1'; out=srd4(tOUT); out_off=0; out_sc=''
    a(f's_and_b32 s{tCS}, s{sIDX}, 15')
    a('s_barrier')
    a('v_lshlrev_b32 v2, 4, v0')
    a('v_lshrrev_b32 v3, 2, v0')
    a('v_lshlrev_b32 v1, 10, v3')
    a('v_and_b32 v3, 3, v0')
    a('v_lshl_add_u32 v1, v3, 4, v1')
    a(f's_lshl_b32 s{sT0}, s{tCS}, 6')
    a(f'v_add_u32 v1, s{sT0}, v1')
    a(f's_lshl_b32 s{sLB}, s{sW}, 15')
    a('v_lshrrev_b32 v3, 2, v0')
    a('v_lshlrev_b32 v4, 6, v3')
    a('v_and_b32 v3, 3, v0')
    a('v_lshl_add_u32 v4, v3, 3, v4')
    a(f'v_add_u32 v4, s{sLB}, v4')
    a(f's_mul_i32 s{tT2}, s{sW}, {NK*32*1024}')
    def issue(kk):
        for i in range(2):
            a(f's_add_u32 m0, s{sLB}, {(kk%16)*2048+i*1024}')
            a(f's_add_u32 s{sT0}, s{tT2}, {(kk*32+i*16)*1024}')
            a(f'buffer_load_dwordx4 v1, {srd4(tB)}, s{sT0} offen lds')
    a('s_waitcnt vmcnt(0)')
    n0=min(16,NK)
    for kk in range(n0): issue(kk)
    o=2*n0
    for k0 in range(0,NK,2):
        a(f's_waitcnt vmcnt({o-4})'); o-=4
        for kk in (k0,k0+1):
            for tau in range(2):
                for i in range(2):
                    r=(kk*2+tau)*4+2*i
                    a(f'ds_read_b64_tr_b16 a[{r}:{r+1}], v4 offset:{(kk%16)*2048+i*1024+tau*32}')
        if k0+16<NK:
            a('s_waitcnt lgkmcnt(0)')
            issue(k0+16); issue(k0+17); o+=4
    wait_dbg_wg(a,D_READY,144,f'{L}rd')
    a('v_and_b32 v5, 15, v0')
    a('v_lshrrev_b32 v6, 4, v0')
    a('v_lshlrev_b32 v7, 10, v5')
    a('v_lshl_add_u32 v7, v6, 3, v7')
    a(f's_lshl_b32 s{sT0}, s{tCS}, 6')
    a(f's_and_b32 s{sT1}, s{sW}, 1')
    a(f's_lshl_b32 s{sT1}, s{sT1}, 5')
    a(f's_add_u32 s{sT0}, s{sT0}, s{sT1}')
    a(f'v_add_u32 v7, s{sT0}, v7')
    a('v_lshlrev_b32 v8, 4, v6')
    a(f's_lshl_b32 s{sT0}, s{sT0}, 1')
    a(f's_add_u32 s{sT0}, s{sT0}, {MOD+gate*2048}')
    a(f'buffer_load_dwordx4 v[12:15], v8, {W}, s{sT0} offen sc1')
    RED=0x20000
    a(f's_lshl_b32 s{sT0}, s{sW}, 11')
    a(f's_add_u32 s{sT0}, s{sT0}, {RED}')
    a(f'v_add_u32 v9, s{sT0}, v2')
    a(f's_lshl_b32 s{sT0}, s{sT1}, 5')
    a(f's_add_u32 s{sT0}, s{sT0}, {RED}')
    a(f'v_add_u32 v10, s{sT0}, v2')
    if which=='wo':
        a('v_and_b32 v11, 7, v0'); a('v_lshlrev_b32 v11, 2, v11')
        a(f's_lshl_b32 s{sT0}, s{sW}, 5'); a(f'v_add_u32 v11, s{sT0}, v11')
    else:
        a('v_min_u32 v11, 13, v0'); a('v_lshlrev_b32 v11, 2, v11')
    a('s_waitcnt vmcnt(0) lgkmcnt(0)')
    rtstamp(a,2)
    AF=128; ACC=16
    a.label(f'{L}_loop')
    if which=='wo':
        a(f's_lshr_b32 s{tFA}, s{tU}, 1'); a(f's_lshl_b32 s{tFA}, s{tFA}, 7'); a(f's_add_u32 s{tFA}, s{tFA}, {OFLAG}')
    else:
        a(f's_lshl_b32 s{tFA}, s{tU}, 7'); a(f's_add_u32 s{tFA}, s{tFA}, {HHFLAG}')
    a(f's_mul_i32 s{sT2}, s{tU}, {a_rt}')
    a(f's_mul_i32 s{sT1}, s{sW}, {NK*1024}')
    a(f's_add_u32 s{sT2}, s{sT2}, s{sT1}')
    a(f's_add_u32 s{sT2}, s{sT2}, {a_base}')
    a(f's_lshl_b32 s{tT2}, s{tU}, 14')
    a(f's_add_u32 s{sT1}, s{tT2}, {res_off}')
    wait_flags(a,tFA,0,11,L)
    for kk in range(NK):
        if kk and kk%4==0: a(f's_add_u32 s{sT2}, s{sT2}, 4096')
        a(f'buffer_load_dwordx4 v[{AF+4*kk}:{AF+4*kk+3}], v2, {W}, s{sT2} offen offset:{(kk%4)*1024} sc1')
    a(f'buffer_load_dwordx2 v[24:25], v7, {res}, s{sT1} offen{res_sc}')
    for kk in range(NK):
        a(f's_waitcnt vmcnt({NK-kk})')
        for tau in range(2):
            r=(kk*2+tau)*4; acc=ACC+4*tau
            c='0' if kk==0 else f'v[{acc}:{acc+3}]'
            a(f'v_mfma_f32_16x16x32_bf16 v[{acc}:{acc+3}], a[{r}:{r+3}], v[{AF+4*kk}:{AF+4*kk+3}], {c}')
    a(f'ds_write_b128 v9, v[{ACC}:{ACC+3}]')
    a(f'ds_write_b128 v9, v[{ACC+4}:{ACC+7}] offset:1024')
    a('s_waitcnt lgkmcnt(0)')
    a('s_barrier')
    R=32
    for w in range(4): a(f'ds_read_b128 v[{R+4*w}:{R+4*w+3}], v10 offset:{w*2048}')
    a('s_waitcnt lgkmcnt(0) vmcnt(0)')
    a('s_barrier')
    a(f's_cmp_ge_u32 s{sW}, 2')
    a(f's_cbranch_scc1 {L}_next')
    for r in range(4):
        a(f'v_add_f32 v{R+r}, v{R+r}, v{R+4+r}')
        a(f'v_add_f32 v{R+8+r}, v{R+8+r}, v{R+12+r}')
    for r in range(4): a(f'v_add_f32 v{R+r}, v{R+r}, v{R+8+r}')
    round_bf16_pair(a,R,R+1,26); round_bf16_pair(a,R+2,R+3,26)
    for r in range(4): a(f'v_mul_f32 v{R+r}, v{R+r}, v{12+r}')
    round_bf16_pair(a,R,R+1,26); round_bf16_pair(a,R+2,R+3,26)
    a('v_lshlrev_b32 v26, 16, v24'); a('v_and_b32 v27, 0xffff0000, v24')
    a('v_lshlrev_b32 v28, 16, v25'); a('v_and_b32 v29, 0xffff0000, v25')
    for r in range(4): a(f'v_add_f32 v{R+r}, v{R+r}, v{26+r}')
    a(f'v_cvt_pk_bf16_f32 v24, v{R}, v{R+1}')
    a(f'v_cvt_pk_bf16_f32 v25, v{R+2}, v{R+3}')
    a(f's_add_u32 s{sT1}, s{tT2}, {out_off}')
    a(f'buffer_store_dwordx2 v[24:25], v7, {out}, s{sT1} offen{out_sc}')
    if which=='wo':
        a(f's_lshl_b32 s{tFB}, s{tU}, 7'); a(f's_lshl_b32 s{sT0}, s{tCS}, 3'); a(f's_add_u32 s{tFB}, s{tFB}, s{sT0}')
        a(f's_lshl_b32 s{sT0}, s{sW}, 2'); a(f's_add_u32 s{tFB}, s{tFB}, s{sT0}'); a(f's_add_u32 s{tFB}, s{tFB}, {X1FLAG}')
        a('v_mov_b32 v127, 1')
        a('s_waitcnt vmcnt(0)')
        a('s_mov_b64 exec, 1')
        a(f'buffer_store_dword v127, off, {W}, s{tFB} sc1')
        a('s_mov_b64 exec, -1')
    a.label(f'{L}_next')
    a(f's_add_u32 s{tU}, s{tU}, {nset}')
    a(f's_cmp_lt_u32 s{tU}, 128')
    a(f's_cbranch_scc1 {L}_loop')
    rtstamp(a,3)
    a('s_branch main_done')

def gen_up(a):
    L='up'
    a.label('up_start')
    a(f's_sub_u32 s{tCS}, s{sIDX}, 64'); a(f's_mov_b32 s{tU}, 0')
    a(f's_cmp_lt_u32 s{tCS}, 14'); a('s_cbranch_scc1 up_go')
    a(f's_sub_u32 s{tCS}, s{sIDX}, 78'); a(f's_mov_b32 s{tU}, 1')
    a(f's_cmp_lt_u32 s{tCS}, 14'); a('s_cbranch_scc1 up_go')
    a(f's_sub_u32 s{tCS}, s{sIDX}, 96'); a(f's_mov_b32 s{tU}, 2')
    a(f's_cmp_lt_u32 s{tCS}, 14'); a('s_cbranch_scc1 up_go')
    a(f's_sub_u32 s{tCS}, s{sIDX}, 110'); a(f's_mov_b32 s{tU}, 3')
    a(f's_cmp_lt_u32 s{tCS}, 14'); a('s_cbranch_scc0 main_done')
    a.label('up_go')
    a(f's_load_dwordx4 s[4:7], s[0:1], {KA["wg"]}')
    a('s_waitcnt lgkmcnt(0)')
    srd(a,tB,4,512*3584); srd(a,tRES,6,512*3584)
    RS=3584
    a('s_barrier')
    a(f's_lshl_b32 s{sLB}, s{sW}, 15')
    a('v_bfe_u32 v2, v0, 2, 1'); a('v_bfe_u32 v3, v0, 4, 1'); a('v_lshl_add_u32 v2, v3, 1, v2')
    a('v_bfe_u32 v3, v0, 3, 1'); a('v_lshl_add_u32 v2, v3, 2, v2')
    a('v_bfe_u32 v3, v0, 5, 1'); a('v_lshl_add_u32 v2, v3, 3, v2')
    a(f'v_mul_u32_u24 v1, {RS}, v2')
    a('v_lshlrev_b32 v3, 1, v3'); a('v_xor_b32 v3, v3, v0'); a('v_and_b32 v3, 3, v3')
    a('v_lshl_add_u32 v1, v3, 4, v1')
    a(f's_lshl_b32 s{sT0}, s{tCS}, 8'); a(f's_lshl_b32 s{sT1}, s{sW}, 6'); a(f's_add_u32 s{sT0}, s{sT0}, s{sT1}')
    a(f'v_add_u32 v1, s{sT0}, v1')
    a('v_bfe_u32 v2, v0, 5, 1'); a('v_lshlrev_b32 v4, 10, v2')
    a('v_bfe_u32 v2, v0, 3, 1'); a('v_mul_u32_u24 v2, 544, v2'); a('v_add_u32 v4, v4, v2')
    a('v_bfe_u32 v2, v0, 4, 1'); a('v_lshl_add_u32 v4, v2, 7, v4')
    a('v_bfe_u32 v2, v0, 2, 1'); a('v_lshl_add_u32 v4, v2, 6, v4')
    a('v_and_b32 v2, 3, v0'); a('v_lshl_add_u32 v4, v2, 3, v4')
    a(f'v_add_u32 v4, s{sLB}, v4'); a('v_xor_b32 v5, 32, v4')
    def issue(u):
        X,j=u>>3,u&7
        for i in range(4):
            a(f's_add_u32 m0, s{sLB}, {j*4096+i*1024}')
            a(f's_mov_b32 s{sT0}, {(j*64+i*16)*RS}')
            a(f'buffer_load_dwordx4 v1, {srd4([tB,tRES][X])}, s{sT0} offen lds')
    a('s_waitcnt vmcnt(0)')
    for u in range(8): issue(u)
    o=32
    for u in range(16):
        X,j=u>>3,u&7
        a(f's_waitcnt vmcnt({o-4})'); o-=4
        for tau in range(2):
            b=X*128+(tau*8+j)*8
            for hh in range(2):
                for y in range(2):
                    a(f'ds_read_b64_tr_b16 a[{b+4*hh+2*y}:{b+4*hh+2*y+1}], v{4+tau} offset:{j*4096+hh*2048+y*256}')
        a('s_waitcnt lgkmcnt(0)')
        if u+8<16: issue(u+8); o+=4
    wait_dbg_wg(a,D_READY,144,'uprd')
    ln_setup(a)
    ln_load_mod(a,3,4)
    a('v_and_b32 v15, 7, v0'); a('v_lshlrev_b32 v15, 2, v15')
    a(f's_lshl_b32 s{sT0}, s{sW}, 5'); a(f'v_add_u32 v15, s{sT0}, v15')
    a(f's_lshl_b32 s{sT0}, s{sW}, 12'); a(f'v_add_u32 v2, s{sT0}, v3')
    a('s_waitcnt vmcnt(0)')
    a('v_mov_b32 v224, v127')
    rtstamp(a,2)
    AF=128; ACC=192
    a.label('up_loop')
    a(f's_lshl_b32 s{tFA}, s{tU}, 7'); a(f's_add_u32 s{tFA}, s{tFA}, {X1FLAG}')
    a(f's_lshl_b32 s{sT2}, s{tU}, 14'); a(f's_add_u32 s{sT2}, s{sT2}, {X1}')
    wait_flags(a,tFA,0,15,L)
    ln_load_x(a,W,sT2,' sc1')
    a('v_mov_b32 v127, v224')
    a('s_waitcnt vmcnt(0)')
    ln_fast(a)
    for k in range(4): a(f'ds_write_b128 v2, v[{LX+4*k}:{LX+3+4*k}] offset:{k*1024}')
    a('s_waitcnt lgkmcnt(0)')
    a('s_barrier')
    for kap in range(12): a(f'ds_read_b128 v[{AF+4*kap}:{AF+4*kap+3}], v3 offset:{kap*1024}')
    for kap in range(16):
        issued=min(16,12+kap)
        a(f's_waitcnt lgkmcnt({issued-kap-1})')
        t,hh=kap>>1,kap&1
        for X in range(2):
            for tau in range(2):
                b=X*128+(tau*8+t)*8+4*hh; acc=ACC+(X*2+tau)*4
                c='0' if kap==0 else f'v[{acc}:{acc+3}]'
                a(f'v_mfma_f32_16x16x32_bf16 v[{acc}:{acc+3}], a[{b}:{b+3}], v[{AF+4*kap}:{AF+4*kap+3}], {c}')
        if kap+12<16: a(f'ds_read_b128 v[{AF+4*(kap+12)}:{AF+4*(kap+12)+3}], v3 offset:{(kap+12)*1024}')
    for r in range(0,16,2): round_bf16_pair(a,ACC+r,ACC+r+1,10)
    for r in range(8): a(f'v_mul_f32 v{ACC+r}, v{ACC+r}, v{ACC+8+r}')
    for r in range(4): a(f'v_cvt_pk_bf16_f32 v{208+r}, v{ACC+2*r}, v{ACC+2*r+1}')
    a(f's_mul_i32 s{sT0}, s{tU}, {56*1024}')
    a(f's_lshl_b32 s{sT1}, s{tCS}, 12'); a(f's_add_u32 s{sT0}, s{sT0}, s{sT1}')
    a(f's_lshl_b32 s{sT1}, s{sW}, 10'); a(f's_add_u32 s{sT0}, s{sT0}, s{sT1}')
    a(f's_add_u32 s{sT0}, s{sT0}, {HH}')
    a(f'buffer_store_dwordx4 v[208:211], v3, {W}, s{sT0} offen sc1')
    a(f's_lshl_b32 s{tFB}, s{tU}, 7'); a(f's_lshl_b32 s{sT0}, s{tCS}, 2'); a(f's_add_u32 s{tFB}, s{tFB}, s{sT0}'); a(f's_add_u32 s{tFB}, s{tFB}, {HHFLAG}')
    a('s_waitcnt vmcnt(0)')
    a('s_barrier')
    set_flag(a,tFB,'uphh')
    a(f's_add_u32 s{tU}, s{tU}, {NUP}')
    a(f's_cmp_lt_u32 s{tU}, 128')
    a('s_cbranch_scc1 up_loop')
    rtstamp(a,3)
    a('s_branch main_done')

LEAD=int(os.environ.get('LEAD','4'))
wS=72; wBa=73; wBb=74; wA=75; wO=76; wPF=77; wOFL=78; wKFL=79; wC=80; wMASK=82; wNU=98; wEH=99
def gen_qkv(a):
    a.label('qkv_start')
    a(f's_sub_u32 s{sT0}, s{sROLE}, 32')
    a(f's_lshr_b32 s{sH}, s{sT0}, 1')
    a(f's_and_b32 s{sSLOT}, s{sT0}, 1')
    rtstamp(a,0)
    vL=8; vA=9
    a(f'v_lshlrev_b32 v{vL}, 4, v0')
    issue,consume=gen_loader(a,'wk',False)
    for u in range(8): issue(u)
    out=32
    for u in range(24):
        a(f's_waitcnt vmcnt({out-4})'); out-=4
        consume(u)
        a('s_waitcnt lgkmcnt(0)')
        if u+8<24: issue(u+8); out+=4
    rtstamp(a,1)
    wait_dbg_wg(a,D_READY,144,'qkrd')
    rtstamp(a,2)
    def dma(seg_s, buf_s):
        a(f's_min_u32 s{sT0}, s{seg_s}, 63')
        a(f's_lshl_b32 s{sT0}, s{sT0}, 15')
        a(f's_lshl_b32 s{sT1}, s{sW}, 13')
        a(f's_add_u32 s{sT0}, s{sT0}, s{sT1}')
        a(f's_add_u32 s{sT0}, s{sT0}, {H1F}')
        a(f's_add_u32 s{sT1}, s{sT1}, s{buf_s}')
        for hf in range(2):
            a(f's_add_u32 m0, s{sT1}, {hf*4096}')
            if hf: a(f's_add_u32 s{sT0}, s{sT0}, 4096')
            for i in range(4):
                a(f'buffer_load_dwordx4 v{vL}, {W}, s{sT0} offen offset:{i*1024} sc1 lds')
    a(f's_mov_b32 s{wS}, s{sSLOT}')
    a(f's_sub_u32 s{wA}, s{sSLOT}, {2*LEAD}')
    a(f's_mov_b32 s{wBa}, 0'); a(f's_mov_b32 s{wBb}, 0x8000')
    dma(wS,wBa)
    a(f's_and_b32 s{wNU}, s{sW}, 1')
    a(f's_lshr_b32 s{wEH}, s{sW}, 1')
    a(f's_mov_b32 s{wC}, 0x3e0293ee')
    a('v_and_b32 v1, 15, v0')
    a('v_lshrrev_b32 v2, 4, v0')
    a('v_lshlrev_b32 v3, 2, v2')
    a('v_sub_u32 v3, v3, v1')
    a(f's_lshl_b32 s{sT0}, s{wNU}, 4')
    a(f'v_subrev_u32 v3, s{sT0}, v3')
    for mu in range(2):
        for r in range(4):
            a(f'v_cmp_ge_i32 vcc, {-(r+16*mu)}, v3')
            a(f's_mov_b64 s[{wMASK+2*(4*mu+r)}:{wMASK+2*(4*mu+r)+1}], vcc')
    vKMo=10; ONES=12; NEG=11
    a('v_lshrrev_b32 v3, 2, v1')
    a(f'v_lshlrev_b32 v{vKMo}, 8, v3')
    a(f'v_lshl_add_u32 v{vKMo}, v2, 6, v{vKMo}')
    a('v_and_b32 v3, 1, v1')
    a(f'v_lshl_add_u32 v{vKMo}, v3, 2, v{vKMo}')
    for i in range(4): a(f'v_mov_b32 v{ONES+i}, 0x3f803f80')
    a(f'v_mov_b32 v{NEG}, 0xf149f2ca')
    a(f's_mov_b32 s{wOFL}, 0')
    ACC=16; HW=64
    LA_=0x10000
    KMr=96; VMr=112; FL=116; wRDY=81
    a(f's_lshl_b32 s{sT0}, s{wNU}, 12')
    a(f's_add_u32 s{sT0}, s{sT0}, {LA_}')
    a(f'v_add_u32 v4, s{sT0}, v{vL}')
    a(f'v_add_u32 v5, {LA_+8192}, v{vL}')
    a(f's_lshl_b32 s{sT0}, s{wEH}, 12')
    a(f's_add_u32 s{sT0}, s{sT0}, {LA_+16384}')
    a(f'v_add_u32 v6, s{sT0}, v{vL}')
    a(f's_lshl_b32 s{wPF+24}, s{sH}, 7')
    a(f's_add_u32 s{wPF+24}, s{wPF+24}, {RECFLAG}')
    wRF=wPF+24
    def km_loads():
        a(f's_lshr_b32 s{sT0}, s{wO}, 1')
        a(f's_add_u32 s{sT0}, s{sT0}, {KM}')
        for u in range(4):
            for d in range(4):
                a(f'buffer_load_dword v{KMr+4*u+d}, v{vKMo}, {W}, s{sT0} offen offset:{u*1024+d*16} sc1')
        a(f's_lshl_b32 s{sT1}, s{wEH}, 11')
        a(f's_add_u32 s{sT0}, s{sT0}, s{sT1}')
        a(f's_add_u32 s{sT0}, s{sT0}, {1<<17}')
        for z in range(2):
            a(f'buffer_load_dwordx2 v[{VMr+2*z}:{VMr+2*z+1}], v{vL}, {W}, s{sT0} offen offset:{z*1024+8} sc1')
    a('s_waitcnt vmcnt(0)')
    a.label('qa_loop')
    a('s_barrier')
    a(f's_mov_b32 s{wRDY}, 0')
    a(f's_mov_b32 s{wKFL}, -1')
    a(f's_cmp_ge_i32 s{wA}, 64')
    a('s_cbranch_scc1 qa_noq')
    a(f's_max_i32 s{sT2}, s{wA}, 0')
    a(f's_lshl_b32 s{wO}, s{sT2}, 18')
    a(f's_lshl_b32 s{sT1}, s{sH}, 13')
    a(f's_add_u32 s{wO}, s{wO}, s{sT1}')
    a(f'buffer_load_dword v{FL}, off, {W}, s{wRF} sc1')
    a(f's_lshl_b32 s{sT1}, s{sW}, 11')
    a(f's_add_u32 s{sT2}, s{wO}, s{sT1}')
    for X,base in enumerate((QF_,KF,VF)):
        a(f's_add_u32 m0, s{sT1}, {LA_+X*8192}')
        a(f's_add_u32 s{sT0}, s{sT2}, {base}')
        for i in range(2):
            a(f'buffer_load_dwordx4 v{vL}, {W}, s{sT0} offen offset:{i*1024} sc1 lds')
    a(f's_cmp_ge_u32 s{wS}, 64')
    a('s_cbranch_scc1 qa_noq')
    a(f's_add_u32 s{wPF}, s{wS}, 2')
    dma(wPF,wBb)
    a(f'v_add_u32 v{vA}, s{wBa}, v{vL}')
    frs=[(kap,mu) for kap in range(16) for mu in range(2)]
    def rd(i):
        kap,mu=frs[i]; b=HW+4*(i%8)
        return f'ds_read_b128 v[{b}:{b+3}], v{vA} offset:{mu*16384+kap*1024}'
    for i in range(6): a(rd(i))
    for i,(kap,mu) in enumerate(frs):
        issued=min(6+i,32)
        a(f's_waitcnt lgkmcnt({issued-i-1})')
        hb=HW+4*(i%8); t,hh=kap>>1,kap&1
        for X in range(3):
            for tau in range(2):
                k,b=wreg(X,tau,t); b+=4*hh
                acc=ACC+((X*2+tau)*2+mu)*4
                c='0' if kap==0 else f'v[{acc}:{acc+3}]'
                wf=f'{k}[{b}:{b+3}]'; hf=f'v[{hb}:{hb+3}]'
                if X<2: a(f'v_mfma_f32_16x16x32_bf16 v[{acc}:{acc+3}], {wf}, {hf}, {c}')
                else:   a(f'v_mfma_f32_16x16x32_bf16 v[{acc}:{acc+3}], {hf}, {wf}, {c}')
                if X==0 and tau==1 and 6+i<32: a(rd(6+i))
        if i==8:
            a('s_waitcnt vmcnt(14)')
            a('s_barrier')
            a(f's_cmp_eq_u32 s{wOFL}, 0')
            a('s_cbranch_scc1 qaof_nf')
            set_flag(a,wOFL,'qaof')
            a(f's_mov_b32 s{wOFL}, 0')
            a(f'v_readfirstlane_b32 s{sT1}, v{FL}')
            a(f's_cmp_gt_i32 s{sT1}, s{wA}')
            a('s_cbranch_scc0 qa_nokm')
            a(f's_mov_b32 s{wRDY}, 1')
            km_loads()
            a.label('qa_nokm')
    a(f's_lshl_b32 s{sT0}, s{wS}, 18')
    a(f's_lshl_b32 s{sT1}, s{sH}, 13')
    a(f's_add_u32 s{sT0}, s{sT0}, s{sT1}')
    a(f's_lshl_b32 s{sT1}, s{sW}, 10')
    a(f's_add_u32 s{sT2}, s{sT0}, s{sT1}')
    a(f's_add_u32 s{sT3}, s{sT2}, s{sT1}')
    a('s_waitcnt vmcnt(0)')
    for X,base in ((1,KF),(0,QF_)):
        for mu in range(2):
            a0=ACC+((X*2+0)*2+mu)*4; a1=ACC+((X*2+1)*2+mu)*4
            for r in range(4): a(f'v_cvt_pk_bf16_f32 v{a0+r}, v{a0+r}, v{a1+r}')
            a(f's_add_u32 s{sT0}, s{sT2}, {base+mu*4096}')
            a(f'buffer_store_dwordx4 v[{a0}:{a0+3}], v{vL}, {W}, s{sT0} offen'+(' sc1' if X else ''))
    a(f's_add_u32 s{sT0}, s{sT3}, {VF}')
    for tau in range(2):
        a0=ACC+((4+tau)*2+0)*4; a1=ACC+((4+tau)*2+1)*4
        a(f'v_cvt_pk_bf16_f32 v{a0}, v{a0}, v{a0+1}'); a(f'v_cvt_pk_bf16_f32 v{a0+1}, v{a0+2}, v{a0+3}')
        a(f'v_cvt_pk_bf16_f32 v{a0+2}, v{a1}, v{a1+1}'); a(f'v_cvt_pk_bf16_f32 v{a0+3}, v{a1+2}, v{a1+3}')
        a(f'buffer_store_dwordx4 v[{a0}:{a0+3}], v{vL}, {W}, s{sT0} offen offset:{tau*1024} sc1')
    a(f's_lshl_b32 s{wKFL}, s{sH}, 8')
    a(f's_lshl_b32 s{sT1}, s{wS}, 2')
    a(f's_add_u32 s{wKFL}, s{wKFL}, s{sT1}')
    a(f's_mov_b32 s{sT0}, s{wBa}'); a(f's_mov_b32 s{wBa}, s{wBb}'); a(f's_mov_b32 s{wBb}, s{sT0}')
    a(f's_add_u32 s{wS}, s{wS}, 2')
    a('s_barrier')
    a('s_branch qa_att')
    a.label('qa_noq')
    a(f's_cmp_ge_i32 s{wA}, 64')
    a('s_cselect_b32 s4, 0, 7')
    a('s_cbranch_scc1 qa_nq0')
    a('s_waitcnt vmcnt(7)')
    a('s_branch qa_nq1')
    a.label('qa_nq0')
    a('s_waitcnt vmcnt(0)')
    a.label('qa_nq1')
    a('s_barrier')
    set_flag(a,wOFL,'qaof2')
    a(f's_cmp_ge_i32 s{wA}, 64')
    a('s_cbranch_scc1 qa_end')
    a('s_waitcnt vmcnt(1)')
    a(f's_cmp_eq_u32 s{sW}, 0')
    a('s_cbranch_scc1 qa_nq2')
    a('s_waitcnt vmcnt(0)')
    a.label('qa_nq2')
    a('s_barrier')
    a.label('qa_att')
    a(f's_cmp_lt_i32 s{wA}, 0')
    a('s_cbranch_scc0 qa_att2')
    a('s_waitcnt vmcnt(0)')
    a('s_barrier')
    set_flag(a,wKFL,'qakf0')
    a(f's_add_u32 s{wA}, s{wA}, 2')
    a('s_branch qa_loop')
    a.label('qa_att2')
    Q=64; K=16; V=80; SX=48; SM=56; LA=60; PX=120; PM=124; T=118
    OA=16; VMp=32; OUT=40
    for u in range(4): a(f'ds_read_b128 v[{Q+4*u}:{Q+4*u+3}], v4 offset:{u*1024}')
    for f in range(8): a(f'ds_read_b128 v[{K+4*f}:{K+4*f+3}], v5 offset:{f*1024}')
    a('s_waitcnt lgkmcnt(4)')
    for t in range(4): a(f'ds_read_b128 v[{V+4*t}:{V+4*t+3}], v6 offset:{t*1024}')
    for mu in range(2):
        if mu: a('s_waitcnt lgkmcnt(4)')
        for u in range(4):
            c='0' if u==0 else f'v[{SX+4*mu}:{SX+4*mu+3}]'
            a(f'v_mfma_f32_16x16x32_bf16 v[{SX+4*mu}:{SX+4*mu+3}], v[{K+16*mu+4*u}:{K+16*mu+4*u+3}], v[{Q+4*u}:{Q+4*u+3}], {c}')
    for i in range(8):
        a(f'v_cndmask_b32 v{SX+i}, v{NEG}, v{SX+i}, s[{wMASK+2*i}:{wMASK+2*i+1}]')
    a(f'v_max3_f32 v{T}, v{SX}, v{SX+1}, v{SX+2}')
    a(f'v_max3_f32 v{T+1}, v{SX+3}, v{SX+4}, v{SX+5}')
    a(f'v_max3_f32 v{T}, v{T}, v{SX+6}, v{SX+7}')
    a(f'v_max_f32 v{T}, v{T}, v{T+1}')
    a(f's_cmp_lt_i32 s{wKFL}, 0')
    a('s_cbranch_scc1 qakf1_nf')
    a('s_waitcnt vmcnt(0)')
    a('s_barrier')
    set_flag(a,wKFL,'qakf1',wave=3)
    a(f's_cmp_eq_u32 s{wRDY}, 1')
    a('s_cbranch_scc1 att_have')
    a.label('att_poll')
    a(f'buffer_load_dword v{FL}, off, {W}, s{wRF} sc1')
    a(f's_add_u32 s{sSP}, s{sSP}, 1')
    a('s_waitcnt vmcnt(0)')
    a(f'v_readfirstlane_b32 s{sT1}, v{FL}')
    a(f's_cmp_gt_u32 s{sT1}, s{wA}')
    a('s_cbranch_scc1 att_go')
    a(f's_cmp_gt_u32 s{sSP}, {SPIN_MAX}')
    a('s_cbranch_scc1 att_go')
    a('s_sleep 1')
    a('s_branch att_poll')
    a.label('att_go')
    km_loads()
    a('s_waitcnt vmcnt(0)')
    a.label('att_have')
    for u in range(4):
        c='0' if u==0 else f'v[{SM}:{SM+3}]'
        a(f'v_mfma_f32_16x16x32_bf16 v[{SM}:{SM+3}], v[{KMr+4*u}:{KMr+4*u+3}], v[{Q+4*u}:{Q+4*u+3}], {c}')
    for t in range(4):
        a(f'v_mov_b32 v{VMp+2*t}, v{VMr+t}')
        a(f'v_mov_b32 v{VMp+2*t+1}, 0')
    a(f'v_max3_f32 v{T}, v{T}, v{SM}, v{SM+1}')
    xlane_reduce(a,'v_max_f32',T,T+1)
    a(f'v_mul_f32 v{T}, s{wC}, v{T}')
    scs=[SX+i for i in range(8)]+[SM,SM+1]
    for r in scs: a(f'v_fma_f32 v{r}, v{r}, s{wC}, -v{T}')
    for r in scs: a(f'v_exp_f32 v{r}, v{r}')
    for i in range(4): a(f'v_cvt_pk_bf16_f32 v{PX+i}, v{SX+2*i}, v{SX+2*i+1}')
    a(f'v_cvt_pk_bf16_f32 v{PM}, v{SM}, v{SM+1}')
    a(f'v_mov_b32 v{PM+1}, 0')
    a('s_waitcnt lgkmcnt(0)')
    a(f'v_mfma_f32_16x16x32_bf16 v[{LA}:{LA+3}], v[{ONES}:{ONES+3}], v[{PX}:{PX+3}], 0')
    for t in range(4):
        a(f'v_mfma_f32_16x16x32_bf16 v[{OA+4*t}:{OA+4*t+3}], v[{V+4*t}:{V+4*t+3}], v[{PX}:{PX+3}], 0')
    a(f'v_mfma_f32_16x16x16_bf16 v[{LA}:{LA+3}], v[{ONES}:{ONES+1}], v[{PM}:{PM+1}], v[{LA}:{LA+3}]')
    for t in range(4):
        a(f'v_mfma_f32_16x16x16_bf16 v[{OA+4*t}:{OA+4*t+3}], v[{VMp+2*t}:{VMp+2*t+1}], v[{PM}:{PM+1}], v[{OA+4*t}:{OA+4*t+3}]')
    a(f's_lshl_b32 s{sT0}, s{wA}, 18')
    a(f's_lshl_b32 s{sT1}, s{wNU}, 17')
    a(f's_add_u32 s{sT0}, s{sT0}, s{sT1}')
    a(f's_lshl_b32 s{sT1}, s{sH}, 12')
    a(f's_add_u32 s{sT0}, s{sT0}, s{sT1}')
    a(f's_lshl_b32 s{sT1}, s{wEH}, 11')
    a(f's_add_u32 s{sT0}, s{sT0}, s{sT1}')
    a(f's_add_u32 s{sT0}, s{sT0}, {OF}')
    a(f'v_rcp_f32 v{LA}, v{LA}')
    for i in range(16): a(f'v_mul_f32 v{OA+i}, v{OA+i}, v{LA}')
    for i in range(8): a(f'v_cvt_pk_bf16_f32 v{OUT+i}, v{OA+2*i}, v{OA+2*i+1}')
    for z in range(2):
        a(f'buffer_store_dwordx4 v[{OUT+4*z}:{OUT+4*z+3}], v{vL}, {W}, s{sT0} offen offset:{z*1024} sc1')
    a(f's_lshl_b32 s{wOFL}, s{wA}, 7')
    a(f's_lshl_b32 s{sT1}, s{sH}, 2')
    a(f's_add_u32 s{wOFL}, s{wOFL}, s{sT1}')
    a(f's_add_u32 s{wOFL}, s{wOFL}, {OFLAG}')
    a(f's_add_u32 s{wA}, s{wA}, 2')
    a('s_branch qa_loop')
    a.label('qa_end')
    rtstamp(a,3)
    a('s_branch main_done')
```

```python
import sys
from common import *
import k_main, k_rec, k_work
HEADER=open('cdna_kernels/'+NAME+'.s.ref').read().split('; Override launch')[0]
def build(out, stamps=False, aslist=True):
    a=Asm()
    L=NAME+'_kernel'
    k_main.gen_common(a,L)
    k_rec.gen_rec(a,stamps)
    k_work.gen_workers(a)
    body=a.finalize(verbose=True)
    txt=HEADER
    if aslist: txt+=f'; @launch kernel={L} grid=(256,1,1) block=(256,1,1) lds=163840\n'
    else: txt+='; @launch grid=(256,1,1) block=(256,1,1) lds=163840\n'
    txt+='.amdgcn_target "amdgcn-amd-amdhsa--gfx950"\n.text\n'+body
    txt+='.section .rodata,"a"\n'+kernel_desc(L,512,102,256)
    open(out,'w').write(txt)
if __name__=='__main__':
    build(sys.argv[1], 'stamps' in sys.argv[2:], 'final' not in sys.argv[2:])
```

```python
import re

TRANS = ('v_exp_f32','v_log_f32','v_rcp_f32','v_rsq_f32','v_sqrt_f32','v_sin_f32','v_cos_f32','v_rcp_iflag_f32')

def parse_reg(tok):
    tok = tok.strip()
    neg = tok.startswith('-')
    if neg: tok = tok[1:]
    if tok.startswith('abs(') or tok.startswith('|'):
        tok = tok.strip('|')
        if tok.startswith('abs('): tok = tok[4:-1]
    m = re.fullmatch(r'([vas])(\d+)', tok)
    if m: return [(m.group(1), int(m.group(2)))]
    m = re.fullmatch(r'([vas])\[(\d+):(\d+)\]', tok)
    if m: return [(m.group(1), i) for i in range(int(m.group(2)), int(m.group(3))+1)]
    if tok == 'vcc': return [('vcc',0)]
    if tok in ('vcc_lo','vcc_hi'): return [('vcc',0)]
    if tok in ('exec','exec_lo','exec_hi'): return [('exec',0)]
    if tok == 'm0': return [('m0',0)]
    return []

class Ins:
    __slots__=('text','mn','ops','kind','wr','rd','passes','srcc','ab','dpp','ldst','sdata','target','is_label','states','lds_dma')
    def __init__(s, text):
        s.text=text; s.is_label=False; s.target=None; s.states=1
        s.wr=set(); s.rd=set(); s.passes=0; s.srcc=None; s.ab=set(); s.dpp=False; s.ldst=set(); s.sdata=set(); s.lds_dma=False
        code = text.split(';')[0].strip()
        if code.endswith(':'):
            s.is_label=True; s.mn=code[:-1]; s.kind='label'; s.states=0; return
        if not code or code.startswith('.'):
            s.mn=''; s.kind='dir'; s.states=0; return
        parts = code.split(None,1)
        mn = parts[0]; s.mn=mn
        rest = parts[1] if len(parts)>1 else ''
        ops=[]; cur=''; depth=0
        for ch in rest:
            if ch in '[(': depth+=1
            if ch in '])': depth-=1
            if ch==',' and depth==0: ops.append(cur.strip()); cur=''
            else: cur+=ch
        if cur.strip(): ops.append(cur.strip())
        mods=''
        if ops:
            sp = ops[-1].split(None,1)
            ops[-1]=sp[0]; mods = sp[1] if len(sp)>1 else ''
        s.ops=ops
        R=[parse_reg(o) for o in ops]
        if mn.startswith('v_mfma') or mn.startswith('v_smfmac'):
            s.kind='mfma'
            s.passes = 8 if '32x32' in mn else (2 if '4x4x4' in mn else 4)
            s.wr=set(R[0]); s.ab=set(R[1])|set(R[2])
            if mn.startswith('v_smfmac'):
                s.srcc=tuple(R[0]); s.ab|=set(R[3])
            else:
                s.srcc=tuple(R[3]) if R[3] else None
            s.rd=set(s.ab)|set(s.srcc or ())
        elif mn.startswith('v_'):
            s.kind='valu'
            s.dpp = ('row_' in mods) or ('quad_perm' in mods) or mn.endswith('_dpp') or 'wave_' in mods
            if mn.startswith('v_cmp'):
                s.wr=set(R[0]);
                for r in R[1:]: s.rd|=set(r)
            elif mn.startswith('v_permlane') or mn.startswith('v_swap'):
                s.wr=set(R[0])|set(R[1]); s.rd=set(s.wr)
            elif mn in ('v_add_co_u32','v_sub_co_u32','v_addc_co_u32','v_subb_co_u32','v_mad_u64_u32','v_div_scale_f32'):
                s.wr=set(R[0])|set(R[1])
                for r in R[2:]: s.rd|=set(r)
            elif mn=='v_nop':
                pass
            else:
                s.wr=set(R[0])
                for r in R[1:]: s.rd|=set(r)
                if mn.startswith('v_fmac') or mn.startswith('v_dot2c') or mn.startswith('v_writelane') or s.dpp: s.rd|=set(R[0])
                if mn.startswith('v_cndmask') and len(ops)==3: s.rd.add(('vcc',0))
        elif mn.startswith('buffer_') or mn.startswith('global_'):
            s.kind='vmem'
            allr=set()
            for r in R: allr|=set(r)
            if ' lds' in (' '+mods) or 'load_lds' in mn:
                s.lds_dma=True; s.rd=allr|{('m0',0)}
            elif '_load' in mn:
                s.ldst=set(R[0]); s.wr=set(R[0]);
                for r in R[1:]: s.rd|=set(r)
            elif 'atomic' in mn:
                s.rd=allr
                if 'sc0' in mods: s.ldst=set(R[0]); s.wr=set(R[0])
            elif '_store' in mn:
                s.rd=allr
                d = R[0] if mn.startswith('buffer_') else R[1]
                if len(d)>=3: s.sdata=set(d)
            else:
                s.rd=allr
        elif mn.startswith('ds_'):
            s.kind='ds'
            if 'read' in mn or 'permute' in mn or 'swizzle' in mn or '_rtn' in mn:
                s.ldst=set(R[0]); s.wr=set(R[0])
                for r in R[1:]: s.rd|=set(r)
            else:
                for r in R: s.rd|=set(r)
        elif mn.startswith('s_'):
            if mn=='s_nop':
                s.kind='nop'; s.states=int(ops[0],0)+1
            elif mn.startswith('s_cbranch') or mn=='s_branch':
                s.kind='branch'; s.target=ops[0]
            elif mn in ('s_waitcnt','s_barrier','s_endpgm','s_sleep','s_setprio'):
                s.kind='other'
            elif mn.startswith('s_load') or mn.startswith('s_buffer_load') or mn.startswith('s_mem'):
                s.kind='smem'; s.wr=set(R[0])
                for r in R[1:]: s.rd|=set(r)
            elif mn.startswith('s_cmp') or mn.startswith('s_bitcmp'):
                s.kind='salu'
                for r in R: s.rd|=set(r)
            else:
                s.kind='salu'; s.wr=set(R[0]) if R else set()
                for r in R[1:]: s.rd|=set(r)
                if 'saveexec' in mn: s.wr.add(('exec',0))
        else:
            raise ValueError('unknown instr '+text)

def need(P, C):
    n=0
    if P.kind=='valu':
        vw={r for r in P.wr if r[0] in 'va' }
        sw={r for r in P.wr if r[0] in ('s','vcc')}
        if C.kind=='mfma' and vw & C.rd: n=max(n,2)
        if C.kind=='valu':
            if P.mn in TRANS and (vw & (C.rd|C.wr)) : n=max(n,1)
            if (C.mn.startswith('v_permlane') or C.dpp) and vw & C.rd: n=max(n,2)
            if (C.mn.startswith('v_readlane') or C.mn.startswith('v_readfirstlane')) and vw & C.rd: n=max(n,1)
            if sw & C.rd:
                n=max(n, 4 if (C.mn.startswith('v_readlane') or C.mn.startswith('v_writelane')) else 2)
        if P.mn in TRANS and C.kind in ('vmem','ds') and vw & C.rd: n=max(n,1)
        if C.kind=='vmem' and sw & C.rd: n=max(n,5)
        if C.kind in('salu','smem') and sw & C.rd: n=max(n,1)
        if ('exec',0) in P.wr: n=max(n,5)
    elif P.kind=='mfma':
        big={2:5,4:8,8:12}[P.passes]; mid={2:4,4:6,8:10}[P.passes]; war={2:1,4:3,8:7}[P.passes]
        D=P.wr
        if C.kind=='mfma':
            if D & C.ab: n=max(n,big)
            if C.srcc and D & set(C.srcc):
                if set(C.srcc)==D and C.passes==P.passes: n=max(n, 2 if P.passes==2 else 0)
                else: n=max(n,mid)
            elif D & C.wr and not (C.wr==D and C.passes==P.passes): n=max(n,mid)
        elif C.kind=='valu':
            if D & (C.rd|C.wr): n=max(n,big)
            if P.srcc and set(P.srcc) & C.wr: n=max(n,war)
        elif C.kind in ('vmem','ds'):
            if D & (C.rd|C.ldst): n=max(n,big)
    elif P.kind=='salu':
        if ('m0',0) in P.wr and C.lds_dma: n=max(n,1)
    elif P.kind=='vmem':
        if P.sdata:
            if C.kind=='valu' and P.sdata & C.wr: n=max(n,2)
            elif P.sdata & C.wr: n=max(n,1)
    return n

class Asm:
    def __init__(s):
        s.lines=[]; s._lab=0
    def __call__(s, text):
        for t in text.split('\n'):
            t=t.strip()
            if t: s.lines.append(t)
    def label(s, name): s.lines.append(name+':')
    def newlabel(s, base='L'):
        s._lab+=1; return f'{base}_{s._lab}'
    def comment(s, t): s.lines.append('; '+t)
    def finalize(s, verbose=False):
        ins=[Ins(t) for t in s.lines]
        WIN=22
        total_added=0
        for it in range(6):
            saved={}
            prev_saved = getattr(s,'_saved',{})
            out=[]; state=[]
            added=0
            busy=0
            for I in ins:
                if I.is_label:
                    for src in (saved.get(I.mn,[]), prev_saved.get(I.mn,[])):
                        state = state + [list(x) for x in src]
                    busy=0
                    out.append(I); continue
                if I.kind=='dir':
                    out.append(I); continue
                req=0
                if I.kind=='mfma' and busy>0:
                    for e in state:
                        if e[2]: e[1]+=busy
                    busy=0
                for P,d,_ in state:
                    k=need(P,I)-d
                    if k>req: req=k
                if req>0:
                    r=req
                    while r>0:
                        c=min(r,16)
                        out.append(Ins(f's_nop {c-1}  ; hz'))
                        r-=c
                    for e in state: e[1]+=req
                    busy=max(0,busy-req)
                    added+=1
                out.append(I)
                busy = (I.passes-1) if I.kind=='mfma' else max(0,busy-I.states)
                for e in state: e[1]+=I.states
                state=[e for e in state if e[1]<WIN]
                if I.kind in ('valu','mfma','salu','vmem'):
                    state.append([I,0,False])
                if I.kind=='mfma':
                    for e in state: e[2]=True
                if I.kind=='branch':
                    saved.setdefault(I.target,[]).extend([list(e) for e in state])
                    if I.mn=='s_branch': state=[]
                if I.mn=='s_endpgm': state=[]
            ins=out; s._saved=saved; total_added+=added
            if added==0 and it>0: break
        if verbose: print('hazard nops inserted:', total_added)
        res=[]
        for I in ins:
            if I.is_label or I.kind=='dir': res.append(I.text)
            else: res.append('    '+I.text)
        return '\n'.join(res)+'\n'

def vr(base, n=1, k='v'):
    return f'{k}{base}' if n==1 else f'{k}[{base}:{base+n-1}]'
def ar(base, n=1): return vr(base,n,'a')
def sr(base, n=1): return vr(base,n,'s')


import subprocess, tempfile, os
def align_pass(body):
    with tempfile.TemporaryDirectory() as d:
        open(d+'/a.s','w').write('.amdgcn_target "amdgcn-amd-amdhsa--gfx950"\n.text\n'+body)
        subprocess.check_call(['clang','-x','assembler','-target','amdgcn-amd-amdhsa','-mcpu=gfx950','-c',d+'/a.s','-o',d+'/a.o'])
        dis=subprocess.check_output(['llvm-objdump','-d','--mcpu=gfx950',d+'/a.o']).decode()
    enc=[]
    for l in dis.split('\n'):
        m=re.search(r'^\s+(\S+).*// ([0-9A-F]{12}): ([0-9A-F ]+)$', l)
        if m: enc.append((m.group(1), int(m.group(2),16), 4*len(m.group(3).split())))
    lines=body.split('\n')
    out=list(lines); k=0; addr=0; cand=None; promoted=0; left=0
    for idx,l in enumerate(lines):
        code=l.split(';')[0].strip()
        if not code or code.endswith(':'): continue
        if code.startswith('.'):
            if code.startswith('.p2align'):
                al=1<<int(code.split()[1])
                while k<len(enc) and enc[k][1]%al!=0: k+=1
                addr=0; cand=None
            continue
        mn,_,size=enc[k]; k+=1
        assert mn.replace('_e32','').replace('_e64','').replace('_dpp','')==code.split()[0].replace('_e32','').replace('_e64','').replace('_dpp',''), (mn,code)
        if size==4:
            if mn.endswith('_e32') and not mn.startswith('v_permlane') and not mn.startswith('v_readfirstlane') and not mn.startswith('v_accvgpr') and not mn.startswith('v_fmac') and not mn.startswith('v_nop'):
                cand=idx
            addr+=4
        else:
            if addr%8==4:
                if cand is not None:
                    p=out[cand].strip().split(None,1)
                    out[cand]='    '+p[0]+'_e64 '+p[1]
                    addr+=4; promoted+=1
                else: left+=1
            cand=None
            addr+=size
    print('align: promoted',promoted,'still misaligned',left)
    return '\n'.join(out)
```

```python
from common import *
import os

sWS=24; sDBG=28; sWQ=32; sWK=36; sWV=40; sWO=44; sM0=48
sMODE=52; sROLE=53; sW=54; sH=55; sSLOT=56; sXCC=57; sLB=58; sT0=59; sT1=60; sT2=61; sT3=62
sMB=3; MBOX=0x18000
sKT=64
L_M=0x0; L_K=0x2000; L_V=0x4000; L_QK=0x6000; L_SEL=0x7400; L_WO=0x8000
QK_RS=544
SPIN_MAX=1<<22
QORD=[[0,1,2,3],[1,0,2,3],[2,0,1,3],[3,0,1,2]]

def srd4(b): return f's[{b}:{b+3}]'

def interleave(a, main, side, start=0, per=1):
    side=list(side)
    for k,m in enumerate(main):
        a(m)
        if k>=start:
            for _ in range(per):
                if side: a(side.pop(0))
    for s_ in side: a(s_)


def wreg(X, tau, j):
    off=(tau*8+j)*8
    return ('a',X*128+off) if X<2 else ('v',128+off)

def gen_common(a, label):
    kernel_head(a,label)
    a('s_cmp_ge_u32 s2, 256')
    a('s_cbranch_scc1 main_done')
    a(f's_load_dwordx8 s[8:15], s[0:1], {KA["mem0"]}')
    a(f's_load_dwordx2 s[16:17], s[0:1], {KA["Wo"]}')
    a(f's_load_dwordx4 s[20:23], s[0:1], {KA["dbg"]}')
    a(f's_getreg_b32 s{sXCC}, hwreg(HW_REG_XCC_ID)')
    a(f's_and_b32 s{sXCC}, s{sXCC}, 7')
    a('v_lshrrev_b32 v1, 6, v0')
    a(f'v_readfirstlane_b32 s{sW}, v1')
    a('v_and_b32 v0, 63, v0')
    a('s_waitcnt lgkmcnt(0)')
    srd(a,sWS,22,WS_BYTES); srd(a,sDBG,20,256)
    srd(a,sWQ,10,4<<20); srd(a,sWK,12,4<<20); srd(a,sWV,14,4<<20); srd(a,sWO,16,4<<20); srd(a,sM0,8,8192)
    a(f's_lshl_b32 s{sMB}, s2, 7')
    a(f's_add_u32 s{sMB}, s{sMB}, {MBOX}')
    a(f's_cmp_lg_u32 s{sW}, 0')
    a('s_cbranch_scc1 role_wait')
    a(f's_mov_b32 s{sT0}, s{sXCC}')
    a(f's_mov_b32 s{sT2}, 0')
    a('s_mov_b64 exec, 1')
    a('v_mov_b32 v1, 0')
    a(f'buffer_store_dword v1, off, {srd4(sWS)}, s{sMB} sc1')
    a('s_waitcnt vmcnt(0)')
    a.label('role_loop')
    a('v_mov_b32 v1, 1')
    a(f's_lshl_b32 s{sT1}, s{sT0}, 2')
    a(f's_add_u32 s{sT1}, s{sT1}, 144')
    a(f's_cmp_eq_u32 s{sT0}, 0')
    a(f's_cselect_b32 s{sT1}, 0, s{sT1}')
    a(f'buffer_atomic_add v1, off, {srd4(sDBG)}, s{sT1} sc0')
    a('s_waitcnt vmcnt(0)')
    a(f'v_readfirstlane_b32 s{sT1}, v1')
    a(f's_cmp_lt_u32 s{sT1}, 32')
    a('s_cbranch_scc1 role_got')
    a(f's_add_u32 s{sT0}, s{sT0}, 1')
    a(f's_and_b32 s{sT0}, s{sT0}, 7')
    a(f's_add_u32 s{sT2}, s{sT2}, 1')
    a(f's_cmp_lt_u32 s{sT2}, 8')
    a('s_cbranch_scc1 role_loop')
    a(f's_mov_b32 s{sT0}, 8')
    a(f's_mov_b32 s{sT1}, 0')
    a.label('role_got')
    a(f's_lshl_b32 s{sT0}, s{sT0}, 5')
    a(f's_add_u32 s{sT0}, s{sT0}, s{sT1}')
    a(f'v_mov_b32 v1, s{sT0}')
    a('v_mov_b32 v2, 0')
    a('ds_write_b32 v2, v1')
    a('s_mov_b64 exec, -1')
    a('s_waitcnt lgkmcnt(0)')
    a.label('role_wait')
    a('s_barrier')
    a('v_mov_b32 v2, 0')
    a('ds_read_b32 v1, v2')
    a('s_waitcnt lgkmcnt(0)')
    a(f'v_readfirstlane_b32 s{sROLE}, v1')
    a('s_barrier')
    a(f's_cmp_ge_u32 s{sROLE}, 256')
    a('s_cbranch_scc1 main_done')
    a(f's_lshl_b32 s{sLB}, s{sW}, 15')
    a(f's_add_u32 s{sLB}, s{sLB}, {L_WO}')
    a(f's_cmp_lt_u32 s{sROLE}, 32')
    a('s_cbranch_scc1 rec_start')
    a('s_branch work_start')

def gen_loader(a, tag, rot_is_wave):
    for j in range(8):
        if rot_is_wave:
            tab=sum((2*QORD[w][j>>1]+(j&1))<<(4*w) for w in range(4))
            a(f's_lshl_b32 s{sT0}, s{sW}, 2')
            a(f's_lshr_b32 s{sT0}, {tab}, s{sT0}')
            a(f's_and_b32 s{sT0}, s{sT0}, 7')
            a(f's_lshl_b32 s{sKT+j}, s{sT0}, 19')
        else:
            a(f's_mov_b32 s{sKT+j}, {j<<19}')
    a('v_bfe_u32 v2, v0, 2, 1')
    a('v_bfe_u32 v3, v0, 4, 1')
    a('v_lshl_add_u32 v2, v3, 1, v2')
    a('v_bfe_u32 v3, v0, 3, 1')
    a('v_lshl_add_u32 v2, v3, 2, v2')
    a('v_bfe_u32 v3, v0, 5, 1')
    a('v_lshl_add_u32 v2, v3, 3, v2')
    a('v_lshlrev_b32 v1, 13, v2')
    a('v_lshlrev_b32 v3, 1, v3')
    a('v_xor_b32 v3, v3, v0')
    a('v_and_b32 v3, 3, v3')
    a('v_lshl_add_u32 v1, v3, 4, v1')
    a(f's_lshl_b32 s{sT0}, s{sH}, 8')
    a(f's_lshl_b32 s{sT1}, s{sW}, 6')
    a(f's_add_u32 s{sT0}, s{sT0}, s{sT1}')
    a(f'v_add_u32 v1, s{sT0}, v1')
    a('v_bfe_u32 v2, v0, 5, 1')
    a('v_lshlrev_b32 v4, 10, v2')
    a('v_bfe_u32 v2, v0, 3, 1')
    a('v_mul_u32_u24 v2, 544, v2')
    a('v_add_u32 v4, v4, v2')
    a('v_bfe_u32 v2, v0, 4, 1')
    a('v_lshl_add_u32 v4, v2, 7, v4')
    a('v_bfe_u32 v2, v0, 2, 1')
    a('v_lshl_add_u32 v4, v2, 6, v4')
    a('v_and_b32 v2, 3, v0')
    a('v_lshl_add_u32 v4, v2, 3, v4')
    a(f'v_add_u32 v4, s{sLB}, v4')
    a('v_xor_b32 v5, 32, v4')
    srds=[sWQ,sWK,sWV]
    def issue(u):
        X,j=u>>3,u&7
        for i in range(4):
            a(f's_add_u32 m0, s{sLB}, {j*4096+i*1024}')
            a(f's_add_u32 s{sT0}, s{sKT+j}, {i*131072}')
            a(f'buffer_load_dwordx4 v1, {srd4(srds[X])}, s{sT0} offen lds')
    def consume(u):
        X,j=u>>3,u&7
        for tau in range(2):
            k,b=wreg(X,tau,j)
            for hh in range(2):
                for y in range(2):
                    a(f'ds_read_b64_tr_b16 {k}[{b+4*hh+2*y}:{b+4*hh+2*y+1}], v{4+tau} offset:{j*4096+hh*2048+y*256}')
    return issue, consume
```

```python
from common import *
from k_main import *
import os
E=lambda k,d: int(os.environ.get(k,str(d)))

R_K=0x0
R_V=0x4000
R_M=0x6000
R_QK=0x6000
R_O=0x7200
vT=0; vIDX=1; vL16=2; vQKW=3; vQR=4; vKR=5; vOW=6; vWO=7; vPST=8; vMST=9; NEG1=10; PM=14
MF=16; QA=48; KA_=56; VA=64; VC=72; ONES=80; VM0=84; VM1=86; KX=88
QFR=[16,20,120,124]
sS=72; sMa=73; sMb=74; sMc=75; sPa=76; sPb=77; sPc=78; sMa2=79; sKVM=80; sODD=82; sSPIN=84; sKB=85; sC=86
sU0=88; sU1=89; sKO=90; sVO=91; sFV=93; sHW=94; sRO=95
sPUB=96; sPR=97; sRG=98; sRG2=99; sHA=92; sHI=70; sFLA=100; sH13=101; sPUB0=63; sPq=64
sPM=68
sTS=4; sACC=32
STSEL=[x for x in os.environ.get('STSEL','').split(',') if x]
SOLO=E('SOLO',0)
SNAP=E('SNAP',0)
ABL=[x for x in os.environ.get('ABL','').split(',') if x]
HINT=0x3000
def wo_reg(f):
    j,tau=f>>1,f&1
    return wreg(2,tau,j)[1]

def delay(a,cyc):
    n=cyc//4
    while n>0:
        c=min(n,16); a(f's_nop {c-1}'); n-=c

def wo_lds(f):
    c,tile,t2=f>>2,(f>>1)&1,f&1
    return ((c-2)*2+t2)*4096+tile*2048

def gen_rec(a, stamps=False):
    global SPIN_MAX
    if stamps: SPIN_MAX=1<<30
    W=srd4(sWS)
    a.label('rec_start')
    a(f's_mov_b32 s{sH}, s{sROLE}')
    rtstamp(a,0)
    D1,D2,A0,A1,A2,A3=100,101,102,103,104,105
    KT=4
    for j in range(8):
        tab=sum((2*QORD[w][j>>1]+(j&1))<<(4*w) for w in range(4))
        a(f's_lshl_b32 s{sT0}, s{sW}, 2')
        a(f's_lshr_b32 s{sT0}, {tab}, s{sT0}')
        a(f's_and_b32 s{sT0}, s{sT0}, 7')
        a(f's_lshl_b32 s{KT+j}, s{sT0}, 19')
    a('v_bfe_u32 v2, v0, 2, 1'); a('v_bfe_u32 v3, v0, 4, 1'); a('v_lshl_add_u32 v2, v3, 1, v2')
    a('v_bfe_u32 v3, v0, 3, 1'); a('v_lshl_add_u32 v2, v3, 2, v2')
    a('v_bfe_u32 v3, v0, 5, 1'); a('v_lshl_add_u32 v2, v3, 3, v2')
    a('v_lshlrev_b32 v3, 1, v3'); a('v_xor_b32 v3, v3, v0'); a('v_and_b32 v3, 3, v3'); a('v_lshlrev_b32 v3, 4, v3')
    a(f's_lshl_b32 s{sT1}, s{sW}, 6')
    a(f'v_add_u32 v3, s{sT1}, v3')
    a(f'v_lshl_add_u32 v{D2}, v2, 10, v3')
    a(f'v_lshl_add_u32 v{D1}, v2, 13, v3')
    a(f's_lshl_b32 s{sT0}, s{sH}, 8')
    a(f'v_add_u32 v{D1}, s{sT0}, v{D1}')
    a(f's_lshl_b32 s12, s{sH}, 17')
    units=[(0,j) for j in range(8)]+[(1,j) for j in range(8)]+[(2,j) for j in range(4,8)]+[(3,x) for x in range(8)]+[(2,j) for j in range(4)]
    q=[]
    def issue(u):
        X,j=units[u]
        for i in range(4):
            a(f's_add_u32 m0, s{sLB}, {(u&7)*4096+i*1024}')
            if X<3:
                a(f's_add_u32 s{sT0}, s{KT+j}, {i*131072}')
                a(f'buffer_load_dwordx4 v{D1}, {srd4([sWQ,sWK,sWV][X])}, s{sT0} offen lds')
            else:
                c,t2=j>>1,j&1
                a(f's_add_u32 s{sT0}, s12, {(64*t2+16*i)*1024+c*256}')
                a(f'buffer_load_dwordx4 v{D2}, {srd4(sWO)}, s{sT0} offen lds')
            q.append(('u',u))
    def wait_for(tag):
        idx=max(i for i,t in enumerate(q) if t==tag)
        a(f's_waitcnt vmcnt({len(q)-1-idx})')
        del q[:idx+1]
    def vm(text,tag):
        a(text); q.append(tag)
    for u in range(8): issue(u)
    a('v_bfe_u32 v2, v0, 5, 1'); a(f'v_lshlrev_b32 v{A0}, 10, v2'); a(f'v_mul_u32_u24 v{A2}, 544, v2')
    a('v_bfe_u32 v2, v0, 3, 1'); a('v_mul_u32_u24 v3, 544, v2'); a(f'v_add_u32 v{A0}, v{A0}, v3'); a(f'v_lshl_add_u32 v{A2}, v2, 7, v{A2}')
    a('v_bfe_u32 v2, v0, 4, 1'); a(f'v_lshl_add_u32 v{A0}, v2, 7, v{A0}'); a(f'v_lshl_add_u32 v{A2}, v2, 10, v{A2}')
    a('v_bfe_u32 v2, v0, 2, 1'); a('v_lshlrev_b32 v3, 6, v2'); a('v_and_b32 v2, 3, v0'); a('v_lshl_add_u32 v3, v2, 3, v3')
    a(f'v_add_u32 v3, s{sLB}, v3')
    a(f'v_add_u32 v{A0}, v{A0}, v3'); a(f'v_add_u32 v{A2}, v{A2}, v3')
    a(f'v_xor_b32 v{A1}, 32, v{A0}'); a(f'v_xor_b32 v{A3}, 32, v{A2}')
    a(f'v_lshlrev_b32 v{vL16}, 4, v0')
    a(f'v_add_u32 v{vWO}, s{sLB}, v{vL16}')
    for r in range(NEG1,NEG1+4): a(f'v_mov_b32 v{r}, -1')
    a('v_and_b32 v19, 1, v0')
    a(f'v_mov_b32 v{vIDX}, 0x4444')
    a('v_mov_b32 v16, 0xeeee')
    a('v_cmp_eq_u32 vcc, 1, v19')
    a(f'v_cndmask_b32 v{vIDX}, v{vIDX}, v16, vcc')
    a(f's_mov_b32 s{sODD}, 0xaaaaaaaa'); a(f's_mov_b32 s{sODD+1}, 0xaaaaaaaa')
    a(f's_mov_b32 s{sPM}, 0x000f000f'); a(f's_mov_b32 s{sPM+1}, 0x000f000f')
    a('v_and_b32 v16, 15, v0')
    a('v_lshrrev_b32 v17, 4, v0')
    a(f'v_mul_u32_u24 v{vQKW}, {2*QK_RS}, v17')
    a(f'v_lshl_add_u32 v{vQKW}, v16, 2, v{vQKW}')
    a(f's_lshl_b32 s{sT1}, s{sW}, 6')
    a(f's_add_u32 s{sT1}, s{sT1}, {R_QK}')
    a(f'v_add_u32 v{vQKW}, s{sT1}, v{vQKW}')
    a('v_lshrrev_b32 v18, 1, v16')
    a(f'v_mul_u32_u24 v{vQR}, {QK_RS}, v18')
    a(f'v_lshl_add_u32 v{vQR}, v17, 4, v{vQR}')
    a(f'v_add_u32 v{vQR}, {R_QK}, v{vQR}')
    a('v_lshrrev_b32 v18, 2, v16')
    a('v_lshlrev_b32 v18, 1, v18')
    a('v_add_u32 v18, v18, v19')
    a(f'v_mul_u32_u24 v{vKR}, {QK_RS}, v18')
    a(f'v_lshl_add_u32 v{vKR}, v17, 4, v{vKR}')
    a(f'v_add_u32 v{vKR}, {R_QK+256}, v{vKR}')
    a('v_lshrrev_b32 v18, 1, v17')
    a(f'v_lshlrev_b32 v{vOW}, 8, v18')
    a('v_lshrrev_b32 v18, 1, v16')
    a(f'v_lshl_add_u32 v{vOW}, v18, 5, v{vOW}')
    a('v_and_b32 v18, 1, v17')
    a(f'v_lshl_add_u32 v{vOW}, v18, 4, v{vOW}')
    a(f'v_lshl_add_u32 v{vOW}, v19, 3, v{vOW}')
    a(f's_lshl_b32 s{sT1}, s{sW}, 9')
    a(f's_add_u32 s{sT1}, s{sT1}, {R_O}')
    a(f'v_add_u32 v{vOW}, s{sT1}, v{vOW}')
    a('v_lshrrev_b32 v18, 3, v0')
    a(f'v_lshlrev_b32 v{vPST}, 11, v18')
    a('v_and_b32 v18, 7, v0')
    a(f'v_lshl_add_u32 v{vPST}, v18, 3, v{vPST}')
    a(f's_lshl_b32 s{sT1}, s{sW}, 14')
    a(f's_lshl_b32 s{sT2}, s{sH}, 6')
    a(f's_add_u32 s{sT1}, s{sT1}, s{sT2}')
    a(f'v_add_u32 v{vPST}, s{sT1}, v{vPST}')
    a('v_lshrrev_b32 v18, 1, v17')
    a(f'v_lshlrev_b32 v{vMST}, 5, v18'); a('v_lshlrev_b32 v24, 10, v18')
    a('v_and_b32 v18, 3, v0')
    a(f'v_lshl_add_u32 v{vMST}, v18, 2, v{vMST}'); a('v_lshl_add_u32 v24, v18, 2, v24')
    a('v_and_b32 v18, 1, v17')
    a(f'v_lshl_add_u32 v{vMST}, v18, 8, v{vMST}'); a('v_lshl_add_u32 v24, v18, 5, v24')
    a(f's_lshr_b32 s{sT1}, s{sH}, 3'); a(f's_lshl_b32 s{sT3}, s{sT1}, 6'); a(f's_lshl_b32 s{sT1}, s{sT1}, 9')
    a(f's_and_b32 s{sT2}, s{sH}, 1'); a(f's_lshl_b32 s{sT2}, s{sT2}, 4')
    a(f's_add_u32 s{sT1}, s{sT1}, s{sT2}'); a(f's_add_u32 s{sT3}, s{sT3}, s{sT2}')
    a(f's_bfe_u32 s{sT2}, s{sH}, 0x20001'); a(f's_lshl_b32 s{sT0}, s{sT2}, 11'); a(f's_lshl_b32 s{sT2}, s{sT2}, 6')
    a(f's_add_u32 s{sT1}, s{sT1}, s{sT2}'); a(f's_add_u32 s{sT3}, s{sT3}, s{sT0}')
    a(f's_lshl_b32 s{sT2}, s{sW}, 11'); a(f's_add_u32 s{sT1}, s{sT1}, s{sT2}')
    a(f's_lshl_b32 s{sT2}, s{sW}, 8'); a(f's_add_u32 s{sT3}, s{sT3}, s{sT2}')
    a(f'v_add_u32 v{vMST}, s{sT1}, v{vMST}')
    vm(f'buffer_load_dword v106, v24, {srd4(sM0)}, s{sT3} offen','m0')
    a('v_mov_b32 v24, 0x3f80'); a('v_mov_b32 v25, 0x3f800000'); a('v_mov_b32 v26, 0x3f803f80')
    a('v_and_b32 v18, 3, v16')
    for d in range(4):
        lo=4*(d&1)+2+(d>>1)
        a(f'v_cmp_eq_u32 vcc, {lo}, v16')
        a(f'v_cndmask_b32 v{ONES+d}, 0, v24, vcc')
        a(f'v_cmp_eq_u32 vcc, {lo+8}, v16')
        a(f'v_cndmask_b32 v{ONES+d}, v{ONES+d}, v25, vcc')
        a('v_cmp_eq_u32 vcc, 0, v18')
        a(f'v_cndmask_b32 v{ONES+d}, v{ONES+d}, v26, vcc')
    for r in (VM0,VM0+1,VM1,VM1+1,PM+1): a(f'v_mov_b32 v{r}, 0')
    a(f's_mov_b32 s{sC}, 0x3e0293ee'); a(f's_mov_b32 s{sC+1}, 0x3e0293ee')
    a(f's_mov_b32 s{sS}, 0')
    a(f's_mov_b32 s{sMa}, {MRING}'); a(f's_mov_b32 s{sMb}, {MRING+8192}'); a(f's_mov_b32 s{sMc}, {MRING+16384}')
    a(f's_mov_b32 s{sPa}, {PRING}'); a(f's_mov_b32 s{sPb}, {PRING+0x40000}'); a(f's_mov_b32 s{sPc}, {PRING+0x80000}')
    a(f's_mov_b32 s{sSPIN}, 0')
    a(f's_lshl_b32 s{sH13}, s{sH}, 13')
    a(f's_lshl_b32 s{sT1}, s{sW}, 11')
    a(f's_add_u32 s{sHW}, s{sH13}, s{sT1}')
    a(f's_add_u32 s{sKO}, s{sHW}, {KF}')
    a(f's_add_u32 s{sVO}, s{sHW}, {VF}')
    a(f's_lshl_b32 s{sRO}, s{sW}, 16')
    a(f's_lshl_b32 s{sT2}, s{sH}, 11')
    a(f's_add_u32 s{sRO}, s{sRO}, s{sT2}')
    a(f's_lshl_b32 s{sFLA}, s{sH}, 7')
    a(f's_add_u32 s{sFLA}, s{sFLA}, {RECFLAG}')
    a(f's_lshr_b32 s{sPUB}, s{sHW}, 1')
    a(f's_add_u32 s{sPUB}, s{sPUB}, {KM}')
    a(f's_mov_b32 s{sFV}, 0')
    a(f's_mov_b32 s{sKB}, 0')
    a(f's_mov_b32 s{sHI}, 0x01010101')
    a(f's_lshl_b32 s{sHA}, s{sH}, 8'); a(f's_add_u32 s{sHA}, s{sHA}, {KVFLAG}')
    for sl in range(3):
        a(f's_add_u32 s{sT1}, s{sHW}, {PRING+sl*0x40000}')
        vm(f'buffer_store_dwordx4 v[{NEG1}:{NEG1+3}], v{vL16}, {W}, s{sT1} offen sc1','i')
        vm(f'buffer_store_dwordx4 v[{NEG1}:{NEG1+3}], v{vL16}, {W}, s{sT1} offen offset:1024 sc1','i')
    vm(f'buffer_store_dword v{NEG1}, v{vMST}, {W}, s{sMb} offen sc1','i')
    vm(f'buffer_store_dword v{NEG1}, v{vMST}, {W}, s{sMc} offen sc1','i')
    a(f'v_lshrrev_b32 v107, 2, v{vL16}')
    def kvdma(f):
        a(f's_lshl_b32 s{sT1}, s{sW}, 11')
        a(f's_add_u32 m0, s{sT1}, {R_K}')
        f(f'buffer_load_dwordx4 v{vL16}, {W}, s{sKO} offen sc1 lds')
        f(f'buffer_load_dwordx4 v{vL16}, {W}, s{sKO} offen offset:1024 sc1 lds')
        a(f's_add_u32 m0, s{sT1}, {R_V}')
        f(f'buffer_load_dwordx4 v{vL16}, {W}, s{sVO} offen sc1 lds')
        f(f'buffer_load_dwordx4 v{vL16}, {W}, s{sVO} offen offset:1024 sc1 lds')
    def polls(f, dma=True):
        f(f'buffer_load_dword v108, off, {W}, s{sMB} sc1')
        a(f's_mov_b32 s{sT1}, 64'); f(f'buffer_load_dword v109, off, {srd4(sDBG)}, s{sT1} sc1')
        f(f'buffer_load_dword v110, v107, {W}, s{sHA} offen sc1')
        if dma: kvdma(f)
    for u in range(32):
        X,j=units[u]
        wait_for(('u',u))
        for tau in range(2):
            if u>=24: k,b='v',16+32*(u&1)+8*tau
            elif X<3: k,b=wreg(X,tau,j)
            else: k,b='v',wo_reg(((j>>1)*2+tau)*2+(j&1))
            ad=(A0 if X<3 else A2)+tau
            for hh in range(2):
                for y in range(2):
                    a(f'ds_read_b64_tr_b16 {k}[{b+4*hh+2*y}:{b+4*hh+2*y+1}], v{ad} offset:{(u&7)*4096+hh*2048+y*256}')
        a('s_waitcnt lgkmcnt(0)')
        if u+8<32: issue(u+8)
        if u>=24:
            b=16+32*(u&1)
            for i in range(4): a(f'ds_write_b128 v{vWO}, v[{b+4*i}:{b+4*i+3}] offset:{(u&7)*4096+i*1024}')
        if u==8:
            vm(f'buffer_store_dword v106, v{vMST}, {W}, s{sMa} offen sc1','i')
        if u==17:
            a('s_barrier')
            a(f's_cmp_eq_u32 s{sXCC}, 0')
            a(f's_cselect_b32 s{sT0}, 1, 0x10001')
            a(f'v_mov_b32 v106, s{sT0}')
            a(f's_cmp_eq_u32 s{sW}, 0')
            a('s_cselect_b32 exec_lo, 1, 0')
            a('s_mov_b32 exec_hi, 0')
            a(f's_mov_b32 s{sT1}, 64')
            a(f'buffer_atomic_add v106, off, {srd4(sDBG)}, s{sT1}')
            a('s_mov_b64 exec, -1')
        if u==E('PU',28): polls(lambda t: vm(t,'p'))
    rtstamp(a,1)
    a(f's_mov_b32 s{sT3}, 0')
    a.label('rec_chk')
    a('s_waitcnt vmcnt(0)')
    a(f'v_readfirstlane_b32 s{sT2}, v108')
    a(f'v_readfirstlane_b32 s{sT0}, v109')
    a(f'v_cmp_eq_u32 s[{sKVM}:{sKVM+1}], s{sHI}, v110')
    a(f's_add_u32 s{sSPIN}, s{sSPIN}, 1')
    a(f's_cmp_gt_u32 s{sSPIN}, {SPIN_MAX}')
    a('s_cbranch_scc1 rec_go')
    a(f's_cmp_lt_u32 s{sT2}, 2')
    a('s_cbranch_scc1 rec_again')
    a(f's_and_b32 s{sT2}, s{sT0}, 0xffff')
    a(f's_cmp_lt_u32 s{sT2}, 32')
    a('s_cbranch_scc1 rec_again')
    a(f's_bitcmp1_b64 s[{sKVM}:{sKVM+1}], 0')
    a('s_cbranch_scc1 rec_go')
    a.label('rec_again')
    a('s_sleep 8')
    a(f's_mov_b32 s{sT3}, 1')
    polls(a,False)
    a('s_branch rec_chk')
    a.label('rec_go')
    a(f's_cmp_eq_u32 s{sT3}, 0')
    a('s_cbranch_scc1 rec_go2')
    kvdma(a)
    a('s_waitcnt vmcnt(0)')
    a.label('rec_go2')
    rtstamp(a,3)
    a('s_waitcnt lgkmcnt(0)')
    for t in house_salu(first=True): a(t)
    a(f's_cmp_eq_u32 s{sT0}, 32')
    a('s_cbranch_scc0 rec_slow')
    for w in range(4):
        a(f's_cmp_eq_u32 s{sW}, {w}')
        a(f's_cbranch_scc1 rec_redo_f{w}')
    a.label('rec_slow')
    for w in range(3):
        a(f's_cmp_eq_u32 s{sW}, {w}')
        a(f's_cbranch_scc1 rec_redo_s{w}')
    a('s_branch rec_redo_s3')
    for fast in (True,False):
        for w in range(4):
            gen_loop(a, fast, w, stamps)
    a.label('rec_fin')
    rtstamp(a,4)
    a(f'v_mov_b32 v{KA_+2}, v{VM0}'); a(f'v_mov_b32 v{KA_+3}, v{VM1}')
    a(f's_add_u32 s{sU0}, s{sPUB}, {1<<17}')
    a(f'buffer_store_dwordx4 v[{KA_}:{KA_+3}], v{vL16}, {W}, s{sU0} offen sc1')
    if stamps:
        a('s_waitcnt lgkmcnt(0)')
        a(f's_sub_u32 s{sACC+14}, s{sSPIN}, s{sACC+14}')
        for k in range(16): a(f'v_writelane_b32 v126, s{sACC+k}, {k}')
        a(f's_lshl_b32 s{sU0}, s{sH}, 8')
        a(f's_lshl_b32 s{sU1}, s{sW}, 6')
        a(f's_add_u32 s{sU0}, s{sU0}, s{sU1}')
        a(f's_add_u32 s{sU0}, s{sU0}, 0x6000000')
        a(f'v_lshrrev_b32 v127, 2, v{vL16}')
        a('s_mov_b64 exec, 0xffff')
        a(f'buffer_store_dword v126, v127, {W}, s{sU0} offen')
        a('s_mov_b64 exec, -1')
    a('s_waitcnt vmcnt(0)')
    a('s_barrier')
    a(f's_cmp_lg_u32 s{sW}, 1')
    a('s_cbranch_scc1 main_done')
    a(f'v_mov_b32 v124, 64')
    a('s_mov_b64 exec, 1')
    a(f'buffer_store_dword v124, off, {W}, s{sFLA} sc1')
    a('s_branch main_done')

def xreg(x): return KX+8*(x&3)
def x_reads(lo,hi):
    r=[]
    for x in range(lo,hi):
        b=xreg(x)
        r+=[f'ds_read_b128 v[{b}:{b+3}], v{vWO} offset:{16384+x*2048}', f'ds_read_b128 v[{b+4}:{b+7}], v{vWO} offset:{16384+x*2048+1024}']
    return r
def zero_acc():
    return [f'v_mov_b64 v[{r}:{r+1}], 0' for r in range(VA+6,QA-2,-2)]
def v_reads(w):
    return [f'ds_read_b128 v[{VC+4*t}:{VC+4*t+3}], v{vL16} offset:{R_V+w*2048+t*1024}' for t in range(2)]
def rot_m():
    return [f's_mov_b32 s{sU0}, s{sMa}', f's_mov_b32 s{sMa}, s{sMb}', f's_mov_b32 s{sMb}, s{sMc}', f's_mov_b32 s{sMc}, s{sU0}', f's_add_u32 s{sMa2}, s{sMa}, 4096']
def house_salu(first=False):
    r=[]
    if not first:
        r+=[f's_mov_b32 s{sU0}, s{sPa}', f's_mov_b32 s{sPa}, s{sPb}', f's_mov_b32 s{sPb}, s{sPc}', f's_mov_b32 s{sPc}, s{sU0}',
            f's_add_u32 s{sPUB}, s{sPUB}, {1<<17}', f's_mov_b32 s{sFV}, s{sS}',
            f's_add_u32 s{sS}, s{sS}, 1', f's_xor_b32 s{sKB}, s{sKB}, 0x2000']
    if first: r+=[f's_add_u32 s{sMa2}, s{sMa}, 4096']
    r+=[
        f's_add_u32 s{sU1}, s{sS}, 1', f's_min_u32 s{sU1}, s{sU1}, 63',
        f's_lshl_b32 s{sU0}, s{sU1}, 18', f's_add_u32 s{sU0}, s{sU0}, s{sHW}',
        f's_add_u32 s{sKO}, s{sU0}, {KF}', f's_add_u32 s{sVO}, s{sU0}, {VF}',
        f's_add_u32 s{sPR}, s{sPc}, s{sRO}', f's_add_u32 s{sRG}, s{sPa}, s{sRO}']
    r+=[f's_add_u32 s{sPq+c}, s{sPa}, {c*65536}' for c in range(1,4)]
    return r

def gen_loop(a, fast, w, stamps):
    tag=('f' if fast else 's')+str(w)
    sc='' if fast else ' sc1'
    W=srd4(sWS)
    nst=[0]; nall=[0]
    def stamp():
        nall[0]+=1
        if stamps and (not STSEL or str(nall[0]-1) in STSEL):
            k=nst[0]; nst[0]+=1
            return [f'{"s_memrealtime" if SNAP else "s_memtime"} s[{sTS+2*k}:{sTS+2*k+1}]']
        return []
    def emit(lst):
        for t in lst: a(t)
    def sm(X,tau,j):
        k,b=wreg(X,tau,j)
        if X==2 and j<4: b=xreg(2*j+tau)
        acc=[QA,KA_,VA][X]+4*tau
        return f'v_smfmac_f32_16x16x64_bf16 v[{acc}:{acc+3}], v[{MF+4*j}:{MF+4*j+3}], {k}[{b}:{b+7}], v{vIDX}'
    def moff(j): return R_M+(2*QORD[w][j>>1]+(j&1))*1024
    def gl(b,c):
        return [f'buffer_load_dwordx4 v[{b+4*L}:{b+4*L+3}], v{vL16}, {W}, s{sMa if c<2 else sMa2} offen offset:{(c&1)*2048+L*1024} sc1' for L in range(2)]
    def spin(inc):
        return [f's_add_u32 s{sSPIN}, s{sSPIN}, {inc if stamps else 1}', f's_cmp_gt_u32 s{sSPIN}, {SPIN_MAX}']
    T=vT; C2=PM
    def chk(b):
        return [f'v_max3_u32 v{T}, v{b}, v{b+1}, v{b+2}', f'v_max3_u32 v{C2}, v{b+3}, v{b+4}, v{b+5}',
                f'v_max3_u32 v{T}, v{T}, v{b+6}, v{b+7}', f'v_max_u32 v{T}, v{T}, v{C2}', f'v_cmp_eq_u32 vcc, -1, v{T}']
    a.label(f'rec_redo_{tag}')
    emit(x_reads(0,4)+v_reads(w)+zero_acc())
    emit(gl(MF,w))
    a('s_waitcnt vmcnt(0)')
    a(f's_branch rec_enter_{tag}')
    a.label(f'rec_g0_{tag}')
    a('s_mov_b64 exec, vcc')
    emit(gl(MF,w))
    a('s_mov_b64 exec, -1')
    emit(spin(1))
    a(f's_cbranch_scc1 rec_ok0_{tag}')
    emit(chk(MF))
    a(f's_cbranch_vccnz rec_g0_{tag}')
    a(f's_branch rec_ok0_{tag}')
    a.label(f'rec_kvw_{tag}')
    a(f's_add_u32 s{sT2}, s{sT2}, 1')
    a(f'v_lshrrev_b32 v{PM}, 2, v{vL16}')
    a(f'buffer_load_dword v{PM}, v{PM}, {W}, s{sHA} offen sc1')
    a('s_waitcnt vmcnt(0)')
    a(f'v_cmp_eq_u32 s[{sKVM}:{sKVM+1}], s{sHI}, v{PM}')
    a(f's_cmp_gt_u32 s{sT2}, {1<<22}')
    a(f's_cbranch_scc1 rec_kvok_{tag}')
    a(f's_bitcmp1_b64 s[{sKVM}:{sKVM+1}], s{sU1}')
    a(f's_cbranch_scc0 rec_kvw_{tag}')
    a(f's_branch rec_kvok_{tag}')
    a('.p2align 6')
    a.label(f'rec_enter_{tag}')
    G2=E('G2',1)
    a(f's_waitcnt vmcnt({2*G2}) lgkmcnt(0)')
    emit(chk(MF))
    a(f's_cbranch_vccnz rec_ok0_{tag}' if SOLO else f's_cbranch_vccnz rec_g0_{tag}')
    a.label(f'rec_ok0_{tag}')
    emit(stamp())
    seq=[]; ex={}
    def put(i,*ops): ex.setdefault(i,[]).extend(ops)
    def grp(X,c): return [sm(X,tau,j) for j in (2*c,2*c+1) for tau in range(2)]
    seq+=grp(2,0)+grp(0,0)+grp(1,0)
    seq+=grp(0,1)+grp(0,2)+grp(0,3)
    seq+=grp(2,1)
    seq+=grp(1,1)+grp(1,2)+grp(1,3)
    vv=[sm(2,0,4),sm(2,0,5),sm(2,0,6),sm(2,0,7),sm(2,1,4),sm(2,1,5),sm(2,1,6),sm(2,1,7)]
    seq+=vv[0:6]
    SX=QA; SM=KA_+4; KMF=KX; T2=KA_+2
    def sx(mu,u):
        c = '0' if u==0 else f'v[{SX+4*mu}:{SX+4*mu+3}]'
        f=KX+4*(mu*4+u)
        return f'v_mfma_f32_16x16x32_bf16 v[{SX+4*mu}:{SX+4*mu+3}], v[{f}:{f+3}], v[{QFR[u]}:{QFR[u]+3}], {c}'
    seq+=[sx(0,u) for u in range(4)]+[sx(1,u) for u in range(4)]
    seq+=[vv[6]]
    for u in range(4):
        c='0' if u==0 else f'v[{SM}:{SM+3}]'
        seq.append(f'v_mfma_f32_16x16x32_bf16 v[{SM}:{SM+3}], v[{KMF+4*u}:{KMF+4*u+3}], v[{QFR[u]}:{QFR[u]+3}], {c}')
    seq+=[vv[7]]
    put(0, f'ds_write_b128 v{vL16}, v[{MF}:{MF+3}] offset:{moff(0)}')
    put(1, f'ds_write_b128 v{vL16}, v[{MF+4}:{MF+7}] offset:{moff(1)}')
    B1=[E('B10',8),E('B11',8),E('B12',7),E('B13',6)][w]
    mr=[f'ds_read_b128 v[{MF+4*j}:{MF+4*j+3}], v{vL16} offset:{moff(j)}' for j in range(2,8)]
    put(B1,'s_waitcnt lgkmcnt(0)','s_barrier')
    put(B1,mr[0]); put(B1+1,*mr[1:4]); put(B1+2,*mr[4:6])
    put(11,'s_waitcnt lgkmcnt(5)'); put(13,'s_waitcnt lgkmcnt(4)'); put(15,'s_waitcnt lgkmcnt(0)')
    xr=x_reads(4,8)
    for i in range(4): put(16+i, *xr[2*i:2*i+2])
    put(23, 's_waitcnt lgkmcnt(0)', 's_barrier')
    put(12, f's_bitcmp1_b64 s[{sKVM}:{sKVM+1}], s{sU1}', f's_cbranch_scc0 rec_kvw_{tag}', f'rec_kvok_{tag}:')
    put(13, f's_xor_b32 s{sU0}, s{sKB}, {0x2000+w*2048}', f's_mov_b32 m0, s{sU0}')
    put(14, 's_waitcnt vmcnt(0)', f'buffer_load_dwordx4 v{vL16}, {W}, s{sKO} offen sc1 lds')
    put(15, f'buffer_load_dwordx4 v{vL16}, {W}, s{sKO} offen offset:1024 sc1 lds', f's_mov_b32 m0, {R_V+w*2048}')
    put(16, f'buffer_load_dwordx4 v{vL16}, {W}, s{sVO} offen sc1 lds')
    put(17, f'buffer_load_dwordx4 v{vL16}, {W}, s{sVO} offen offset:1024 sc1 lds')
    put(14, f'v_add_u32 v{T}, s{sKB}, v{vL16}')
    R_F=0x7A00+w*256
    put(22, f'v_lshrrev_b32 v16, 2, v{vL16}')
    put(24, f's_mov_b32 m0, {R_F}')
    put(25, f'buffer_load_dword v16, {W}, s{sHA} offen sc1 lds')
    for f in range(8): put(28+f, f'ds_read_b128 v[{KX+4*f}:{KX+4*f+3}], v{T} offset:{R_K+f*1024}')
    put(46+(w&1), f'buffer_store_dwordx4 v[{KA_}:{KA_+3}], v{vL16}, {W}, s{sPUB} offen sc1')
    put(44, f'v_mov_b32 v{KA_+2}, v{VM0}'); put(45, f'v_mov_b32 v{KA_+3}, v{VM1}')
    if w==0:
        put(15, f'v_mov_b32 v{PM}, s{sFV}')
        put(22, 's_mov_b64 exec, 1', f'buffer_store_dword v{PM}, off, {W}, s{sFLA} sc1', 's_mov_b64 exec, -1')
    put(20+(w&1), f'buffer_store_dwordx4 v[{NEG1}:{NEG1+3}], v{vL16}, {W}, s{sPR} offen{sc}')
    put(26+(w&1), f'buffer_store_dwordx4 v[{NEG1}:{NEG1+3}], v{vL16}, {W}, s{sPR} offen offset:1024{sc}')
    put(38, f's_mov_b64 exec, s[{sPM}:{sPM+1}]', f'buffer_store_dword v{NEG1}, v{vMST}, {W}, s{sMc} offen{sc}', 's_mov_b64 exec, -1')
    def pp(acc,d0,d1):
        return [f'v_add_f32 v{acc}, v{acc}, v{acc+1}', f'v_add_f32 v{acc+2}, v{acc+2}, v{acc+3}',
                f'v_add_f32 v{acc+4}, v{acc+4}, v{acc+5}', f'v_add_f32 v{acc+6}, v{acc+6}, v{acc+7}',
                f'v_cvt_pk_bf16_f32 v{d0}, v{acc}, v{acc+4}', f'v_cvt_pk_bf16_f32 v{d1}, v{acc+2}, v{acc+6}']
    q=pp(QA,QA,QA+1)
    for i in range(6): put(24+i,q[i])
    put(30, f'ds_write2_b32 v{vQKW}, v{QA}, v{QA+1} offset0:0 offset1:{QK_RS//4}')
    qf=[f'ds_read_b128 v[{QFR[u]}:{QFR[u]+3}], v{vQR} offset:{u*64}' for u in range(4)]
    put(36,'s_waitcnt lgkmcnt(5)','s_barrier'); put(37,*qf[0:2]); put(39,*qf[2:4])
    k=pp(KA_,KA_,KA_+1)
    put(40,k[0]); put(41,k[1],k[2]); put(42,k[3],k[4]); put(43,k[5])
    put(44, f'ds_write2_b32 v{vQKW}, v{KA_}, v{KA_+1} offset0:64 offset1:{QK_RS//4+64}')
    put(45, 's_waitcnt lgkmcnt(1)')
    WA=[24,28,32,36,72,76,48,52]
    z0=[f'v_mov_b64 v[{r}:{r+1}], 0' for r in range(24,40,2)]
    kmf=[f'ds_read_b128 v[{KMF+4*u}:{KMF+4*u+3}], v{vKR} offset:{u*64}' for u in range(4)]
    put(32,z0[0]); put(33,z0[1]); put(34,z0[2]); put(35,z0[3]); put(46,z0[4]); put(47,z0[5]); put(48,*z0[6:8])
    put(49,'s_waitcnt lgkmcnt(0)','s_barrier',kmf[0]); put(50,*kmf[1:4])
    put(51, f'v_add_f32 v{VA}, v{VA}, v{VA+1}', f'v_add_f32 v{VA+2}, v{VA+2}, v{VA+3}')
    put(52, f'v_cvt_pk_bf16_f32 v{VM0}, v{VA}, v{VA+2}', f'v_max3_f32 v{T}, v{SX}, v{SX+1}, v{SX+2}')
    put(54, 's_waitcnt lgkmcnt(0)')
    WIN=[104,112,88,96,16,120,40,64]
    def wrd(f):
        b=WIN[f]
        return [f'ds_read_b128 v[{b}:{b+3}], v{vWO} offset:{wo_lds(f+8)}', f'ds_read_b128 v[{b+4}:{b+7}], v{vWO} offset:{wo_lds(f+8)+1024}']
    put(55,*wrd(0)); put(56,*wrd(1))
    put(57, f'v_max3_f32 v{T2}, v{SX+3}, v{SX+4}, v{SX+5}', f'v_max3_f32 v{T}, v{T}, v{SX+6}, v{SX+7}')
    put(58, f'v_max_f32 v{T}, v{T}, v{T2}')
    put(59,*wrd(2)); put(59,*wrd(3))
    sta=[int(x) for x in os.environ.get('STA','17,37,58').split(',')]
    for i,m in enumerate(seq):
        a(m)
        ops=ex.get(i,[])
        if ABL:
            ops=[o for o in ops if not any(p in o for p in ABL)]
        if i in sta: emit(stamp())
        emit([o for o in ops if not o.startswith('v_')]); emit([o for o in ops if o.startswith('v_')])
    assert max(ex)<len(seq)
    B=[]
    B+=[f'v_max3_f32 v{T}, v{T}, v{SM}, v{SM+1}', f'v_mov_b32 v{T2}, v{T}']+wrd(4)
    B+=[f'v_permlane16_swap_b32 v{T2}, v{T}', f'v_max_f32 v{T}, v{T2}, v{T}', f'v_mov_b32 v{T2}, v{T}',
        f'v_add_f32 v{VA+4}, v{VA+4}, v{VA+5}', f'v_add_f32 v{VA+6}, v{VA+6}, v{VA+7}',
        f'v_permlane32_swap_b32 v{T2}, v{T}', f'v_max_f32 v{T}, v{T2}, v{T}', f'v_mul_f32 v{T2}, s{sC}, v{T}']
    for r in (SM,SX,SX+2,SX+4,SX+6):
        B.append(f'v_pk_fma_f32 v[{r}:{r+1}], v[{r}:{r+1}], s[{sC}:{sC+1}], v[{T2}:{T2+1}] op_sel_hi:[1,1,0] neg_lo:[0,0,1] neg_hi:[0,0,1]')
    B+=[f'v_exp_f32 v{SM}, v{SM}', f'v_exp_f32 v{SM+1}, v{SM+1}', f'v_cvt_pk_bf16_f32 v{VM1}, v{VA+4}, v{VA+6}', f'v_cvt_pk_bf16_f32 v{PM}, v{SM}, v{SM+1}']
    OA=VA; LA=SM; PX=SX
    exs=[f'v_exp_f32 v{r}, v{r}' for r in range(SX,SX+8)]
    B+=exs[0:2]+[f'v_mfma_f32_16x16x16_bf16 v[{LA}:{LA+3}], v[{ONES}:{ONES+1}], v[{PM}:{PM+1}], 0']
    B+=exs[2:4]+[f'v_mfma_f32_16x16x16_bf16 v[{OA}:{OA+3}], v[{VM0}:{VM0+1}], v[{PM}:{PM+1}], 0']
    B+=exs[4:6]+[f'v_mfma_f32_16x16x16_bf16 v[{OA+4}:{OA+7}], v[{VM1}:{VM1+1}], v[{PM}:{PM+1}], 0']
    B+=exs[6:8]+[f'v_cvt_pk_bf16_f32 v{PX+i}, v{SX+2*i}, v{SX+2*i+1}' for i in range(4)]
    B+=wrd(5)
    B+=[f'v_mfma_f32_16x16x32_bf16 v[{LA}:{LA+3}], v[{ONES}:{ONES+3}], v[{PX}:{PX+3}], v[{LA}:{LA+3}]']
    B+=wrd(6)
    B+=[f'v_mfma_f32_16x16x32_bf16 v[{OA}:{OA+3}], v[{VC}:{VC+3}], v[{PX}:{PX+3}], v[{OA}:{OA+3}]', f's_cmp_eq_u32 s{sS}, 63',
        f'v_mfma_f32_16x16x32_bf16 v[{OA+4}:{OA+7}], v[{VC+4}:{VC+7}], v[{PX}:{PX+3}], v[{OA+4}:{OA+7}]', 's_cbranch_scc1 rec_fin',
        f'v_rcp_f32 v{LA}, v{LA}']
    z1=[f'v_mov_b64 v[{r}:{r+1}], 0' for r in list(range(72,80,2))+list(range(48,56,2))]
    B+=z1[0:5]
    B+=[f'v_cndmask_b32 v{OA+i}, v{OA+i}, v{OA+4+i}, s[{sODD}:{sODD+1}]' for i in range(4)]
    B+=[f'v_pk_mul_f32 v[{OA+i}:{OA+i+1}], v[{OA+i}:{OA+i+1}], v[{LA}:{LA+1}] op_sel_hi:[1,0]' for i in (0,2)]
    B+=[f'v_cvt_pk_bf16_f32 v{OA+4}, v{OA}, v{OA+1}', f'v_cvt_pk_bf16_f32 v{OA+5}, v{OA+2}, v{OA+3}', f'ds_write_b64 v{vOW}, v[{OA+4}:{OA+5}]']
    emit(B)
    emit(z1[5:8])
    emit(rot_m())
    a('s_waitcnt lgkmcnt(0)')
    a('s_barrier')
    OFR=56
    a(f'ds_read_b128 v[{OFR}:{OFR+3}], v{vL16} offset:{R_O}')
    a(f'ds_read_b128 v[{OFR+4}:{OFR+7}], v{vL16} offset:{R_O+1024}')
    emit(wrd(7))
    RA=124; RB=24
    vq=[]
    def rl():
        vq.extend(['r','r'])
        return [f'buffer_load_dwordx4 v[{RB+4*L}:{RB+4*L+3}], v{vL16}, {W}, s{sRG2} offen offset:{L*1024} sc1' for L in range(2)]
    def epi(T_):
        r=WA[T_]; d=WA[T_&6]+(T_&1)
        return [f'v_add_f32 v{r}, v{r}, v{r+1}', f'v_add_f32 v{r+2}, v{r+2}, v{r+3}', f'v_cvt_pk_bf16_f32 v{d}, v{r}, v{r+2}']
    def pst(c):
        vq.append('s')
        return f'buffer_store_dwordx2 v[{WA[2*c]}:{WA[2*c]+1}], v{vPST}, {W}, s{sPa if c==0 else sPq+c} offen{sc}'
    pend=[]
    RL=[E('RL0',14),E('RL1',16),99,99][w]
    a(f's_mov_b32 s{sRG2}, s{sRG}')
    a('s_waitcnt lgkmcnt(3)')
    for i in range(16):
        T_,t2=i>>1,i&1
        b = wo_reg(i) if i<8 else WIN[i-8]
        a(f'v_smfmac_f32_16x16x64_bf16 v[{WA[T_]}:{WA[T_]+3}], v[{OFR+4*t2}:{OFR+4*t2+3}], v[{b}:{b+7}], v{vIDX}')
        if i==1: emit(stamp())
        if i==RL: emit(rl())
        if i in (7,11,15): a(pst((i-7)//4))
        if i==0: a('s_waitcnt lgkmcnt(2)')
        if i==12: a('s_waitcnt lgkmcnt(0)')
        if i>=3 and (i&1)==1: pend+=epi((i-3)//2)
        for _ in range(2 if i&1 else 1):
            if pend: a(pend.pop(0))
    emit(pend)
    if RL==16: emit(rl())
    emit(epi(7))
    a(pst(3))
    emit(stamp())
    hk=zero_acc()+x_reads(0,4)+house_salu()
    if RL>16:
        n=[0,0,E('H2',12),E('H3',26)][w]
        emit(hk[:n]); hk=hk[n:]
        emit(rl())
    n2=E('HR2',18)
    if E('R2',1):
        emit(hk[:n2]); hk=hk[n2:]
        delay(a,max(0,4*(n2-len(hk[:0]))*0))
        emit(rl())
    emit(hk)
    first=vq.index('r')+1
    a(f's_waitcnt vmcnt({len(vq)-1-first})')
    mm=[f'v_mfma_f32_16x16x32_bf16 v[{RA}:{RA+3}], v[{ONES}:{ONES+3}], v[{RB}:{RB+3}], 0',
        f'v_mfma_f32_16x16x32_bf16 v[{RA}:{RA+3}], v[{ONES}:{ONES+3}], v[{RB+4}:{RB+7}], v[{RA}:{RA+3}]']
    c=chk(RB)
    emit(c[:3]); a(mm[0]); emit(c[3:]); a(mm[1])
    a(f's_cbranch_vccnz rec_go_{tag}' if SOLO else f's_cbranch_vccnz rec_f0_{tag}')
    a.label(f'rec_go_{tag}')
    a(f'v_lshrrev_b32 v{T}, 2, v{vL16}')
    a(f'ds_read_b32 v{PM}, v{T} offset:{R_F}')
    emit(v_reads(w))
    for sh in (4,8):
        for r in (2,3): a(f'v_add_f32 v{RA+r}, v{RA+r}, v{RA+r} row_ror:{sh} row_mask:0xf bank_mask:0xf')
    a(f's_mov_b64 exec, s[{sPM}:{sPM+1}]')
    a(f'v_cvt_pk_bf16_f32 v{RA}, v{RA+2}, v{RA+3}')
    a(f'buffer_store_dword v{RA}, v{vMST}, {W}, s{sMa} offen{sc}')
    a('s_mov_b64 exec, -1')
    emit(stamp())
    a('s_waitcnt lgkmcnt(2)')
    a(f'v_cmp_eq_u32 s[{sKVM}:{sKVM+1}], s{sHI}, v{PM}')
    delay(a,E('DG',90))
    emit(gl(MF,w))
    if G2:
        delay(a,E('GPER',100))
        emit(gl(MF,w))
    emit(stamp())
    if stamps:
        a('s_waitcnt lgkmcnt(0)')
        n=nst[0]
        if SNAP:
            for j in range(3):
                a(f's_cmp_eq_u32 s{sS}, {SNAP+j}')
                for k in range(n): a(f's_cselect_b32 s{sACC+4*j+k}, s{sTS+2*k}, s{sACC+4*j+k}')
            n=0
        for k in range(n):
            prev = f's{sACC+15}' if k==0 else f's{sTS+2*(k-1)}'
            a(f's_sub_u32 s{sU0}, s{sTS+2*k}, {prev}')
            a(f's_add_u32 s{sACC+k}, s{sACC+k}, s{sU0}')
        if n: a(f's_mov_b32 s{sACC+15}, s{sTS+2*(n-1)}')
        a(f's_cmp_eq_u32 s{sS}, 9')
        for k in range(n): a(f's_cselect_b32 s{sACC+k}, 0, s{sACC+k}')
        a(f's_cselect_b32 s{sACC+14}, s{sSPIN}, s{sACC+14}')
    if RT==1 and w==0:
        l=a.newlabel('rs')
        a(f's_and_b32 s8, s{sS}, 7'); a('s_cmp_lg_u32 s8, 0'); a(f's_cbranch_scc1 {l}')
        a(f's_lshr_b32 s8, s{sS}, 3')
        rtstamp(a,8,idx_s=8)
        a.label(l)
    a(f's_branch rec_enter_{tag}')
    a.label(f'rec_f0_{tag}')
    a('s_mov_b64 exec, vcc')
    emit(rl())
    a('s_mov_b64 exec, -1')
    emit(spin(0x10000))
    a(f's_cbranch_scc1 rec_go_{tag}')
    emit(c[:3]); a(mm[0]); emit(c[3:]); a(mm[1])
    a(f's_cbranch_vccnz rec_f0_{tag}')
    a(f's_branch rec_go_{tag}')
```

```python
from common import *
from k_main import *
import common
QF_=common.QF
OFLAG=FLAGS+0x10000; X1FLAG=FLAGS+0x20000; HHFLAG=FLAGS+0x30000
D_MODA=96; D_READY=192
sIDX=63; sSP=52
W=srd4(sWS)

def dbg_add(a):
    pass

def wait_mbox(a, level, tag):
    a(f's_cmp_lg_u32 s{sW}, 0')
    a(f's_cbranch_scc1 {tag}_ok')
    a.label(f'{tag}_w')
    a(f'buffer_load_dword v127, off, {W}, s{sMB} sc1')
    a(f's_add_u32 s{sSP}, s{sSP}, 1')
    a('s_waitcnt vmcnt(0)')
    a(f'v_readfirstlane_b32 s{sT0}, v127')
    a(f's_cmp_ge_u32 s{sT0}, {level}')
    a(f's_cbranch_scc1 {tag}_ok')
    a(f's_cmp_gt_u32 s{sSP}, {SPIN_MAX}')
    a(f's_cbranch_scc1 {tag}_ok')
    a('s_sleep 1')
    a(f's_branch {tag}_w')
    a.label(f'{tag}_ok')
    a('s_barrier')

def arrive_notify(a, off, target, level, tag):
    a('v_mov_b32 v127, 1')
    a(f's_mov_b32 s{sT1}, {off}')
    a('s_mov_b64 exec, 1')
    a(f'buffer_atomic_add v127, off, {srd4(sDBG)}, s{sT1} sc0')
    a('s_mov_b64 exec, -1')
    a('s_waitcnt vmcnt(0)')
    a(f'v_readfirstlane_b32 s{sT0}, v127')
    a(f's_cmp_lg_u32 s{sT0}, {target-1}')
    a(f's_cbranch_scc1 {tag}_na')
    a('v_min_u32 v126, 7, v0')
    a('v_lshlrev_b32 v126, 2, v126')
    a('v_add_u32 v125, 144, v126')
    a('v_cmp_eq_u32 vcc, 0, v126')
    a('v_cndmask_b32 v126, v125, v126, vcc')
    a.label(f'{tag}_tk')
    a(f'buffer_load_dword v127, v126, {srd4(sDBG)}, 0 offen sc1')
    a(f's_add_u32 s{sSP}, s{sSP}, 1')
    a(f's_cmp_gt_u32 s{sSP}, {SPIN_MAX}')
    a('s_waitcnt vmcnt(0)')
    a('v_cmp_gt_u32 vcc, 32, v127')
    a(f's_cbranch_scc1 {tag}_tg')
    a(f's_cbranch_vccnz {tag}_tk')
    a.label(f'{tag}_tg')
    a('v_lshlrev_b32 v126, 7, v0')
    a(f'v_mov_b32 v127, {level}')
    for i in range(4):
        a(f's_mov_b32 s{sT1}, {MBOX+i*8192}')
        a(f'buffer_store_dword v127, v126, {W}, s{sT1} offen sc1')
    a.label(f'{tag}_na')

def arrive_dbg(a, off, tag):
    a('s_waitcnt vmcnt(0)')
    a('s_barrier')
    a(f's_cmp_lg_u32 s{sW}, 0')
    a(f's_cbranch_scc1 {tag}_na')
    arrive_notify(a,off,160,2,tag)

def set_flag(a, addr_s, tag, wave=0):
    a(f's_cmp_lg_u32 s{sW}, {wave}')
    a(f's_cbranch_scc1 {tag}_nf')
    a('v_mov_b32 v127, 1')
    a('s_mov_b64 exec, 1')
    a(f'buffer_store_dword v127, off, {W}, s{addr_s} sc1')
    a('s_mov_b64 exec, -1')
    a.label(f'{tag}_nf')

def wait_flags(a, addr_s, want, voff, tag, sleep=int(os.environ.get('SL','3'))):
    a.label(f'{tag}_pw')
    a(f'buffer_load_dword v127, v{voff}, {W}, s{addr_s} offen sc1')
    a(f's_add_u32 s{sSP}, s{sSP}, 1')
    a(f's_cmp_gt_u32 s{sSP}, {SPIN_MAX}')
    a('s_waitcnt vmcnt(0)')
    a(f'v_cmp_ne_u32 vcc, {want}, v127')
    a(f's_cbranch_scc1 {tag}_pk')
    a(f's_cbranch_vccz {tag}_pk')
    a(f's_sleep {sleep}')
    a(f's_branch {tag}_pw')
    a.label(f'{tag}_pk')

def mod_body(a):
    a(f's_load_dwordx4 s[4:7], s[0:1], {KA["c"]}')
    a(f's_lshl_b32 s{sT0}, s{sW}, 6')
    a(f'v_add_u32 v64, s{sT0}, v0')
    a('v_and_b32 v1, 3, v64')
    a('v_lshrrev_b32 v2, 2, v64')
    a('v_lshlrev_b32 v3, 4, v2')
    a(f's_mov_b32 s{sT0}, 49152')
    a(f'v_mul_lo_u32 v8, v2, s{sT0}')
    a(f's_lshl_b32 s{sT0}, s{sIDX}, 6')
    a('v_lshl_add_u32 v8, v1, 4, v8')
    a(f'v_add_u32 v8, s{sT0}, v8')
    a('s_waitcnt lgkmcnt(0)')
    srd(a,32,4,1024); srd(a,36,6,512*3072*2)
    a('buffer_load_dwordx4 v[4:7], v3, s[32:35], 0 offen')
    for i in range(8):
        a(f's_mov_b32 s{sT0}, {i*6144}')
        a(f'buffer_load_dwordx4 v[{16+4*i}:{19+4*i}], v8, s[36:39], s{sT0} offen')
    a('s_waitcnt vmcnt(8)')
    for i in range(4):
        a(f'v_lshlrev_b32 v{48+2*i}, 16, v{4+i}')
        a(f'v_and_b32 v{49+2*i}, 0xffff0000, v{4+i}')
    for i in range(8): a(f'v_mul_f32 v{56+i}, 0xbfb8aa3b, v{48+i}')
    for i in range(8): a(f'v_exp_f32 v{56+i}, v{56+i}')
    for i in range(8): a(f'v_add_f32 v{56+i}, 1.0, v{56+i}')
    for i in range(8): a(f'v_rcp_f32 v{56+i}, v{56+i}')
    for i in range(8): a(f'v_mul_f32 v{48+i}, v{48+i}, v{56+i}')
    for i in range(4): round_bf16_pair(a,48+2*i,49+2*i,56)
    a('s_waitcnt vmcnt(0)')
    for i in range(8):
        for j in range(4):
            a(f'v_lshlrev_b32 v10, 16, v{16+4*i+j}')
            a(f'v_and_b32 v11, 0xffff0000, v{16+4*i+j}')
            if i==0:
                a(f'v_mul_f32 v{56+2*j}, v48, v10'); a(f'v_mul_f32 v{57+2*j}, v48, v11')
            else:
                a(f'v_fmac_f32 v{56+2*j}, v{48+i}, v10'); a(f'v_fmac_f32 v{57+2*j}, v{48+i}, v11')
    a('v_lshlrev_b32 v9, 5, v64')
    a('ds_write_b128 v9, v[56:59]')
    a('ds_write_b128 v9, v[60:63] offset:16')
    a('s_waitcnt lgkmcnt(0)')
    a('s_barrier')
    a('v_and_b32 v1, 31, v64')
    a('v_lshrrev_b32 v2, 5, v64')
    a('v_lshlrev_b32 v9, 10, v2')
    a('v_lshl_add_u32 v9, v1, 2, v9')
    for i in range(8): a(f'ds_read_b32 v{16+i}, v9 offset:{i*128}')
    a('s_waitcnt lgkmcnt(0)')
    for i in range(1,8): a(f'v_add_f32 v16, v16, v{16+i}')
    a('v_lshlrev_b32 v9, 2, v64')
    a('ds_write_b32 v9, v16 offset:8192')
    a('s_waitcnt lgkmcnt(0)')
    a('s_barrier')
    a('v_lshlrev_b32 v9, 2, v1')
    for i in range(8): a(f'ds_read_b32 v{16+i}, v9 offset:{8192+i*128}')
    a('s_waitcnt lgkmcnt(0)')
    for i in range(1,8): a(f'v_add_f32 v16, v16, v{16+i}')
    round_bf16(a,16,17)
    a(f's_lshr_b32 s{sT0}, s{sIDX}, 4')
    a(f's_cmp_eq_u32 s{sT0}, 1')
    a('s_cbranch_scc1 mod_p1')
    a(f's_cmp_eq_u32 s{sT0}, 4')
    a('s_cbranch_scc0 mod_st')
    a.label('mod_p1')
    a('v_add_f32 v16, 1.0, v16')
    round_bf16(a,16,17)
    a.label('mod_st')
    a(f's_lshl_b32 s{sT0}, s{sIDX}, 7')
    a(f's_add_u32 s{sT0}, s{sT0}, {MOD}')
    a(f's_cmp_lg_u32 s{sW}, 0')
    a('s_cbranch_scc1 mod_ns')
    a(f'buffer_store_dword v16, v9, {W}, s{sT0} offen sc1')
    a(f's_cmp_ge_u32 s{sIDX}, 32')
    a('s_cbranch_scc1 mod_ns')
    a('s_waitcnt vmcnt(0)')
    arrive_notify(a,D_MODA,32,1,'moda')
    a.label('mod_ns')

LX=16; LF=32; LSC=64; LSH=96
LRED=0x27C00
def ln_setup(a):
    a('v_and_b32 v1, 15, v0')
    a('v_lshrrev_b32 v2, 4, v0')
    a('v_lshlrev_b32 v4, 10, v1')
    a('v_lshl_add_u32 v4, v2, 4, v4')
    a(f's_lshl_b32 s{sT0}, s{sW}, 8')
    a(f'v_add_u32 v4, s{sT0}, v4')
    a('v_lshlrev_b32 v5, 5, v2')
    a(f's_lshl_b32 s{sT0}, s{sW}, 9')
    a(f'v_add_u32 v5, s{sT0}, v5')
    a('v_lshlrev_b32 v8, 2, v1')
    a(f'v_add_u32 v8, {LRED}, v8')
    a(f's_lshl_b32 s{sT0}, s{sW}, 6')
    a(f'v_add_u32 v9, s{sT0}, v8')
    a('v_lshlrev_b32 v3, 4, v0')
def ln_load_mod(a, sec_shift, sec_scale):
    a(f's_mov_b32 s{sT0}, {MOD+sec_scale*2048}')
    a(f's_mov_b32 s{sT1}, {MOD+sec_shift*2048}')
    for k in range(4):
        for hf in range(2):
            a(f'buffer_load_dwordx4 v[{LSC+8*k+4*hf}:{LSC+3+8*k+4*hf}], v5, {W}, s{sT0} offen offset:{k*128+hf*16} sc1')
            a(f'buffer_load_dwordx4 v[{LSH+8*k+4*hf}:{LSH+3+8*k+4*hf}], v5, {W}, s{sT1} offen offset:{k*128+hf*16} sc1')
def ln_load_x(a, srdname, soff, sc=''):
    for k in range(4):
        a(f'buffer_load_dwordx4 v[{LX+4*k}:{LX+3+4*k}], v4, {srdname}, s{soff} offen offset:{k*64}{sc}')
def ln_stats(a):
    for j in range(16):
        a(f'v_lshlrev_b32 v{LF+2*j}, 16, v{LX+j}')
        a(f'v_and_b32 v{LF+1+2*j}, 0xffff0000, v{LX+j}')
    a(f'v_add_f32 v6, v{LF}, v{LF+1}'); a(f'v_add_f32 v7, v{LF+2}, v{LF+3}')
    for j in range(4,32,2):
        a(f'v_add_f32 v6, v6, v{LF+j}'); a(f'v_add_f32 v7, v7, v{LF+1+j}')
    a('v_add_f32 v6, v6, v7')
    xlane_reduce(a,'v_add_f32',6,7)
    a('ds_write_b32 v9, v6')
    a('s_waitcnt lgkmcnt(0)'); a('s_barrier')
    for k in range(4): a(f'ds_read_b32 v{10+k}, v8 offset:{k*64}')
    a('s_waitcnt lgkmcnt(0)')
    a('v_add_f32 v10, v10, v11'); a('v_add_f32 v12, v12, v13'); a('v_add_f32 v10, v10, v12')
    a('v_mul_f32 v10, 0x3b000000, v10')
    a(f'v_sub_f32 v11, v{LF}, v10'); a('v_mul_f32 v6, v11, v11')
    a(f'v_sub_f32 v12, v{LF+1}, v10'); a('v_mul_f32 v7, v12, v12')
    for j in range(2,32,2):
        a(f'v_sub_f32 v11, v{LF+j}, v10'); a(f'v_sub_f32 v12, v{LF+1+j}, v10')
        a('v_fmac_f32 v6, v11, v11'); a('v_fmac_f32 v7, v12, v12')
    a('v_add_f32 v6, v6, v7')
    xlane_reduce(a,'v_add_f32',6,7)
    a('ds_write_b32 v9, v6 offset:256')
    a('s_waitcnt lgkmcnt(0)'); a('s_barrier')
    for k in range(4): a(f'ds_read_b32 v{11+k}, v8 offset:{256+k*64}')
    a('s_waitcnt lgkmcnt(0)')
    a('v_add_f32 v11, v11, v12'); a('v_add_f32 v13, v13, v14'); a('v_add_f32 v11, v11, v13')
    a('v_mul_f32 v11, 0x3b000000, v11')
    round_bf16_pair(a,10,11,12)
    a('v_add_f32 v11, 0x3727c5ac, v11')
    round_bf16(a,11,12)
    a('v_sqrt_f32 v11, v11')
    round_bf16(a,11,12)
    a('v_rcp_f32 v11, v11')
def ln_apply(a):
    perm=[0,2,1,3]
    for k in range(4):
        for j in range(4):
            e0=LF+8*k+2*j; e1=e0+1
            a(f'v_sub_f32 v{e0}, v{e0}, v10'); a(f'v_sub_f32 v{e1}, v{e1}, v10')
            round_bf16_pair(a,e0,e1,12)
            a(f'v_mul_f32 v{e0}, v{e0}, v11'); a(f'v_mul_f32 v{e1}, v{e1}, v11')
            round_bf16_pair(a,e0,e1,12)
            a(f'v_mul_f32 v{e0}, v{e0}, v{e0+32}'); a(f'v_mul_f32 v{e1}, v{e1}, v{e1+32}')
            round_bf16_pair(a,e0,e1,12)
            a(f'v_add_f32 v{e0}, v{e0}, v{e0+64}'); a(f'v_add_f32 v{e1}, v{e1}, v{e1+64}')
            a(f'v_cvt_pk_bf16_f32 v{LX+4*k+perm[j]}, v{e0}, v{e1}')
    for k in range(4):
        a(f'v_permlane16_swap_b32 v{LX+4*k}, v{LX+1+4*k}')
        a(f'v_permlane16_swap_b32 v{LX+2+4*k}, v{LX+3+4*k}')

def ln_fast(a):
    for j in range(16):
        a(f'v_lshlrev_b32 v{LF+2*j}, 16, v{LX+j}')
        a(f'v_and_b32 v{LF+1+2*j}, 0xffff0000, v{LX+j}')
    a(f'v_pk_add_f32 v[6:7], v[{LF}:{LF+1}], v[{LF+2}:{LF+3}]')
    a(f'v_pk_add_f32 v[10:11], v[{LF+4}:{LF+5}], v[{LF+6}:{LF+7}]')
    for j in range(8,32,4):
        a(f'v_pk_add_f32 v[6:7], v[6:7], v[{LF+j}:{LF+j+1}]')
        a(f'v_pk_add_f32 v[10:11], v[10:11], v[{LF+j+2}:{LF+j+3}]')
    a('v_pk_add_f32 v[6:7], v[6:7], v[10:11]')
    a('v_add_f32 v6, v6, v7')
    xlane_reduce(a,'v_add_f32',6,7)
    a('v_mul_f32 v6, 0x3c000000, v6')
    a(f'v_pk_add_f32 v[12:13], v[{LF}:{LF+1}], v[6:7] op_sel_hi:[1,0] neg_lo:[0,1] neg_hi:[0,1]')
    a('v_pk_mul_f32 v[10:11], v[12:13], v[12:13]')
    for j in range(2,32,2):
        a(f'v_pk_add_f32 v[12:13], v[{LF+j}:{LF+j+1}], v[6:7] op_sel_hi:[1,0] neg_lo:[0,1] neg_hi:[0,1]')
        a('v_pk_fma_f32 v[10:11], v[12:13], v[12:13], v[10:11]')
    a('v_add_f32 v7, v10, v11')
    xlane_reduce(a,'v_add_f32',7,10)
    a('ds_write2_b32 v9, v6, v7 offset0:0 offset1:64')
    a('s_waitcnt lgkmcnt(0)'); a('s_barrier')
    a(f'ds_read2_b32 v[{LX}:{LX+1}], v8 offset0:0 offset1:16')
    a(f'ds_read2_b32 v[{LX+2}:{LX+3}], v8 offset0:32 offset1:48')
    a(f'ds_read2_b32 v[{LX+4}:{LX+5}], v8 offset0:64 offset1:80')
    a(f'ds_read2_b32 v[{LX+6}:{LX+7}], v8 offset0:96 offset1:112')
    a('s_waitcnt lgkmcnt(0)')
    a(f'v_add_f32 v10, v{LX}, v{LX+1}'); a(f'v_add_f32 v11, v{LX+2}, v{LX+3}'); a('v_add_f32 v10, v10, v11')
    a('v_mul_f32 v10, 0x3e800000, v10')
    a(f'v_add_f32 v11, v{LX+4}, v{LX+5}'); a(f'v_add_f32 v12, v{LX+6}, v{LX+7}'); a('v_add_f32 v11, v11, v12')
    a('v_mul_f32 v11, 0x3c000000, v11')
    for k in range(4):
        a(f'v_sub_f32 v12, v{LX+k}, v10'); a('v_fmac_f32 v11, v12, v12')
    a('v_mul_f32 v11, 0x3e800000, v11')
    round_bf16_pair(a,10,11,12)
    a('v_add_f32 v11, 0x3727c5ac, v11')
    round_bf16(a,11,12)
    a('v_sqrt_f32 v11, v11')
    round_bf16(a,11,12)
    a('v_rcp_f32 v12, v11')
    a('v_mul_f32 v10, v10, v12')
    perm=[0,2,1,3]
    for k in range(4):
        for j in range(4):
            e=LF+8*k+2*j
            a(f'v_pk_fma_f32 v[{e}:{e+1}], v[{e}:{e+1}], v[12:13], v[10:11] op_sel_hi:[1,0,0] neg_lo:[0,0,1] neg_hi:[0,0,1]')
        for j in range(4):
            e=LF+8*k+2*j
            a(f'v_pk_fma_f32 v[{e}:{e+1}], v[{e}:{e+1}], v[{e+32}:{e+33}], v[{e+64}:{e+65}]')
        for j in range(4):
            e=LF+8*k+2*j
            a(f'v_cvt_pk_bf16_f32 v{LX+4*k+perm[j]}, v{e}, v{e+1}')
    for k in range(4):
        a(f'v_permlane16_swap_b32 v{LX+4*k}, v{LX+1+4*k}')
        a(f'v_permlane16_swap_b32 v{LX+2+4*k}, v{LX+3+4*k}')

NWO=4; NUP=4; NDN=2
tB=32; tRES=36; tOUT=40; tCS=64; tU=65; tUS=66; tFA=67; tFB=68; tT2=69
def gen_workers(a):
    a.label('work_start')
    a(f's_mov_b32 s{sSP}, 0')
    a(f's_cmp_lt_u32 s{sROLE}, 96')
    a('s_cbranch_scc1 qkv_start')
    a(f's_sub_u32 s{sIDX}, s{sROLE}, 96')
    rtstamp(a,0)
    a(f's_cmp_ge_u32 s{sIDX}, 128')
    a('s_cbranch_scc1 pre_init')
    a(f's_cmp_ge_u32 s{sIDX}, 96')
    a('s_cbranch_scc1 pre_ln')
    mod_body(a)
    a.label('pre_ln')
    a(f's_load_dwordx2 s[4:5], s[0:1], {KA["x"]}')
    ln_setup(a)
    a('s_waitcnt lgkmcnt(0)')
    srd(a,32,4,2<<20)
    a(f's_lshl_b32 s{sT2}, s{sIDX}, 14')
    ln_load_x(a,'s[32:35]',sT2)
    a('s_waitcnt vmcnt(0)')
    ln_stats(a)
    wait_mbox(a,1,'ln1m')
    ln_load_mod(a,0,1)
    a('s_waitcnt vmcnt(0)')
    ln_apply(a)
    a(f's_lshl_b32 s{sT0}, s{sW}, 12')
    a(f's_add_u32 s{sT2}, s{sT2}, s{sT0}')
    a(f's_add_u32 s{sT2}, s{sT2}, {H1F}')
    for k in range(4):
        a(f'buffer_store_dwordx4 v[{LX+4*k}:{LX+3+4*k}], v3, {W}, s{sT2} offen offset:{k*1024} sc1')
    arrive_dbg(a,D_READY,'ln1a')
    a('s_branch pre_done')
    a.label('pre_init')
    a('v_mov_b64 v[4:5], 0'); a('v_mov_b64 v[6:7], 0')
    a('v_lshlrev_b32 v3, 4, v0')
    a(f's_sub_u32 s{sT0}, s{sIDX}, 128')
    a(f's_lshl_b32 s{sT0}, s{sT0}, 13')
    a(f's_lshl_b32 s{sT1}, s{sW}, 11')
    a(f's_add_u32 s{sT0}, s{sT0}, s{sT1}')
    a(f's_add_u32 s{sT0}, s{sT0}, {FLAGS}')
    a(f'buffer_store_dwordx4 v[4:7], v3, {W}, s{sT0} offen sc1')
    a(f'buffer_store_dwordx4 v[4:7], v3, {W}, s{sT0} offen offset:1024 sc1')
    arrive_dbg(a,D_READY,'inia')
    a.label('pre_done')
    rtstamp(a,1)
    a(f's_cmp_lt_u32 s{sIDX}, 64')
    a('s_cbranch_scc1 wo_start')
    a(f's_cmp_ge_u32 s{sIDX}, 128')
    a('s_cbranch_scc1 dn_start')
    a('s_branch up_start')
    gen_ksplit(a,'wo'); gen_ksplit(a,'dn'); gen_up(a); gen_qkv(a)
    a.label('main_done')
    a('s_endpgm')

def gen_ksplit(a, which):
    L=which
    a.label(f'{L}_start')
    if which=='wo':
        NK=32; a_base=OF; a_rt=131072; gate=2; nset=NWO
        a(f's_load_dwordx2 s[4:5], s[0:1], {KA["Wo"]}')
        a(f's_load_dwordx2 s[6:7], s[0:1], {KA["x"]}')
        a(f's_bfe_u32 s{tU}, s{sIDX}, 0x10004')
        a(f's_lshl_b32 s{tU}, s{tU}, 1')
        a(f's_lshr_b32 s{sT0}, s{sIDX}, 5')
        a(f's_add_u32 s{tU}, s{tU}, s{sT0}')
        a('s_waitcnt lgkmcnt(0)')
        srd(a,tB,4,4<<20); srd(a,tRES,6,2<<20)
        res=srd4(tRES); res_off=0; res_sc=''; out=W; out_off=X1; out_sc=' sc1'
    else:
        NK=14; a_base=HH; a_rt=56*1024; gate=5; nset=NDN
        a(f's_load_dwordx2 s[4:5], s[0:1], {KA["wd"]}')
        a(f's_load_dwordx2 s[6:7], s[0:1], {KA["out"]}')
        a(f's_sub_u32 s{tU}, s{sIDX}, 128')
        a(f's_lshr_b32 s{tU}, s{tU}, 4')
        a('s_waitcnt lgkmcnt(0)')
        srd(a,tB,4,1792*1024); srd(a,tOUT,6,2<<20)
        res=W; res_off=X1; res_sc=' sc1'; out=srd4(tOUT); out_off=0; out_sc=''
    a(f's_and_b32 s{tCS}, s{sIDX}, 15')
    a('s_barrier')
    a('v_lshlrev_b32 v2, 4, v0')
    a('v_lshrrev_b32 v3, 2, v0')
    a('v_lshlrev_b32 v1, 10, v3')
    a('v_and_b32 v3, 3, v0')
    a('v_lshl_add_u32 v1, v3, 4, v1')
    a(f's_lshl_b32 s{sT0}, s{tCS}, 6')
    a(f'v_add_u32 v1, s{sT0}, v1')
    a(f's_lshl_b32 s{sLB}, s{sW}, 15')
    a('v_lshrrev_b32 v3, 2, v0')
    a('v_lshlrev_b32 v4, 6, v3')
    a('v_and_b32 v3, 3, v0')
    a('v_lshl_add_u32 v4, v3, 3, v4')
    a(f'v_add_u32 v4, s{sLB}, v4')
    a(f's_mul_i32 s{tT2}, s{sW}, {NK*32*1024}')
    def issue(kk):
        for i in range(2):
            a(f's_add_u32 m0, s{sLB}, {(kk%16)*2048+i*1024}')
            a(f's_add_u32 s{sT0}, s{tT2}, {(kk*32+i*16)*1024}')
            a(f'buffer_load_dwordx4 v1, {srd4(tB)}, s{sT0} offen lds')
    a('s_waitcnt vmcnt(0)')
    n0=min(16,NK)
    for kk in range(n0): issue(kk)
    o=2*n0
    for k0 in range(0,NK,2):
        a(f's_waitcnt vmcnt({o-4})'); o-=4
        for kk in (k0,k0+1):
            for tau in range(2):
                for i in range(2):
                    r=(kk*2+tau)*4+2*i
                    a(f'ds_read_b64_tr_b16 a[{r}:{r+1}], v4 offset:{(kk%16)*2048+i*1024+tau*32}')
        if k0+16<NK:
            a('s_waitcnt lgkmcnt(0)')
            issue(k0+16); issue(k0+17); o+=4
    wait_mbox(a,2,f'{L}rd')
    a('v_and_b32 v5, 15, v0')
    a('v_lshrrev_b32 v6, 4, v0')
    a('v_lshlrev_b32 v7, 10, v5')
    a('v_lshl_add_u32 v7, v6, 3, v7')
    a(f's_lshl_b32 s{sT0}, s{tCS}, 6')
    a(f's_and_b32 s{sT1}, s{sW}, 1')
    a(f's_lshl_b32 s{sT1}, s{sT1}, 5')
    a(f's_add_u32 s{sT0}, s{sT0}, s{sT1}')
    a(f'v_add_u32 v7, s{sT0}, v7')
    a('v_lshlrev_b32 v8, 4, v6')
    a(f's_lshl_b32 s{sT0}, s{sT0}, 1')
    a(f's_add_u32 s{sT0}, s{sT0}, {MOD+gate*2048}')
    a(f'buffer_load_dwordx4 v[12:15], v8, {W}, s{sT0} offen sc1')
    RED=0x20000
    a(f's_lshl_b32 s{sT0}, s{sW}, 11')
    a(f's_add_u32 s{sT0}, s{sT0}, {RED}')
    a(f'v_add_u32 v9, s{sT0}, v2')
    a(f's_lshl_b32 s{sT0}, s{sT1}, 5')
    a(f's_add_u32 s{sT0}, s{sT0}, {RED}')
    a(f'v_add_u32 v10, s{sT0}, v2')
    if which=='wo':
        a('v_and_b32 v11, 15, v0'); a('v_lshlrev_b32 v11, 2, v11')
    else:
        a('v_min_u32 v11, 13, v0'); a('v_lshlrev_b32 v11, 2, v11')
    a(f's_lshl_b32 s{sT0}, s{sW}, 7'); a(f'v_add_u32 v11, s{sT0}, v11')
    a('s_waitcnt vmcnt(0) lgkmcnt(0)')
    rtstamp(a,2)
    AF=128; ACC=16
    a.label(f'{L}_loop')
    if which=='wo':
        a(f's_lshl_b32 s{tFA}, s{tU}, 9'); a(f's_add_u32 s{tFA}, s{tFA}, {OFLAG}')
    else:
        a(f's_lshl_b32 s{tFA}, s{tU}, 9'); a(f's_add_u32 s{tFA}, s{tFA}, {HHFLAG}')
    a(f's_mul_i32 s{sT2}, s{tU}, {a_rt}')
    a(f's_mul_i32 s{sT1}, s{sW}, {NK*1024}')
    a(f's_add_u32 s{sT2}, s{sT2}, s{sT1}')
    a(f's_add_u32 s{sT2}, s{sT2}, {a_base}')
    a(f's_lshl_b32 s{tT2}, s{tU}, 14')
    a(f's_add_u32 s{sT1}, s{tT2}, {res_off}')
    wait_flags(a,tFA,1,11,L)
    for kk in range(NK):
        if kk and kk%4==0: a(f's_add_u32 s{sT2}, s{sT2}, 4096')
        a(f'buffer_load_dwordx4 v[{AF+4*kk}:{AF+4*kk+3}], v2, {W}, s{sT2} offen offset:{(kk%4)*1024} sc1')
    a(f'buffer_load_dwordx2 v[24:25], v7, {res}, s{sT1} offen{res_sc}')
    for kk in range(NK):
        a(f's_waitcnt vmcnt({NK-kk})')
        for tau in range(2):
            r=(kk*2+tau)*4; acc=ACC+4*tau
            c='0' if kk==0 else f'v[{acc}:{acc+3}]'
            a(f'v_mfma_f32_16x16x32_bf16 v[{acc}:{acc+3}], a[{r}:{r+3}], v[{AF+4*kk}:{AF+4*kk+3}], {c}')
    a(f'ds_write_b128 v9, v[{ACC}:{ACC+3}]')
    a(f'ds_write_b128 v9, v[{ACC+4}:{ACC+7}] offset:1024')
    a('s_waitcnt lgkmcnt(0)')
    a('s_barrier')
    R=32
    for w in range(4): a(f'ds_read_b128 v[{R+4*w}:{R+4*w+3}], v10 offset:{w*2048}')
    a('s_waitcnt lgkmcnt(0) vmcnt(0)')
    a('s_barrier')
    a(f's_cmp_ge_u32 s{sW}, 2')
    a(f's_cbranch_scc1 {L}_next')
    for r in range(4):
        a(f'v_add_f32 v{R+r}, v{R+r}, v{R+4+r}')
        a(f'v_add_f32 v{R+8+r}, v{R+8+r}, v{R+12+r}')
    for r in range(4): a(f'v_add_f32 v{R+r}, v{R+r}, v{R+8+r}')
    round_bf16_pair(a,R,R+1,26); round_bf16_pair(a,R+2,R+3,26)
    for r in range(4): a(f'v_mul_f32 v{R+r}, v{R+r}, v{12+r}')
    round_bf16_pair(a,R,R+1,26); round_bf16_pair(a,R+2,R+3,26)
    a('v_lshlrev_b32 v26, 16, v24'); a('v_and_b32 v27, 0xffff0000, v24')
    a('v_lshlrev_b32 v28, 16, v25'); a('v_and_b32 v29, 0xffff0000, v25')
    for r in range(4): a(f'v_add_f32 v{R+r}, v{R+r}, v{26+r}')
    a(f'v_cvt_pk_bf16_f32 v24, v{R}, v{R+1}')
    a(f'v_cvt_pk_bf16_f32 v25, v{R+2}, v{R+3}')
    a(f's_add_u32 s{sT1}, s{tT2}, {out_off}')
    a(f'buffer_store_dwordx2 v[24:25], v7, {out}, s{sT1} offen{out_sc}')
    if which=='wo':
        a(f's_lshl_b32 s{tFB}, s{tU}, 9'); a(f's_lshr_b32 s{sT0}, s{tCS}, 2'); a(f's_lshl_b32 s{sT0}, s{sT0}, 7'); a(f's_add_u32 s{tFB}, s{tFB}, s{sT0}')
        a(f's_and_b32 s{sT0}, s{tCS}, 3'); a(f's_lshl_b32 s{sT0}, s{sT0}, 3'); a(f's_add_u32 s{tFB}, s{tFB}, s{sT0}')
        a(f's_lshl_b32 s{sT0}, s{sW}, 2'); a(f's_add_u32 s{tFB}, s{tFB}, s{sT0}'); a(f's_add_u32 s{tFB}, s{tFB}, {X1FLAG}')
        a('v_mov_b32 v127, 1')
        a('s_waitcnt vmcnt(0)')
        a('s_mov_b64 exec, 1')
        a(f'buffer_store_dword v127, off, {W}, s{tFB} sc1')
        a('s_mov_b64 exec, -1')
    a.label(f'{L}_next')
    a(f's_add_u32 s{tU}, s{tU}, {nset}')
    a(f's_cmp_lt_u32 s{tU}, 128')
    a(f's_cbranch_scc1 {L}_loop')
    rtstamp(a,3)
    a('s_branch main_done')

def gen_up(a):
    L='up'
    a.label('up_start')
    a(f's_sub_u32 s{tCS}, s{sIDX}, 64'); a(f's_mov_b32 s{tU}, 0')
    a(f's_cmp_lt_u32 s{tCS}, 14'); a('s_cbranch_scc1 up_go')
    a(f's_sub_u32 s{tCS}, s{sIDX}, 78'); a(f's_mov_b32 s{tU}, 1')
    a(f's_cmp_lt_u32 s{tCS}, 14'); a('s_cbranch_scc1 up_go')
    a(f's_sub_u32 s{tCS}, s{sIDX}, 96'); a(f's_mov_b32 s{tU}, 2')
    a(f's_cmp_lt_u32 s{tCS}, 14'); a('s_cbranch_scc1 up_go')
    a(f's_sub_u32 s{tCS}, s{sIDX}, 110'); a(f's_mov_b32 s{tU}, 3')
    a(f's_cmp_lt_u32 s{tCS}, 14'); a('s_cbranch_scc0 main_done')
    a.label('up_go')
    a(f's_load_dwordx4 s[4:7], s[0:1], {KA["wg"]}')
    a('s_waitcnt lgkmcnt(0)')
    srd(a,tB,4,512*3584); srd(a,tRES,6,512*3584)
    RS=3584
    a('s_barrier')
    a(f's_lshl_b32 s{sLB}, s{sW}, 15')
    a('v_bfe_u32 v2, v0, 2, 1'); a('v_bfe_u32 v3, v0, 4, 1'); a('v_lshl_add_u32 v2, v3, 1, v2')
    a('v_bfe_u32 v3, v0, 3, 1'); a('v_lshl_add_u32 v2, v3, 2, v2')
    a('v_bfe_u32 v3, v0, 5, 1'); a('v_lshl_add_u32 v2, v3, 3, v2')
    a(f'v_mul_u32_u24 v1, {RS}, v2')
    a('v_lshlrev_b32 v3, 1, v3'); a('v_xor_b32 v3, v3, v0'); a('v_and_b32 v3, 3, v3')
    a('v_lshl_add_u32 v1, v3, 4, v1')
    a(f's_lshl_b32 s{sT0}, s{tCS}, 8'); a(f's_lshl_b32 s{sT1}, s{sW}, 6'); a(f's_add_u32 s{sT0}, s{sT0}, s{sT1}')
    a(f'v_add_u32 v1, s{sT0}, v1')
    a('v_bfe_u32 v2, v0, 5, 1'); a('v_lshlrev_b32 v4, 10, v2')
    a('v_bfe_u32 v2, v0, 3, 1'); a('v_mul_u32_u24 v2, 544, v2'); a('v_add_u32 v4, v4, v2')
    a('v_bfe_u32 v2, v0, 4, 1'); a('v_lshl_add_u32 v4, v2, 7, v4')
    a('v_bfe_u32 v2, v0, 2, 1'); a('v_lshl_add_u32 v4, v2, 6, v4')
    a('v_and_b32 v2, 3, v0'); a('v_lshl_add_u32 v4, v2, 3, v4')
    a(f'v_add_u32 v4, s{sLB}, v4'); a('v_xor_b32 v5, 32, v4')
    def issue(u):
        X,j=u>>3,u&7
        for i in range(4):
            a(f's_add_u32 m0, s{sLB}, {j*4096+i*1024}')
            a(f's_mov_b32 s{sT0}, {(j*64+i*16)*RS}')
            a(f'buffer_load_dwordx4 v1, {srd4([tB,tRES][X])}, s{sT0} offen lds')
    a('s_waitcnt vmcnt(0)')
    for u in range(8): issue(u)
    o=32
    for u in range(16):
        X,j=u>>3,u&7
        a(f's_waitcnt vmcnt({o-4})'); o-=4
        for tau in range(2):
            b=X*128+(tau*8+j)*8
            for hh in range(2):
                for y in range(2):
                    a(f'ds_read_b64_tr_b16 a[{b+4*hh+2*y}:{b+4*hh+2*y+1}], v{4+tau} offset:{j*4096+hh*2048+y*256}')
        a('s_waitcnt lgkmcnt(0)')
        if u+8<16: issue(u+8); o+=4
    wait_mbox(a,2,'uprd')
    ln_setup(a)
    ln_load_mod(a,3,4)
    a('v_and_b32 v15, 7, v0'); a('v_lshlrev_b32 v15, 2, v15')
    a(f's_lshl_b32 s{sT0}, s{sW}, 7'); a(f'v_add_u32 v15, s{sT0}, v15')
    a(f's_lshl_b32 s{sT0}, s{tCS}, 2'); a(f's_add_u32 s{sT0}, s{sT0}, s{sW}')
    a(f's_mul_i32 s{sT1}, s{sT0}, 4682'); a(f's_lshr_b32 s{sT1}, s{sT1}, 16')
    a(f's_mul_i32 s{sT2}, s{sT1}, 72'); a(f's_lshl_b32 s{sT0}, s{sT0}, 2'); a(f's_add_u32 s{tT2}, s{sT0}, s{sT2}'); a(f's_add_u32 s{tT2}, s{tT2}, {HHFLAG}')
    a(f's_lshl_b32 s{sT0}, s{sW}, 12'); a(f'v_add_u32 v2, s{sT0}, v3')
    a('s_waitcnt vmcnt(0)')
    a('v_mov_b32 v224, v127')
    rtstamp(a,2)
    AF=128; ACC=192
    a.label('up_loop')
    a(f's_lshl_b32 s{tFA}, s{tU}, 9'); a(f's_add_u32 s{tFA}, s{tFA}, {X1FLAG}')
    a(f's_lshl_b32 s{sT2}, s{tU}, 14'); a(f's_add_u32 s{sT2}, s{sT2}, {X1}')
    wait_flags(a,tFA,1,15,L)
    ln_load_x(a,W,sT2,' sc1')
    a('v_mov_b32 v127, v224')
    a('s_waitcnt vmcnt(0)')
    ln_fast(a)
    for k in range(4): a(f'ds_write_b128 v2, v[{LX+4*k}:{LX+3+4*k}] offset:{k*1024}')
    a('s_waitcnt lgkmcnt(0)')
    a('s_barrier')
    for kap in range(12): a(f'ds_read_b128 v[{AF+4*kap}:{AF+4*kap+3}], v3 offset:{kap*1024}')
    for kap in range(16):
        issued=min(16,12+kap)
        a(f's_waitcnt lgkmcnt({issued-kap-1})')
        t,hh=kap>>1,kap&1
        for X in range(2):
            for tau in range(2):
                b=X*128+(tau*8+t)*8+4*hh; acc=ACC+(X*2+tau)*4
                c='0' if kap==0 else f'v[{acc}:{acc+3}]'
                a(f'v_mfma_f32_16x16x32_bf16 v[{acc}:{acc+3}], a[{b}:{b+3}], v[{AF+4*kap}:{AF+4*kap+3}], {c}')
        if kap+12<16: a(f'ds_read_b128 v[{AF+4*(kap+12)}:{AF+4*(kap+12)+3}], v3 offset:{(kap+12)*1024}')
    for r in range(0,16,2): round_bf16_pair(a,ACC+r,ACC+r+1,10)
    for r in range(8): a(f'v_mul_f32 v{ACC+r}, v{ACC+r}, v{ACC+8+r}')
    for r in range(4): a(f'v_cvt_pk_bf16_f32 v{208+r}, v{ACC+2*r}, v{ACC+2*r+1}')
    a(f's_mul_i32 s{sT0}, s{tU}, {56*1024}')
    a(f's_lshl_b32 s{sT1}, s{tCS}, 12'); a(f's_add_u32 s{sT0}, s{sT0}, s{sT1}')
    a(f's_lshl_b32 s{sT1}, s{sW}, 10'); a(f's_add_u32 s{sT0}, s{sT0}, s{sT1}')
    a(f's_add_u32 s{sT0}, s{sT0}, {HH}')
    a(f'buffer_store_dwordx4 v[208:211], v3, {W}, s{sT0} offen sc1')
    a(f's_lshl_b32 s{tFB}, s{tU}, 9'); a(f's_add_u32 s{tFB}, s{tFB}, s{tT2}')
    a('v_mov_b32 v127, 1')
    a('s_barrier')
    a('s_waitcnt vmcnt(0)')
    a('s_mov_b64 exec, 1')
    a(f'buffer_store_dword v127, off, {W}, s{tFB} sc1')
    a('s_mov_b64 exec, -1')
    a(f's_add_u32 s{tU}, s{tU}, {NUP}')
    a(f's_cmp_lt_u32 s{tU}, 128')
    a('s_cbranch_scc1 up_loop')
    rtstamp(a,3)
    a('s_branch main_done')

LEAD=int(os.environ.get('LEAD','4'))
wS=72; wBa=73; wBb=74; wA=75; wO=76; wPF=77; wOFL=78; wKFL=79; wC=80; wMASK=82; wNU=98; wEH=99
def gen_qkv(a):
    a.label('qkv_start')
    a(f's_sub_u32 s{sT0}, s{sROLE}, 32')
    a(f's_lshr_b32 s{sH}, s{sT0}, 1')
    a(f's_and_b32 s{sSLOT}, s{sT0}, 1')
    rtstamp(a,0)
    vL=8; vA=9
    a(f'v_lshlrev_b32 v{vL}, 4, v0')
    issue,consume=gen_loader(a,'wk',False)
    for u in range(8): issue(u)
    out=32
    for u in range(24):
        a(f's_waitcnt vmcnt({out-4})'); out-=4
        consume(u)
        a('s_waitcnt lgkmcnt(0)')
        if u+8<24: issue(u+8); out+=4
    rtstamp(a,1)
    wait_mbox(a,2,'qkrd')
    rtstamp(a,2)
    def dma(seg_s, buf_s):
        a(f's_min_u32 s{sT0}, s{seg_s}, 63')
        a(f's_lshl_b32 s{sT0}, s{sT0}, 15')
        a(f's_lshl_b32 s{sT1}, s{sW}, 13')
        a(f's_add_u32 s{sT0}, s{sT0}, s{sT1}')
        a(f's_add_u32 s{sT0}, s{sT0}, {H1F}')
        a(f's_add_u32 s{sT1}, s{sT1}, s{buf_s}')
        for hf in range(2):
            a(f's_add_u32 m0, s{sT1}, {hf*4096}')
            if hf: a(f's_add_u32 s{sT0}, s{sT0}, 4096')
            for i in range(4):
                a(f'buffer_load_dwordx4 v{vL}, {W}, s{sT0} offen offset:{i*1024} sc1 lds')
    a(f's_mov_b32 s{wS}, s{sSLOT}')
    a(f's_sub_u32 s{wA}, s{sSLOT}, {2*LEAD}')
    a(f's_mov_b32 s{wBa}, 0'); a(f's_mov_b32 s{wBb}, 0x8000')
    dma(wS,wBa)
    a(f's_and_b32 s{wNU}, s{sW}, 1')
    a(f's_lshr_b32 s{wEH}, s{sW}, 1')
    a(f's_mov_b32 s{wC}, 0x3e0293ee')
    a('v_and_b32 v1, 15, v0')
    a('v_lshrrev_b32 v2, 4, v0')
    a('v_lshlrev_b32 v3, 2, v2')
    a('v_sub_u32 v3, v3, v1')
    a(f's_lshl_b32 s{sT0}, s{wNU}, 4')
    a(f'v_subrev_u32 v3, s{sT0}, v3')
    for mu in range(2):
        for r in range(4):
            a(f'v_cmp_ge_i32 vcc, {-(r+16*mu)}, v3')
            a(f's_mov_b64 s[{wMASK+2*(4*mu+r)}:{wMASK+2*(4*mu+r)+1}], vcc')
    vKMo=10; ONES=12; NEG=11
    a('v_lshrrev_b32 v3, 2, v1')
    a(f'v_lshlrev_b32 v{vKMo}, 8, v3')
    a(f'v_lshl_add_u32 v{vKMo}, v2, 6, v{vKMo}')
    a('v_and_b32 v3, 1, v1')
    a(f'v_lshl_add_u32 v{vKMo}, v3, 2, v{vKMo}')
    for i in range(4): a(f'v_mov_b32 v{ONES+i}, 0x3f803f80')
    a(f'v_mov_b32 v{NEG}, 0xf149f2ca')
    a(f's_mov_b32 s{wOFL}, 0')
    ACC=16; HW=64
    LA_=0x10000
    KMr=96; VMr=112; FL=116; wRDY=81
    a(f's_lshl_b32 s{sT0}, s{wNU}, 12')
    a(f's_add_u32 s{sT0}, s{sT0}, {LA_}')
    a(f'v_add_u32 v4, s{sT0}, v{vL}')
    a(f'v_add_u32 v5, {LA_+8192}, v{vL}')
    a(f's_lshl_b32 s{sT0}, s{wEH}, 12')
    a(f's_add_u32 s{sT0}, s{sT0}, {LA_+16384}')
    a(f'v_add_u32 v6, s{sT0}, v{vL}')
    a(f's_lshl_b32 s{wPF+24}, s{sH}, 7')
    a(f's_add_u32 s{wPF+24}, s{wPF+24}, {RECFLAG}')
    wRF=wPF+24
    def km_loads():
        a(f's_lshr_b32 s{sT0}, s{wO}, 1')
        a(f's_add_u32 s{sT0}, s{sT0}, {KM}')
        for u in range(4):
            for d in range(4):
                a(f'buffer_load_dword v{KMr+4*u+d}, v{vKMo}, {W}, s{sT0} offen offset:{u*1024+d*16} sc1')
        a(f's_lshl_b32 s{sT1}, s{wEH}, 11')
        a(f's_add_u32 s{sT0}, s{sT0}, s{sT1}')
        a(f's_add_u32 s{sT0}, s{sT0}, {1<<17}')
        for z in range(2):
            a(f'buffer_load_dwordx2 v[{VMr+2*z}:{VMr+2*z+1}], v{vL}, {W}, s{sT0} offen offset:{z*1024+8} sc1')
    def bflag(addr_s):
        a('s_mov_b64 exec, 1')
        a(f'buffer_store_{"byte" if addr_s==wKFL else "dword"} v7, off, {W}, s{addr_s} sc1')
        a('s_mov_b64 exec, -1')
    a('v_mov_b32 v7, 1')
    a(f's_lshl_b32 s100, s{wNU}, 9'); a(f's_lshr_b32 s{sT0}, s{sH}, 3'); a(f's_lshl_b32 s{sT0}, s{sT0}, 7'); a(f's_add_u32 s100, s100, s{sT0}')
    a(f's_and_b32 s{sT0}, s{sH}, 7'); a(f's_lshl_b32 s{sT0}, s{sT0}, 3'); a(f's_add_u32 s100, s100, s{sT0}')
    a(f's_lshl_b32 s{sT0}, s{wEH}, 2'); a(f's_add_u32 s100, s100, s{sT0}'); a(f's_add_u32 s100, s100, {OFLAG}')
    a('s_waitcnt vmcnt(0)')
    a.label('qa_loop')
    a('s_barrier')
    a(f's_mov_b32 s{wRDY}, 0')
    a(f's_mov_b32 s{wKFL}, -1')
    a(f's_cmp_ge_i32 s{wA}, 64')
    a('s_cbranch_scc1 qa_last')
    a(f's_max_i32 s{sT2}, s{wA}, 0')
    a(f's_lshl_b32 s{wO}, s{sT2}, 18')
    a(f's_lshl_b32 s{sT1}, s{sH}, 13')
    a(f's_add_u32 s{wO}, s{wO}, s{sT1}')
    a(f's_lshl_b32 s{sT1}, s{sW}, 11')
    a(f's_add_u32 s{sT2}, s{wO}, s{sT1}')
    attd=[]
    for X,base in enumerate((QF_,KF,VF)):
        attd.append([f's_add_u32 m0, s{sT1}, {LA_+X*8192}', f's_add_u32 s{sT0}, s{sT2}, {base}', f'buffer_load_dwordx4 v{vL}, {W}, s{sT0} offen sc1 lds'])
        attd.append([f'buffer_load_dwordx4 v{vL}, {W}, s{sT0} offen offset:1024 sc1 lds'])
    a(f's_cmp_ge_u32 s{wS}, 64')
    a('s_cbranch_scc1 qa_noq')
    a(f'v_add_u32 v{vA}, s{wBa}, v{vL}')
    frs=[(kap,mu) for kap in range(16) for mu in range(2)]
    def rd(i):
        kap,mu=frs[i]; b=HW+4*(i%8)
        return f'ds_read_b128 v[{b}:{b+3}], v{vA} offset:{mu*16384+kap*1024}'
    for i in range(6): a(rd(i))
    a(f's_add_u32 s4, s{wS}, 2')
    a('s_min_u32 s4, s4, 63')
    a('s_lshl_b32 s4, s4, 15')
    a(f's_lshl_b32 s5, s{sW}, 13')
    a('s_add_u32 s4, s4, s5')
    a(f's_add_u32 s4, s4, {H1F}')
    a(f's_add_u32 s5, s5, s{wBb}')
    h1d=[]
    for hf in range(2):
        for i in range(4):
            pre=[f's_add_u32 m0, s5, {hf*4096}']+(['s_add_u32 s4, s4, 4096'] if hf else ['s_nop 0']) if i==0 else []
            h1d.append(pre+[f'buffer_load_dwordx4 v{vL}, {W}, s4 offen offset:{i*1024} sc1 lds'])
    bg=attd+h1d+[[f'buffer_load_dword v{FL}, off, {W}, s{wRF} sc1']]
    for i,(kap,mu) in enumerate(frs):
        issued=min(6+i,32)
        a(f's_waitcnt lgkmcnt({issued-i-1})')
        hb=HW+4*(i%8); t,hh=kap>>1,kap&1
        for X in range(3):
            for tau in range(2):
                k,b=wreg(X,tau,t); b+=4*hh
                acc=ACC+((X*2+tau)*2+mu)*4
                c='0' if kap==0 else f'v[{acc}:{acc+3}]'
                wf=f'{k}[{b}:{b+3}]'; hf=f'v[{hb}:{hb+3}]'
                if X<2: a(f'v_mfma_f32_16x16x32_bf16 v[{acc}:{acc+3}], {wf}, {hf}, {c}')
                else:   a(f'v_mfma_f32_16x16x32_bf16 v[{acc}:{acc+3}], {hf}, {wf}, {c}')
                if X==0 and tau==1 and 6+i<32: a(rd(6+i))
                if X>=1 and tau==0 and bg:
                    for o in bg.pop(0): a(o)
        if i==10:
            assert not bg
            a(f's_cmp_eq_u32 s{wOFL}, 0')
            a('s_cbranch_scc1 qaof_nf')
            a('s_waitcnt vmcnt(15)')
            bflag(wOFL)
            a(f's_mov_b32 s{wOFL}, 0')
            a.label('qaof_nf')
        if i==20:
            a('s_waitcnt vmcnt(1)')
            a(f's_cmp_lt_i32 s{wA}, 2')
            a('s_cbranch_scc0 qa_fl')
            a('s_waitcnt vmcnt(0)')
            a.label('qa_fl')
            a(f'v_readfirstlane_b32 s{sT1}, v{FL}')
            a(f's_cmp_gt_i32 s{sT1}, s{wA}')
            a('s_cbranch_scc0 qa_nokm')
            a(f's_mov_b32 s{wRDY}, 1')
            km_loads()
            a.label('qa_nokm')
    a(f's_lshl_b32 s{sT0}, s{wS}, 18')
    a(f's_lshl_b32 s{sT1}, s{sH}, 13')
    a(f's_add_u32 s{sT0}, s{sT0}, s{sT1}')
    a(f's_lshl_b32 s{sT1}, s{sW}, 10')
    a(f's_add_u32 s{sT2}, s{sT0}, s{sT1}')
    a(f's_add_u32 s{sT3}, s{sT2}, s{sT1}')
    a('s_barrier')
    for X,base in ((1,KF),(0,QF_)):
        for mu in range(2):
            a0=ACC+((X*2+0)*2+mu)*4; a1=ACC+((X*2+1)*2+mu)*4
            for r in range(4): a(f'v_cvt_pk_bf16_f32 v{a0+r}, v{a0+r}, v{a1+r}')
            a(f's_add_u32 s{sT0}, s{sT2}, {base+mu*4096}')
            a(f'buffer_store_dwordx4 v[{a0}:{a0+3}], v{vL}, {W}, s{sT0} offen'+(' sc1' if X else ''))
    a(f's_add_u32 s{sT0}, s{sT3}, {VF}')
    for tau in range(2):
        a0=ACC+((4+tau)*2+0)*4; a1=ACC+((4+tau)*2+1)*4
        a(f'v_cvt_pk_bf16_f32 v{a0}, v{a0}, v{a0+1}'); a(f'v_cvt_pk_bf16_f32 v{a0+1}, v{a0+2}, v{a0+3}')
        a(f'v_cvt_pk_bf16_f32 v{a0+2}, v{a1}, v{a1+1}'); a(f'v_cvt_pk_bf16_f32 v{a0+3}, v{a1+2}, v{a1+3}')
        a(f'buffer_store_dwordx4 v[{a0}:{a0+3}], v{vL}, {W}, s{sT0} offen offset:{tau*1024} sc1')
    a(f's_lshl_b32 s{wKFL}, s{sH}, 8')
    a(f's_lshl_b32 s{sT1}, s{wS}, 2')
    a(f's_add_u32 s{wKFL}, s{wKFL}, s{sT1}')
    a(f's_add_u32 s{wKFL}, s{wKFL}, s{sW}')
    a(f's_add_u32 s{wKFL}, s{wKFL}, {KVFLAG}')
    a(f's_mov_b32 s{sT0}, s{wBa}'); a(f's_mov_b32 s{wBa}, s{wBb}'); a(f's_mov_b32 s{wBb}, s{sT0}')
    a(f's_add_u32 s{wS}, s{wS}, 2')
    a(f's_cmp_lt_i32 s{wA}, 0')
    a('s_cbranch_scc0 qa_att2')
    a('s_waitcnt vmcnt(0)')
    bflag(wKFL)
    a(f's_add_u32 s{wA}, s{wA}, 2')
    a('s_branch qa_loop')
    a.label('qa_last')
    a('s_waitcnt vmcnt(0)')
    bflag(wOFL)
    a('s_branch qa_end')
    a.label('qa_noq')
    for g in attd:
        for o in g: a(o)
    a('s_waitcnt vmcnt(6)')
    bflag(wOFL)
    a('s_waitcnt vmcnt(1)')
    a('s_barrier')
    a.label('qa_att2')
    Q=64; K=16; V=80; SX=48; SM=56; LA=60; PX=120; PM=124; T=118
    OA=16; VMp=32; OUT=40
    for u in range(4): a(f'ds_read_b128 v[{Q+4*u}:{Q+4*u+3}], v4 offset:{u*1024}')
    for f in range(8): a(f'ds_read_b128 v[{K+4*f}:{K+4*f+3}], v5 offset:{f*1024}')
    a('s_waitcnt lgkmcnt(4)')
    for t in range(4): a(f'ds_read_b128 v[{V+4*t}:{V+4*t+3}], v6 offset:{t*1024}')
    for mu in range(2):
        if mu: a('s_waitcnt lgkmcnt(4)')
        for u in range(4):
            c='0' if u==0 else f'v[{SX+4*mu}:{SX+4*mu+3}]'
            a(f'v_mfma_f32_16x16x32_bf16 v[{SX+4*mu}:{SX+4*mu+3}], v[{K+16*mu+4*u}:{K+16*mu+4*u+3}], v[{Q+4*u}:{Q+4*u+3}], {c}')
    for i in range(8):
        a(f'v_cndmask_b32 v{SX+i}, v{NEG}, v{SX+i}, s[{wMASK+2*i}:{wMASK+2*i+1}]')
    a(f'v_max3_f32 v{T}, v{SX}, v{SX+1}, v{SX+2}')
    a(f'v_max3_f32 v{T+1}, v{SX+3}, v{SX+4}, v{SX+5}')
    a(f'v_max3_f32 v{T}, v{T}, v{SX+6}, v{SX+7}')
    a(f'v_max_f32 v{T}, v{T}, v{T+1}')
    a(f's_cmp_eq_u32 s{wRDY}, 1')
    a('s_cbranch_scc1 att_rdy')
    a.label('att_poll')
    a(f'buffer_load_dword v{FL}, off, {W}, s{wRF} sc1')
    a(f's_add_u32 s{sSP}, s{sSP}, 1')
    a('s_waitcnt vmcnt(0)')
    a(f'v_readfirstlane_b32 s{sT1}, v{FL}')
    a(f's_cmp_gt_u32 s{sT1}, s{wA}')
    a('s_cbranch_scc1 att_go')
    a(f's_cmp_lt_i32 s{wKFL}, 0')
    a('s_cbranch_scc1 att_nk')
    bflag(wKFL)
    a(f's_mov_b32 s{wKFL}, -1')
    a.label('att_nk')
    a(f's_cmp_gt_u32 s{sSP}, {SPIN_MAX}')
    a('s_cbranch_scc1 att_go')
    a('s_sleep 1')
    a('s_branch att_poll')
    a.label('att_go')
    km_loads()
    a('s_waitcnt vmcnt(0)')
    a('s_branch att_have')
    a.label('att_rdy')
    a('s_waitcnt vmcnt(6)')
    a.label('att_have')
    for u in range(4):
        c='0' if u==0 else f'v[{SM}:{SM+3}]'
        a(f'v_mfma_f32_16x16x32_bf16 v[{SM}:{SM+3}], v[{KMr+4*u}:{KMr+4*u+3}], v[{Q+4*u}:{Q+4*u+3}], {c}')
    for t in range(4):
        a(f'v_mov_b32 v{VMp+2*t}, v{VMr+t}')
        a(f'v_mov_b32 v{VMp+2*t+1}, 0')
    a(f'v_max3_f32 v{T}, v{T}, v{SM}, v{SM+1}')
    xlane_reduce(a,'v_max_f32',T,T+1)
    a(f'v_mul_f32 v{T}, s{wC}, v{T}')
    scs=[SX+i for i in range(8)]+[SM,SM+1]
    for r in scs: a(f'v_fma_f32 v{r}, v{r}, s{wC}, -v{T}')
    for r in scs: a(f'v_exp_f32 v{r}, v{r}')
    for i in range(4): a(f'v_cvt_pk_bf16_f32 v{PX+i}, v{SX+2*i}, v{SX+2*i+1}')
    a(f'v_cvt_pk_bf16_f32 v{PM}, v{SM}, v{SM+1}')
    a(f'v_mov_b32 v{PM+1}, 0')
    a('s_waitcnt lgkmcnt(0)')
    a(f'v_mfma_f32_16x16x32_bf16 v[{LA}:{LA+3}], v[{ONES}:{ONES+3}], v[{PX}:{PX+3}], 0')
    for t in range(4):
        a(f'v_mfma_f32_16x16x32_bf16 v[{OA+4*t}:{OA+4*t+3}], v[{V+4*t}:{V+4*t+3}], v[{PX}:{PX+3}], 0')
    a(f'v_mfma_f32_16x16x16_bf16 v[{LA}:{LA+3}], v[{ONES}:{ONES+1}], v[{PM}:{PM+1}], v[{LA}:{LA+3}]')
    for t in range(4):
        a(f'v_mfma_f32_16x16x16_bf16 v[{OA+4*t}:{OA+4*t+3}], v[{VMp+2*t}:{VMp+2*t+1}], v[{PM}:{PM+1}], v[{OA+4*t}:{OA+4*t+3}]')
    a(f's_lshl_b32 s{sT0}, s{wA}, 18')
    a(f's_lshl_b32 s{sT1}, s{wNU}, 17')
    a(f's_add_u32 s{sT0}, s{sT0}, s{sT1}')
    a(f's_lshl_b32 s{sT1}, s{sH}, 12')
    a(f's_add_u32 s{sT0}, s{sT0}, s{sT1}')
    a(f's_lshl_b32 s{sT1}, s{wEH}, 11')
    a(f's_add_u32 s{sT0}, s{sT0}, s{sT1}')
    a(f's_add_u32 s{sT0}, s{sT0}, {OF}')
    a(f'v_rcp_f32 v{LA}, v{LA}')
    for i in range(16): a(f'v_mul_f32 v{OA+i}, v{OA+i}, v{LA}')
    for i in range(8): a(f'v_cvt_pk_bf16_f32 v{OUT+i}, v{OA+2*i}, v{OA+2*i+1}')
    for z in range(2):
        a(f'buffer_store_dwordx4 v[{OUT+4*z}:{OUT+4*z+3}], v{vL}, {W}, s{sT0} offen offset:{z*1024} sc1')
    a(f's_cmp_lt_i32 s{wKFL}, 0')
    a('s_cbranch_scc1 att_nk2')
    a('s_waitcnt vmcnt(2)')
    bflag(wKFL)
    a.label('att_nk2')
    a(f's_lshl_b32 s{wOFL}, s{wA}, 10')
    a(f's_add_u32 s{wOFL}, s{wOFL}, s100')
    a(f's_add_u32 s{wA}, s{wA}, 2')
    a('s_branch qa_loop')
    a.label('qa_end')
    rtstamp(a,3)
    a('s_branch main_done')
```

```python
import sys
from common import *
import k_main, k_rec, k_work
HEADER=open('cdna_kernels/'+NAME+'.s.ref').read().split('; Override launch')[0]
def build(out, stamps=False, aslist=True):
    a=Asm()
    L=NAME+'_kernel'
    k_main.gen_common(a,L)
    k_rec.gen_rec(a,stamps)
    k_work.gen_workers(a)
    body=a.finalize(verbose=True)
    import os
    if int(os.environ.get('AL','1')): body=align_pass(body)
    import os
    txt=(f'; {os.environ.get("TAG","")}\n' if os.environ.get('TAG') else '')+HEADER
    if aslist: txt+=f'; @launch kernel={L} grid=(256,1,1) block=(256,1,1) lds=163840\n'
    else: txt+='; @launch grid=(256,1,1) block=(256,1,1) lds=163840\n'
    txt+='.amdgcn_target "amdgcn-amd-amdhsa--gfx950"\n.text\n'+body
    txt+='.section .rodata,"a"\n'+kernel_desc(L,512,102,256)
    open(out,'w').write(txt)
if __name__=='__main__':
    build(sys.argv[1], 'stamps' in sys.argv[2:], 'final' not in sys.argv[2:])
```

```python
from common import *
import os

sWS=24; sDBG=28; sWQ=32; sWK=36; sWV=40; sWO=44; sM0=48
sMODE=52; sROLE=53; sW=54; sH=55; sSLOT=56; sXCC=57; sLB=58; sT0=59; sT1=60; sT2=61; sT3=62
sMB=3; MBOX=0x18000
sKT=64
L_M=0x0; L_K=0x2000; L_V=0x4000; L_QK=0x6000; L_SEL=0x7400; L_WO=0x8000
QK_RS=544
SPIN_MAX=1<<22
QORD=[[0,1,2,3],[1,0,2,3],[2,0,1,3],[3,0,1,2]]

def srd4(b): return f's[{b}:{b+3}]'

def interleave(a, main, side, start=0, per=1):
    side=list(side)
    for k,m in enumerate(main):
        a(m)
        if k>=start:
            for _ in range(per):
                if side: a(side.pop(0))
    for s_ in side: a(s_)


def wreg(X, tau, j):
    off=(tau*8+j)*8
    return ('a',X*128+off) if X<2 else ('v',128+off)

def gen_common(a, label):
    kernel_head(a,label)
    a('s_cmp_ge_u32 s2, 256')
    a('s_cbranch_scc1 main_done')
    a(f's_load_dwordx8 s[8:15], s[0:1], {KA["mem0"]}')
    a(f's_load_dwordx2 s[16:17], s[0:1], {KA["Wo"]}')
    a(f's_load_dwordx4 s[20:23], s[0:1], {KA["dbg"]}')
    a(f's_getreg_b32 s{sXCC}, hwreg(HW_REG_XCC_ID)')
    a(f's_and_b32 s{sXCC}, s{sXCC}, 7')
    a('v_lshrrev_b32 v1, 6, v0')
    a(f'v_readfirstlane_b32 s{sW}, v1')
    a('v_and_b32 v0, 63, v0')
    a('s_waitcnt lgkmcnt(0)')
    srd(a,sWS,22,WS_BYTES); srd(a,sDBG,20,256)
    srd(a,sWQ,10,4<<20); srd(a,sWK,12,4<<20); srd(a,sWV,14,4<<20); srd(a,sWO,16,4<<20); srd(a,sM0,8,8192)
    a(f's_lshl_b32 s{sMB}, s2, 7')
    a(f's_add_u32 s{sMB}, s{sMB}, {MBOX}')
    a(f's_cmp_lg_u32 s{sW}, 0')
    a('s_cbranch_scc1 role_wait')
    a(f's_mov_b32 s{sT0}, s{sXCC}')
    a(f's_mov_b32 s{sT2}, 0')
    a('s_mov_b64 exec, 1')
    a.label('role_loop')
    a(f's_cmp_eq_u32 s{sT0}, 0')
    a('s_cbranch_scc1 role_tk')
    a('v_mov_b32 v1, 0')
    a(f'buffer_store_dword v1, off, {srd4(sWS)}, s{sMB} sc1')
    a('s_waitcnt vmcnt(0)')
    a.label('role_tk')
    a('v_mov_b32 v1, 1')
    a(f's_lshl_b32 s{sT1}, s{sT0}, 2')
    a(f's_add_u32 s{sT1}, s{sT1}, 144')
    a(f's_cmp_eq_u32 s{sT0}, 0')
    a(f's_cselect_b32 s{sT1}, 0, s{sT1}')
    a(f'buffer_atomic_add v1, off, {srd4(sDBG)}, s{sT1} sc0')
    a('s_waitcnt vmcnt(0)')
    a(f'v_readfirstlane_b32 s{sT1}, v1')
    a(f's_cmp_lt_u32 s{sT1}, 32')
    a('s_cbranch_scc1 role_got')
    a(f's_add_u32 s{sT0}, s{sT0}, 1')
    a(f's_and_b32 s{sT0}, s{sT0}, 7')
    a(f's_add_u32 s{sT2}, s{sT2}, 1')
    a(f's_cmp_lt_u32 s{sT2}, 8')
    a('s_cbranch_scc1 role_loop')
    a(f's_mov_b32 s{sT0}, 8')
    a(f's_mov_b32 s{sT1}, 0')
    a.label('role_got')
    a(f's_lshl_b32 s{sT0}, s{sT0}, 5')
    a(f's_add_u32 s{sT0}, s{sT0}, s{sT1}')
    a(f'v_mov_b32 v1, s{sT0}')
    a('v_mov_b32 v2, 0')
    a('ds_write_b32 v2, v1')
    a('s_mov_b64 exec, -1')
    a('s_waitcnt lgkmcnt(0)')
    a.label('role_wait')
    a('s_barrier')
    a('v_mov_b32 v2, 0')
    a('ds_read_b32 v1, v2')
    a('s_waitcnt lgkmcnt(0)')
    a(f'v_readfirstlane_b32 s{sROLE}, v1')
    a('s_barrier')
    a(f's_cmp_ge_u32 s{sROLE}, 256')
    a('s_cbranch_scc1 main_done')
    a(f's_lshl_b32 s{sLB}, s{sW}, 15')
    a(f's_add_u32 s{sLB}, s{sLB}, {L_WO}')
    a(f's_cmp_lt_u32 s{sROLE}, 32')
    a('s_cbranch_scc1 rec_start')
    a('s_branch work_start')

def gen_loader(a, tag, rot_is_wave):
    for j in range(8):
        if rot_is_wave:
            tab=sum((2*QORD[w][j>>1]+(j&1))<<(4*w) for w in range(4))
            a(f's_lshl_b32 s{sT0}, s{sW}, 2')
            a(f's_lshr_b32 s{sT0}, {tab}, s{sT0}')
            a(f's_and_b32 s{sT0}, s{sT0}, 7')
            a(f's_lshl_b32 s{sKT+j}, s{sT0}, 19')
        else:
            a(f's_mov_b32 s{sKT+j}, {j<<19}')
    a('v_bfe_u32 v2, v0, 2, 1')
    a('v_bfe_u32 v3, v0, 4, 1')
    a('v_lshl_add_u32 v2, v3, 1, v2')
    a('v_bfe_u32 v3, v0, 3, 1')
    a('v_lshl_add_u32 v2, v3, 2, v2')
    a('v_bfe_u32 v3, v0, 5, 1')
    a('v_lshl_add_u32 v2, v3, 3, v2')
    a('v_lshlrev_b32 v1, 13, v2')
    a('v_lshlrev_b32 v3, 1, v3')
    a('v_xor_b32 v3, v3, v0')
    a('v_and_b32 v3, 3, v3')
    a('v_lshl_add_u32 v1, v3, 4, v1')
    a(f's_lshl_b32 s{sT0}, s{sH}, 8')
    a(f's_lshl_b32 s{sT1}, s{sW}, 6')
    a(f's_add_u32 s{sT0}, s{sT0}, s{sT1}')
    a(f'v_add_u32 v1, s{sT0}, v1')
    a('v_bfe_u32 v2, v0, 5, 1')
    a('v_lshlrev_b32 v4, 10, v2')
    a('v_bfe_u32 v2, v0, 3, 1')
    a('v_mul_u32_u24 v2, 544, v2')
    a('v_add_u32 v4, v4, v2')
    a('v_bfe_u32 v2, v0, 4, 1')
    a('v_lshl_add_u32 v4, v2, 7, v4')
    a('v_bfe_u32 v2, v0, 2, 1')
    a('v_lshl_add_u32 v4, v2, 6, v4')
    a('v_and_b32 v2, 3, v0')
    a('v_lshl_add_u32 v4, v2, 3, v4')
    a(f'v_add_u32 v4, s{sLB}, v4')
    a('v_xor_b32 v5, 32, v4')
    srds=[sWQ,sWK,sWV]
    def issue(u):
        X,j=u>>3,u&7
        for i in range(4):
            a(f's_add_u32 m0, s{sLB}, {j*4096+i*1024}')
            a(f's_add_u32 s{sT0}, s{sKT+j}, {i*131072}')
            a(f'buffer_load_dwordx4 v1, {srd4(srds[X])}, s{sT0} offen lds')
    def consume(u):
        X,j=u>>3,u&7
        for tau in range(2):
            k,b=wreg(X,tau,j)
            for hh in range(2):
                for y in range(2):
                    a(f'ds_read_b64_tr_b16 {k}[{b+4*hh+2*y}:{b+4*hh+2*y+1}], v{4+tau} offset:{j*4096+hh*2048+y*256}')
    return issue, consume


def coop_addrs(a, D, A, strides, pats, col_s=None):
    a('v_lshrrev_b32 v16, 4, v0')
    a('v_and_b32 v17, 15, v0')
    a('v_and_b32 v18, 1, v16'); a('v_lshlrev_b32 v18, 1, v18')
    a('v_xor_b32 v17, v17, v18')
    a(f's_lshl_b32 s{sT0}, s{sW}, 4')
    a(f'v_add_u32 v16, s{sT0}, v16')
    for k,st in enumerate(strides):
        a(f's_mov_b32 s{sT0}, {st}')
        a(f'v_mul_lo_u32 v18, v16, s{sT0}')
        if k==0 and col_s is not None: a(f'v_add_u32 v18, s{col_s}, v18')
        for i in range(4):
            a(f'v_xor_b32 v19, {i<<2}, v17')
            a(f'v_lshl_add_u32 v{D+4*k+i}, v19, 4, v18')
            if i: a(f'v_add_u32 v{D+4*k+i}, {4*i*st}, v{D+4*k+i}')
    for k,pat in enumerate(pats):
        if pat=='H': b16,rb3,rb2=5,3,4
        else:        b16,rb3,rb2=4,5,3
        r=A+2*k
        a(f'v_bfe_u32 v2, v0, {b16}, 1'); a(f'v_lshlrev_b32 v{r}, 12, v2')
        a(f'v_bfe_u32 v2, v0, {rb3}, 1'); a(f'v_lshl_add_u32 v{r}, v2, 11, v{r}'); a('v_lshlrev_b32 v3, 3, v2')
        a(f'v_bfe_u32 v2, v0, {rb2}, 1'); a(f'v_lshl_add_u32 v{r}, v2, 10, v{r}'); a('v_lshl_add_u32 v3, v2, 2, v3')
        a('v_bfe_u32 v2, v0, 2, 1'); a(f'v_lshl_add_u32 v{r}, v2, 8, v{r}'); a('v_lshl_add_u32 v3, v2, 1, v3')
        a('v_bfe_u32 v2, v0, 1, 1')
        a(f's_lshl_b32 s{sT0}, s{sW}, 2')
        a(f'v_add_u32 v2, s{sT0}, v2')
        a('v_xor_b32 v2, v2, v3')
        a(f'v_lshl_add_u32 v{r}, v2, 4, v{r}')
        a('v_and_b32 v2, 1, v0')
        a(f'v_lshl_add_u32 v{r}, v2, 3, v{r}')
        a(f'v_add_u32 v{r}, {L_WO}, v{r}')
        a(f'v_xor_b32 v{r+1}, 32, v{r}')

def coop_issue(a, u, dreg, srd_, soff_expr):
    for l in soff_expr: a(l)
    for i in range(4):
        a(f's_add_u32 m0, s{sLB}, {(u&7)*16384+i*1024}')
        a(f'buffer_load_dwordx4 v{dreg+i}, {srd_}, s{sT0} offen lds')

def coop_reads(a, u, areg, hi, dst):
    sl=u&7
    for tau in range(2):
        k,b=dst(tau)
        ad=(areg if sl<4 else hi)+tau
        for hh in range(2):
            for y in range(2):
                a(f'ds_read_b64_tr_b16 {k}[{b+4*hh+2*y}:{b+4*hh+2*y+1}], v{ad} offset:{(sl&3)*16384+hh*8192+y*512}')
```

```python
from common import *
from k_main import *
import os
E=lambda k,d: int(os.environ.get(k,str(d)))

R_K=0x0
R_V=0x2000
R_M=0x4000
R_QK=0x6000
R_O=0x7200
vT=0; vIDX=1; vL16=2; vQKW=3; vQR=4; vKR=5; vOW=6; vWO=7; vPST=8; vMST=9; NEG1=10; PM=14
MF=16; QA=48; KA_=56; VA=64; VC=72; ONES=80; VM0=84; VM1=86; KX=88
QFR=[16,20,120,124]
sS=72; sMa=73; sMb=74; sMc=75; sPa=76; sPb=77; sPc=78; sMa2=79; sKVM=80; sODD=82; sSPIN=84; sKB=85; sC=86
sU0=88; sU1=89; sKO=90; sVO=91; sFV=93; sHW=94; sRO=95
sPUB=96; sPR=97; sRG=98; sRG2=99; sHA=92; sHI=70; sFLA=100; sH13=101; sPUB0=63; sPq=64
sPM=68
sTS=4; sACC=32
STSEL=[x for x in os.environ.get('STSEL','').split(',') if x]
SOLO=E('SOLO',0)
SNAP=E('SNAP',0)
ABL=[x for x in os.environ.get('ABL','').split(',') if x]
HINT=0x3000
def wo_reg(f):
    j,tau=f>>1,f&1
    return wreg(2,tau,j)[1]

def delay(a,cyc):
    n=cyc//4
    while n>0:
        c=min(n,16); a(f's_nop {c-1}'); n-=c

def wo_lds(f):
    c,tile,t2=f>>2,(f>>1)&1,f&1
    return ((c-2)*2+t2)*16384+tile*2048

def gen_rec(a, stamps=False):
    global SPIN_MAX
    if stamps: SPIN_MAX=1<<30
    W=srd4(sWS)
    a.label('rec_start')
    a(f's_mov_b32 s{sH}, s{sROLE}')
    rtstamp(a,0)
    D1,D2,A0,A2,H0,H2=96,100,112,114,116,118
    a(f's_lshl_b32 s{sLB}, s{sW}, 12')
    a(f's_add_u32 s{sLB}, s{sLB}, {L_WO}')
    a(f's_lshl_b32 s13, s{sH}, 8')
    a(f's_lshl_b32 s12, s{sH}, 17')
    coop_addrs(a,D1,A0,[8192,1024],[],col_s=13)
    q=[]
    def issue(u):
        X,j=u>>3,u&7
        if X<3: coop_issue(a,u,D1,srd4([sWQ,sWK,sWV][X]),[f's_mov_b32 s{sT0}, {j<<19}'])
        else: coop_issue(a,u,D2,srd4(sWO),[f's_add_u32 s{sT0}, s12, {(j&1)*65536+(j>>1)*256}'])
        q.extend([('u',u)]*4)
    def wait_for(tag):
        idx=max(i for i,t in enumerate(q) if t==tag)
        a(f's_waitcnt vmcnt({len(q)-1-idx})')
        del q[:idx+1]
    def vm(text,tag):
        a(text); q.append(tag)
    for u in range(8): issue(u)
    coop_addrs(a,D1,A0,[],['H','O'])
    for i in range(4): a(f'v_add_u32 v{H0+i}, 0x10000, v{A0+i}')
    a(f'v_lshlrev_b32 v{vL16}, 4, v0')
    a(f'v_add_u32 v{vWO}, s{sLB}, v{vL16}')
    a(f'v_add_u32 v{vWO}, 0x10000, v{vWO}')
    for r in range(NEG1,NEG1+4): a(f'v_mov_b32 v{r}, -1')
    a('v_and_b32 v19, 1, v0')
    a(f'v_mov_b32 v{vIDX}, 0x4444')
    a('v_mov_b32 v16, 0xeeee')
    a('v_cmp_eq_u32 vcc, 1, v19')
    a(f'v_cndmask_b32 v{vIDX}, v{vIDX}, v16, vcc')
    a(f's_mov_b32 s{sODD}, 0xaaaaaaaa'); a(f's_mov_b32 s{sODD+1}, 0xaaaaaaaa')
    a(f's_mov_b32 s{sPM}, 0x000f000f'); a(f's_mov_b32 s{sPM+1}, 0x000f000f')
    a('v_and_b32 v16, 15, v0')
    a('v_lshrrev_b32 v17, 4, v0')
    a(f'v_mul_u32_u24 v{vQKW}, {2*QK_RS}, v17')
    a(f'v_lshl_add_u32 v{vQKW}, v16, 2, v{vQKW}')
    a(f's_lshl_b32 s{sT1}, s{sW}, 6')
    a(f's_add_u32 s{sT1}, s{sT1}, {R_QK}')
    a(f'v_add_u32 v{vQKW}, s{sT1}, v{vQKW}')
    a('v_lshrrev_b32 v18, 1, v16')
    a(f'v_mul_u32_u24 v{vQR}, {QK_RS}, v18')
    a(f'v_lshl_add_u32 v{vQR}, v17, 4, v{vQR}')
    a(f'v_add_u32 v{vQR}, {R_QK}, v{vQR}')
    a('v_lshrrev_b32 v18, 2, v16')
    a('v_lshlrev_b32 v18, 1, v18')
    a('v_add_u32 v18, v18, v19')
    a(f'v_mul_u32_u24 v{vKR}, {QK_RS}, v18')
    a(f'v_lshl_add_u32 v{vKR}, v17, 4, v{vKR}')
    a(f'v_add_u32 v{vKR}, {R_QK+256}, v{vKR}')
    a('v_lshrrev_b32 v18, 1, v17')
    a(f'v_lshlrev_b32 v{vOW}, 8, v18')
    a('v_lshrrev_b32 v18, 1, v16')
    a(f'v_lshl_add_u32 v{vOW}, v18, 5, v{vOW}')
    a('v_and_b32 v18, 1, v17')
    a(f'v_lshl_add_u32 v{vOW}, v18, 4, v{vOW}')
    a(f'v_lshl_add_u32 v{vOW}, v19, 3, v{vOW}')
    a(f's_lshl_b32 s{sT1}, s{sW}, 9')
    a(f's_add_u32 s{sT1}, s{sT1}, {R_O}')
    a(f'v_add_u32 v{vOW}, s{sT1}, v{vOW}')
    a('v_lshrrev_b32 v18, 3, v0')
    a(f'v_lshlrev_b32 v{vPST}, 11, v18')
    a('v_and_b32 v18, 7, v0')
    a(f'v_lshl_add_u32 v{vPST}, v18, 3, v{vPST}')
    a(f's_lshl_b32 s{sT1}, s{sW}, 14')
    a(f's_lshl_b32 s{sT2}, s{sH}, 6')
    a(f's_add_u32 s{sT1}, s{sT1}, s{sT2}')
    a(f'v_add_u32 v{vPST}, s{sT1}, v{vPST}')
    a('v_lshrrev_b32 v18, 1, v17')
    a(f'v_lshlrev_b32 v{vMST}, 5, v18'); a('v_lshlrev_b32 v24, 10, v18')
    a('v_and_b32 v18, 3, v0')
    a(f'v_lshl_add_u32 v{vMST}, v18, 2, v{vMST}'); a('v_lshl_add_u32 v24, v18, 2, v24')
    a('v_and_b32 v18, 1, v17')
    a(f'v_lshl_add_u32 v{vMST}, v18, 8, v{vMST}'); a('v_lshl_add_u32 v24, v18, 5, v24')
    a(f's_lshr_b32 s{sT1}, s{sH}, 3'); a(f's_lshl_b32 s{sT3}, s{sT1}, 6'); a(f's_lshl_b32 s{sT1}, s{sT1}, 9')
    a(f's_and_b32 s{sT2}, s{sH}, 1'); a(f's_lshl_b32 s{sT2}, s{sT2}, 4')
    a(f's_add_u32 s{sT1}, s{sT1}, s{sT2}'); a(f's_add_u32 s{sT3}, s{sT3}, s{sT2}')
    a(f's_bfe_u32 s{sT2}, s{sH}, 0x20001'); a(f's_lshl_b32 s{sT0}, s{sT2}, 11'); a(f's_lshl_b32 s{sT2}, s{sT2}, 6')
    a(f's_add_u32 s{sT1}, s{sT1}, s{sT2}'); a(f's_add_u32 s{sT3}, s{sT3}, s{sT0}')
    a(f's_lshl_b32 s{sT2}, s{sW}, 11'); a(f's_add_u32 s{sT1}, s{sT1}, s{sT2}')
    a(f's_lshl_b32 s{sT2}, s{sW}, 8'); a(f's_add_u32 s{sT3}, s{sT3}, s{sT2}')
    a(f'v_add_u32 v{vMST}, s{sT1}, v{vMST}')
    vm(f'buffer_load_dword v106, v24, {srd4(sM0)}, s{sT3} offen','m0')
    a('v_mov_b32 v24, 0x3f80'); a('v_mov_b32 v25, 0x3f800000'); a('v_mov_b32 v26, 0x3f803f80')
    a('v_and_b32 v18, 3, v16')
    for d in range(4):
        lo=4*(d&1)+2+(d>>1)
        a(f'v_cmp_eq_u32 vcc, {lo}, v16')
        a(f'v_cndmask_b32 v{ONES+d}, 0, v24, vcc')
        a(f'v_cmp_eq_u32 vcc, {lo+8}, v16')
        a(f'v_cndmask_b32 v{ONES+d}, v{ONES+d}, v25, vcc')
        a('v_cmp_eq_u32 vcc, 0, v18')
        a(f'v_cndmask_b32 v{ONES+d}, v{ONES+d}, v26, vcc')
    for r in (VM0,VM0+1,VM1,VM1+1,PM+1): a(f'v_mov_b32 v{r}, 0')
    a(f's_mov_b32 s{sC}, 0x3e0293ee'); a(f's_mov_b32 s{sC+1}, 0x3e0293ee')
    a(f's_mov_b32 s{sS}, 0')
    a(f's_mov_b32 s{sMa}, {MRING}'); a(f's_mov_b32 s{sMb}, {MRING+8192}'); a(f's_mov_b32 s{sMc}, {MRING+16384}')
    a(f's_mov_b32 s{sPa}, {PRING}'); a(f's_mov_b32 s{sPb}, {PRING+0x40000}'); a(f's_mov_b32 s{sPc}, {PRING+0x80000}')
    a(f's_mov_b32 s{sSPIN}, 0')
    a(f's_lshl_b32 s{sH13}, s{sH}, 13')
    a(f's_lshl_b32 s{sT1}, s{sW}, 11')
    a(f's_add_u32 s{sHW}, s{sH13}, s{sT1}')
    a(f's_add_u32 s{sKO}, s{sHW}, {KF}')
    a(f's_add_u32 s{sVO}, s{sHW}, {VF}')
    a(f's_lshl_b32 s{sRO}, s{sW}, 16')
    a(f's_lshl_b32 s{sT2}, s{sH}, 11')
    a(f's_add_u32 s{sRO}, s{sRO}, s{sT2}')
    a(f's_lshl_b32 s{sFLA}, s{sH}, 7')
    a(f's_add_u32 s{sFLA}, s{sFLA}, {RECFLAG}')
    a(f's_lshr_b32 s{sPUB}, s{sHW}, 1')
    a(f's_add_u32 s{sPUB}, s{sPUB}, {KM}')
    a(f's_mov_b32 s{sFV}, 0')
    a(f's_mov_b32 s{sKB}, 0')
    a(f's_mov_b32 s{sHI}, 0x01010101')
    a(f's_lshl_b32 s{sHA}, s{sH}, 8'); a(f's_add_u32 s{sHA}, s{sHA}, {KVFLAG}')
    for sl in range(3):
        a(f's_add_u32 s{sT1}, s{sHW}, {PRING+sl*0x40000}')
        vm(f'buffer_store_dwordx4 v[{NEG1}:{NEG1+3}], v{vL16}, {W}, s{sT1} offen sc1','i')
        vm(f'buffer_store_dwordx4 v[{NEG1}:{NEG1+3}], v{vL16}, {W}, s{sT1} offen offset:1024 sc1','i')
    vm(f'buffer_store_dword v{NEG1}, v{vMST}, {W}, s{sMb} offen sc1','i')
    vm(f'buffer_store_dword v{NEG1}, v{vMST}, {W}, s{sMc} offen sc1','i')
    a(f'v_lshrrev_b32 v107, 2, v{vL16}')
    def kvdma(f):
        a(f's_lshl_b32 s{sT1}, s{sW}, 11')
        a(f's_add_u32 m0, s{sT1}, {R_K}')
        f(f'buffer_load_dwordx4 v{vL16}, {W}, s{sKO} offen sc1 lds')
        f(f'buffer_load_dwordx4 v{vL16}, {W}, s{sKO} offen offset:1024 sc1 lds')
        a(f's_add_u32 m0, s{sT1}, {R_V}')
        f(f'buffer_load_dwordx4 v{vL16}, {W}, s{sVO} offen sc1 lds')
        f(f'buffer_load_dwordx4 v{vL16}, {W}, s{sVO} offen offset:1024 sc1 lds')
    def polls(f, dma=True):
        a(f's_mov_b32 s{sT1}, 192'); f(f'buffer_load_dword v108, off, {srd4(sDBG)}, s{sT1} sc1')
        a(f's_mov_b32 s{sT1}, 64'); f(f'buffer_load_dword v109, off, {srd4(sDBG)}, s{sT1} sc1')
        f(f'buffer_load_dword v110, v107, {W}, s{sHA} offen sc1')
        if dma: kvdma(f)
    TMPX=16; TMPW=88
    for u in range(32):
        X,j=u>>3,u&7
        wait_for(('u',u))
        a('s_barrier')
        if u>=1 and u+7<32: issue(u+7)
        if u>=29:
            for tau,b in enumerate((88,120)):
                for hh in range(2): a(f'ds_write_b128 v{vWO}, v[{b+4*hh}:{b+4*hh+3}] offset:{(u-29)*16384+tau*2048+hh*1024}')
            a('s_waitcnt lgkmcnt(0)')
        if u==28:
            for l in xbase(): a(l)
            for x in range(8):
                for hh in range(2): a(f'ds_write_b128 v{vT}, v[{TMPX+8*x+4*hh}:{TMPX+8*x+4*hh+3}] offset:{(x>>1)*16384+(x&1)*2048+hh*1024}')
                if x==3: a('s_waitcnt lgkmcnt(0)')
        if X<2: coop_reads(a,u,A0,H0,lambda tau: wreg(X,tau,j))
        elif X==2:
            done=a.newlabel('wv')
            for w in range(4):
                nx=a.newlabel('wv')
                if w<3:
                    a(f's_cmp_lg_u32 s{sW}, {w}'); a(f's_cbranch_scc1 {nx}')
                sj=2*QORD[w].index(j>>1)+(j&1)
                coop_reads(a,u,A0,H0,lambda tau: ('v',TMPX+8*(2*sj+tau)) if sj<4 else wreg(2,tau,sj))
                if w<3:
                    a(f's_branch {done}'); a.label(nx)
            a.label(done)
        elif u<28: coop_reads(a,u,A2,H2,lambda tau: ('v',wo_reg(((j>>1)*2+tau)*2+(j&1))))
        else: coop_reads(a,u,A2,H2,lambda tau: ('v',(88,120)[tau]))
        a('s_waitcnt lgkmcnt(0)')
        if u==8:
            vm(f'buffer_store_dword v106, v{vMST}, {W}, s{sMa} offen sc1','i')
        if u==17:
            a(f's_cmp_eq_u32 s{sXCC}, 0')
            a(f's_cselect_b32 s{sT0}, 1, 0x10001')
            a(f'v_mov_b32 v106, s{sT0}')
            a(f's_cmp_eq_u32 s{sW}, 0')
            a('s_cselect_b32 exec_lo, 1, 0')
            a('s_mov_b32 exec_hi, 0')
            a(f's_mov_b32 s{sT1}, 64')
            a(f'buffer_atomic_add v106, off, {srd4(sDBG)}, s{sT1}')
            a('s_mov_b64 exec, -1')
        if u==E('PU',28): polls(lambda t: vm(t,'p'))
    a('s_barrier')
    for tau,b in enumerate((88,120)):
        for hh in range(2): a(f'ds_write_b128 v{vWO}, v[{b+4*hh}:{b+4*hh+3}] offset:{3*16384+tau*2048+hh*1024}')
    rtstamp(a,1)
    a(f's_mov_b32 s{sT3}, 0')
    a.label('rec_chk')
    a('s_waitcnt vmcnt(0)')
    a(f'v_readfirstlane_b32 s{sT2}, v108')
    a(f'v_readfirstlane_b32 s{sT0}, v109')
    a(f'v_cmp_eq_u32 s[{sKVM}:{sKVM+1}], s{sHI}, v110')
    a(f's_add_u32 s{sSPIN}, s{sSPIN}, 1')
    a(f's_cmp_gt_u32 s{sSPIN}, {SPIN_MAX}')
    a('s_cbranch_scc1 rec_go')
    a(f's_cmp_lt_u32 s{sT2}, 160')
    a('s_cbranch_scc1 rec_again')
    a(f's_and_b32 s{sT2}, s{sT0}, 0xffff')
    a(f's_cmp_lt_u32 s{sT2}, 32')
    a('s_cbranch_scc1 rec_again')
    a(f's_bitcmp1_b64 s[{sKVM}:{sKVM+1}], 0')
    a('s_cbranch_scc1 rec_go')
    a.label('rec_again')
    a('s_sleep 8')
    a(f's_mov_b32 s{sT3}, 1')
    polls(a,False)
    a('s_branch rec_chk')
    a.label('rec_go')
    a(f's_cmp_eq_u32 s{sT3}, 0')
    a('s_cbranch_scc1 rec_go2')
    kvdma(a)
    a('s_waitcnt vmcnt(0)')
    a.label('rec_go2')
    rtstamp(a,3)
    a('s_waitcnt lgkmcnt(0)')
    for t in house_salu(first=True): a(t)
    a(f's_cmp_eq_u32 s{sT0}, 32')
    a('s_cbranch_scc0 rec_slow')
    for w in range(4):
        a(f's_cmp_eq_u32 s{sW}, {w}')
        a(f's_cbranch_scc1 rec_redo_f{w}')
    a.label('rec_slow')
    for w in range(3):
        a(f's_cmp_eq_u32 s{sW}, {w}')
        a(f's_cbranch_scc1 rec_redo_s{w}')
    a('s_branch rec_redo_s3')
    for fast in (True,False):
        for w in range(4):
            gen_loop(a, fast, w, stamps)
    a.label('rec_fin')
    rtstamp(a,4)
    a(f'v_mov_b32 v{KA_+2}, v{VM0}'); a(f'v_mov_b32 v{KA_+3}, v{VM1}')
    a(f's_add_u32 s{sU0}, s{sPUB}, {1<<17}')
    a(f'buffer_store_dwordx4 v[{KA_}:{KA_+3}], v{vL16}, {W}, s{sU0} offen sc1')
    if stamps:
        a('s_waitcnt lgkmcnt(0)')
        a(f's_sub_u32 s{sACC+14}, s{sSPIN}, s{sACC+14}')
        for k in range(16): a(f'v_writelane_b32 v126, s{sACC+k}, {k}')
        a(f's_lshl_b32 s{sU0}, s{sH}, 8')
        a(f's_lshl_b32 s{sU1}, s{sW}, 6')
        a(f's_add_u32 s{sU0}, s{sU0}, s{sU1}')
        a(f's_add_u32 s{sU0}, s{sU0}, 0x6000000')
        a(f'v_lshrrev_b32 v127, 2, v{vL16}')
        a('s_mov_b64 exec, 0xffff')
        a(f'buffer_store_dword v126, v127, {W}, s{sU0} offen')
        a('s_mov_b64 exec, -1')
    a('s_waitcnt vmcnt(0)')
    a('s_barrier')
    a(f's_cmp_lg_u32 s{sW}, 1')
    a('s_cbranch_scc1 main_done')
    a(f'v_mov_b32 v124, 64')
    a('s_mov_b64 exec, 1')
    a(f'buffer_store_dword v124, off, {W}, s{sFLA} sc1')
    if E('WB',0):
        a(f's_cmp_lg_u32 s{sH}, 0')
        a('s_cbranch_scc1 main_done')
        a('s_waitcnt vmcnt(0)')
        a('buffer_wbl2 sc1')
    a('s_branch main_done')

def xreg(x): return [88,96,104,112,120,16,104,112][x]
def xbase(): return [f'v_add_u32 v{vT}, 0xffff0000, v{vWO}']
def x_reads(lo,hi):
    r=[]
    for x in range(lo,hi):
        b=xreg(x)
        r+=[f'ds_read_b128 v[{b}:{b+3}], v{vT} offset:{(x>>1)*16384+(x&1)*2048}', f'ds_read_b128 v[{b+4}:{b+7}], v{vT} offset:{(x>>1)*16384+(x&1)*2048+1024}']
    return r
def zero_acc():
    return [f'v_mov_b64 v[{r}:{r+1}], 0' for r in range(VA+6,QA-2,-2)]
def v_reads(w):
    return [f'ds_read_b128 v[{VC+4*t}:{VC+4*t+3}], v{vL16} offset:{R_V+w*2048+t*1024}' for t in range(2)]
def rot_m():
    return [f's_mov_b32 s{sU0}, s{sMa}', f's_mov_b32 s{sMa}, s{sMb}', f's_mov_b32 s{sMb}, s{sMc}', f's_mov_b32 s{sMc}, s{sU0}', f's_add_u32 s{sMa2}, s{sMa}, 4096']
def house_salu(first=False):
    r=[]
    if not first:
        r+=[f's_mov_b32 s{sU0}, s{sPa}', f's_mov_b32 s{sPa}, s{sPb}', f's_mov_b32 s{sPb}, s{sPc}', f's_mov_b32 s{sPc}, s{sU0}',
            f's_add_u32 s{sPUB}, s{sPUB}, {1<<17}', f's_mov_b32 s{sFV}, s{sS}',
            f's_add_u32 s{sS}, s{sS}, 1']
    if first: r+=[f's_add_u32 s{sMa2}, s{sMa}, 4096']
    r+=[
        f's_add_u32 s{sU1}, s{sS}, 1', f's_min_u32 s{sU1}, s{sU1}, 63',
        f's_lshl_b32 s{sU0}, s{sU1}, 18', f's_add_u32 s{sU0}, s{sU0}, s{sHW}',
        f's_add_u32 s{sKO}, s{sU0}, {KF}', f's_add_u32 s{sVO}, s{sU0}, {VF}',
        f's_add_u32 s{sPR}, s{sPc}, s{sRO}', f's_add_u32 s{sRG}, s{sPa}, s{sRO}']
    r+=[f's_add_u32 s{sPq+c}, s{sPa}, {c*65536}' for c in range(1,4)]
    return r

def gen_loop(a, fast, w, stamps):
    tag=('f' if fast else 's')+str(w)
    sc='' if fast else ' sc1'
    W=srd4(sWS)
    nst=[0]; nall=[0]
    def stamp():
        nall[0]+=1
        if stamps and (not STSEL or str(nall[0]-1) in STSEL):
            k=nst[0]; nst[0]+=1
            return [f'{"s_memrealtime" if SNAP else "s_memtime"} s[{sTS+2*k}:{sTS+2*k+1}]']
        return []
    def emit(lst):
        for t in lst: a(t)
    def sm(X,tau,j):
        k,b=wreg(X,tau,j if X==2 else 2*QORD[w][j>>1]+(j&1))
        if X==2 and j<4: b=xreg(2*j+tau)
        acc=[QA,KA_,VA][X]+4*tau
        return f'v_smfmac_f32_16x16x64_bf16 v[{acc}:{acc+3}], v[{MF+4*j}:{MF+4*j+3}], {k}[{b}:{b+7}], v{vIDX}'
    def moff(j): return R_M+(2*QORD[w][j>>1]+(j&1))*1024
    def gl(b,c):
        return [f'buffer_load_dwordx4 v[{b+4*L}:{b+4*L+3}], v{vL16}, {W}, s{sMa if c<2 else sMa2} offen offset:{(c&1)*2048+L*1024} sc1' for L in range(2)]
    def spin(inc):
        return [f's_add_u32 s{sSPIN}, s{sSPIN}, {inc if stamps else 1}', f's_cmp_gt_u32 s{sSPIN}, {SPIN_MAX}']
    T=vT; C2=PM
    def chk(b):
        return [f'v_max3_u32 v{T}, v{b}, v{b+1}, v{b+2}', f'v_max3_u32 v{C2}, v{b+3}, v{b+4}, v{b+5}',
                f'v_max3_u32 v{T}, v{T}, v{b+6}, v{b+7}', f'v_max_u32 v{T}, v{T}, v{C2}', f'v_cmp_eq_u32 vcc, -1, v{T}']
    a.label(f'rec_redo_{tag}')
    emit(xbase()+x_reads(0,4)+v_reads(w)+zero_acc())
    emit(gl(MF,w))
    a('s_waitcnt vmcnt(0)')
    a(f's_branch rec_enter_{tag}')
    a.label(f'rec_g0_{tag}')
    a('s_mov_b64 exec, vcc')
    emit(gl(MF,w))
    a('s_mov_b64 exec, -1')
    emit(spin(1))
    a(f's_cbranch_scc1 rec_ok0_{tag}')
    for _ in range(E('SPG',1)):
        emit(chk(MF)); a(f's_cbranch_vccz rec_ok0_{tag}')
    emit(chk(MF))
    a(f's_cbranch_vccnz rec_g0_{tag}')
    a(f's_branch rec_ok0_{tag}')
    a.label(f'rec_kvw_{tag}')
    a(f's_add_u32 s{sT2}, s{sT2}, 1')
    a(f'v_lshrrev_b32 v{PM}, 2, v{vL16}')
    a(f'buffer_load_dword v{PM}, v{PM}, {W}, s{sHA} offen sc1')
    a('s_waitcnt vmcnt(0)')
    a(f'v_cmp_eq_u32 s[{sKVM}:{sKVM+1}], s{sHI}, v{PM}')
    a(f's_cmp_gt_u32 s{sT2}, {1<<22}')
    a(f's_cbranch_scc1 rec_kvok_{tag}')
    a(f's_bitcmp1_b64 s[{sKVM}:{sKVM+1}], s{sU1}')
    a(f's_cbranch_scc0 rec_kvw_{tag}')
    a(f's_branch rec_kvok_{tag}')
    a('.p2align 6')
    a.label(f'rec_enter_{tag}')
    GL=[int(x) for x in os.environ.get(f'G{w}',['150,250','150,250','110,200,290','110,200,290'][w]).split(',')]
    G2=len(GL)-1
    a(f's_waitcnt vmcnt({2*G2}) lgkmcnt(0)')
    emit(chk(MF))
    a(f's_cbranch_vccnz rec_ok0_{tag}' if SOLO else f's_cbranch_vccnz rec_g0_{tag}')
    a.label(f'rec_ok0_{tag}')
    emit(stamp())
    seq=[]; ex={}
    def put(i,*ops): ex.setdefault(i,[]).extend(ops)
    def grp(X,c): return [sm(X,tau,j) for j in (2*c,2*c+1) for tau in range(2)]
    seq+=grp(2,0)+grp(0,0)+grp(1,0)
    seq+=grp(0,1)+grp(0,2)+grp(0,3)
    seq+=grp(1,1)+grp(1,2)+grp(1,3)
    seq+=grp(2,1)
    vv=[sm(2,0,4),sm(2,0,5),sm(2,0,6),sm(2,0,7),sm(2,1,4),sm(2,1,5),sm(2,1,6),sm(2,1,7)]
    seq+=vv[0:6]
    SX=QA; SM=KA_+4; KMF=KX; T2=KA_+2
    def sx(mu,u):
        c = '0' if u==0 else f'v[{SX+4*mu}:{SX+4*mu+3}]'
        f=KX+4*(mu*4+u)
        return f'v_mfma_f32_16x16x32_bf16 v[{SX+4*mu}:{SX+4*mu+3}], v[{f}:{f+3}], v[{QFR[u]}:{QFR[u]+3}], {c}'
    seq+=[sx(0,u) for u in range(4)]+[sx(1,u) for u in range(4)]
    seq+=[vv[6]]
    for u in range(4):
        c='0' if u==0 else f'v[{SM}:{SM+3}]'
        seq.append(f'v_mfma_f32_16x16x32_bf16 v[{SM}:{SM+3}], v[{KMF+4*u}:{KMF+4*u+3}], v[{QFR[u]}:{QFR[u]+3}], {c}')
    seq+=[vv[7]]
    mw=[f'ds_write_b128 v{vL16}, v[{MF}:{MF+3}] offset:{moff(0)}', f'ds_write_b128 v{vL16}, v[{MF+4}:{MF+7}] offset:{moff(1)}']
    put(0,mw[0]); put(1,mw[1])
    B1=E('B1',6)
    mr=[f'ds_read_b128 v[{MF+4*j}:{MF+4*j+3}], v{vL16} offset:{moff(j)}' for j in range(2,8)]
    put(B1,'s_waitcnt lgkmcnt(0)','s_barrier')
    put(B1,mr[0]); put(B1+1,*mr[1:3]); put(B1+2,*mr[3:5]); put(B1+3,mr[5])
    put(11,'s_waitcnt lgkmcnt(5)'); put(13,'s_waitcnt lgkmcnt(4)'); put(15,'s_waitcnt lgkmcnt(0)')
    kx=[f'ds_read_b128 v[{KX+4*f}:{KX+4*f+3}], v{vL16} offset:{R_K+f*1024}' for f in range(8)]
    for f in range(4): put(16+f, kx[f])
    put(10, f's_bitcmp1_b64 s[{sKVM}:{sKVM+1}], s{sU1}', f's_cbranch_scc0 rec_kvw_{tag}', f'rec_kvok_{tag}:')
    put(11, f's_mov_b32 m0, {R_V+w*2048}')
    put(12, f'buffer_load_dwordx4 v{vL16}, {W}, s{sVO} offen sc1 lds')
    put(13, f'buffer_load_dwordx4 v{vL16}, {W}, s{sVO} offen offset:1024 sc1 lds')
    R_F=0x7A00+w*256
    put(8, f'v_lshrrev_b32 v{T}, 2, v{vL16}')
    put(14, f's_mov_b32 m0, {R_F}')
    put(15, f'buffer_load_dword v{T}, {W}, s{sHA} offen sc1 lds')
    put(16,*xbase())
    put(19,'s_waitcnt vmcnt(3)')
    xr=x_reads(4,8)
    for i in range(8): put(20+i, xr[i])
    rs=[f'buffer_store_dwordx4 v[{NEG1}:{NEG1+3}], v{vL16}, {W}, s{sPR} offen{sc}',
        f'buffer_store_dwordx4 v[{NEG1}:{NEG1+3}], v{vL16}, {W}, s{sPR} offen offset:1024{sc}',
        f's_mov_b64 exec, s[{sPM}:{sPM+1}]', f'buffer_store_dword v{NEG1}, v{vMST}, {W}, s{sMc} offen{sc}', 's_mov_b64 exec, -1']
    if E('RSA',1):
        put(E('RS0',20)+(w&1), rs[0]); put(E('RS1',32)+(w&1), rs[1]); put(E('RS2',28),*rs[2:])
    if w==0:
        put(18, f'v_mov_b32 v{PM}, s{sFV}')
        put(34, 's_mov_b64 exec, 1', f'buffer_store_dword v{PM}, off, {W}, s{sFLA} sc1', 's_mov_b64 exec, -1')
    def pp(acc,d0,d1):
        return [f'v_add_f32 v{acc}, v{acc}, v{acc+1}', f'v_add_f32 v{acc+2}, v{acc+2}, v{acc+3}',
                f'v_add_f32 v{acc+4}, v{acc+4}, v{acc+5}', f'v_add_f32 v{acc+6}, v{acc+6}, v{acc+7}',
                f'v_cvt_pk_bf16_f32 v{d0}, v{acc}, v{acc+4}', f'v_cvt_pk_bf16_f32 v{d1}, v{acc+2}, v{acc+6}']
    q=pp(QA,QA,QA+1)
    for i in range(6): put(24+i,q[i])
    put(30, f'ds_write2_b32 v{vQKW}, v{QA}, v{QA+1} offset0:0 offset1:{QK_RS//4}')
    qf=[f'ds_read_b128 v[{QFR[u]}:{QFR[u]+3}], v{vQR} offset:{u*64}' for u in range(4)]
    put(35,'s_waitcnt lgkmcnt(1)')
    put(37,'s_waitcnt lgkmcnt(0)','s_barrier'); put(38,*qf[0:2]); put(39,*qf[2:4])
    put(40,*kx[4:6]); put(41,*kx[6:8])
    k=pp(KA_,KA_,KA_+1)
    for i in range(6): put(36+i,k[i])
    put(42, f'ds_write2_b32 v{vQKW}, v{KA_}, v{KA_+1} offset0:64 offset1:{QK_RS//4+64}')
    put(42, f'v_mov_b32 v{KA_+2}, v{VM0}'); put(43, f'v_mov_b32 v{KA_+3}, v{VM1}')
    put(E('PB',44)+(w&1), f'buffer_store_dwordx4 v[{KA_}:{KA_+3}], v{vL16}, {W}, s{sPUB} offen sc1')
    put(45, 's_waitcnt lgkmcnt(5)')
    WA=[24,28,32,36,72,76,48,52]
    z0=[f'v_mov_b64 v[{r}:{r+1}], 0' for r in range(24,40,2)]
    kmf=[f'ds_read_b128 v[{KMF+4*u}:{KMF+4*u+3}], v{vKR} offset:{u*64}' for u in range(4)]
    put(44,z0[0]); put(45,z0[1]); put(46,*z0[2:4]); put(47,*z0[4:6]); put(53,*z0[6:8])
    put(47, f's_mov_b32 m0, {R_K+w*2048}')
    put(48,'s_waitcnt lgkmcnt(0)','s_barrier',kmf[0]); put(49,*kmf[1:4])
    put(50, f'buffer_load_dwordx4 v{vL16}, {W}, s{sKO} offen sc1 lds')
    put(51, f'buffer_load_dwordx4 v{vL16}, {W}, s{sKO} offen offset:1024 sc1 lds')
    put(50, f'v_add_f32 v{VA}, v{VA}, v{VA+1}', f'v_add_f32 v{VA+2}, v{VA+2}, v{VA+3}')
    put(52, f'v_cvt_pk_bf16_f32 v{VM0}, v{VA}, v{VA+2}', f'v_max3_f32 v{T}, v{SX}, v{SX+1}, v{SX+2}')
    put(54, 's_waitcnt lgkmcnt(0)')
    WIN=[104,112,88,96,16,120,40,64]
    def wrd(f):
        b=WIN[f]
        return [f'ds_read_b128 v[{b}:{b+3}], v{vWO} offset:{wo_lds(f+8)}', f'ds_read_b128 v[{b+4}:{b+7}], v{vWO} offset:{wo_lds(f+8)+1024}']
    put(55,*wrd(0)); put(56,*wrd(1))
    put(57, f'v_max3_f32 v{T2}, v{SX+3}, v{SX+4}, v{SX+5}', f'v_max3_f32 v{T}, v{T}, v{SX+6}, v{SX+7}')
    put(58, f'v_max_f32 v{T}, v{T}, v{T2}')
    put(59,*wrd(2)); put(59,*wrd(3))
    sta=[int(x) for x in os.environ.get('STA','17,37,58').split(',')]
    for i,m in enumerate(seq):
        a(m)
        ops=ex.get(i,[])
        if ABL:
            ops=[o for o in ops if not any(p in o for p in ABL)]
        if i in sta: emit(stamp())
        emit([o for o in ops if not o.startswith('v_')]); emit([o for o in ops if o.startswith('v_')])
    assert max(ex)<len(seq)
    B=[]
    B+=[f'v_max3_f32 v{T}, v{T}, v{SM}, v{SM+1}', f'v_mov_b32 v{T2}, v{T}']+wrd(4)
    B+=[f'v_permlane16_swap_b32 v{T2}, v{T}', f'v_max_f32 v{T}, v{T2}, v{T}', f'v_mov_b32 v{T2}, v{T}',
        f'v_add_f32 v{VA+4}, v{VA+4}, v{VA+5}', f'v_add_f32 v{VA+6}, v{VA+6}, v{VA+7}',
        f'v_permlane32_swap_b32 v{T2}, v{T}', f'v_max_f32 v{T}, v{T2}, v{T}', f'v_mul_f32 v{T2}, s{sC}, v{T}']
    for r in (SM,SX,SX+2,SX+4,SX+6):
        B.append(f'v_pk_fma_f32 v[{r}:{r+1}], v[{r}:{r+1}], s[{sC}:{sC+1}], v[{T2}:{T2+1}] op_sel_hi:[1,1,0] neg_lo:[0,0,1] neg_hi:[0,0,1]')
    B+=[f'v_exp_f32 v{SM}, v{SM}', f'v_exp_f32 v{SM+1}, v{SM+1}', f'v_cvt_pk_bf16_f32 v{VM1}, v{VA+4}, v{VA+6}', f'v_cvt_pk_bf16_f32 v{PM}, v{SM}, v{SM+1}']
    OA=VA; LA=SM; PX=SX
    exs=[f'v_exp_f32 v{r}, v{r}' for r in range(SX,SX+8)]
    B+=exs[0:2]+[f'v_mfma_f32_16x16x16_bf16 v[{LA}:{LA+3}], v[{ONES}:{ONES+1}], v[{PM}:{PM+1}], 0']
    B+=exs[2:4]+[f'v_mfma_f32_16x16x16_bf16 v[{OA}:{OA+3}], v[{VM0}:{VM0+1}], v[{PM}:{PM+1}], 0']
    B+=exs[4:6]+[f'v_mfma_f32_16x16x16_bf16 v[{OA+4}:{OA+7}], v[{VM1}:{VM1+1}], v[{PM}:{PM+1}], 0']
    B+=exs[6:8]+[f'v_cvt_pk_bf16_f32 v{PX+i}, v{SX+2*i}, v{SX+2*i+1}' for i in range(4)]
    B+=wrd(5)
    B+=[f'v_mfma_f32_16x16x32_bf16 v[{LA}:{LA+3}], v[{ONES}:{ONES+3}], v[{PX}:{PX+3}], v[{LA}:{LA+3}]']
    B+=wrd(6)
    B+=[f'v_mfma_f32_16x16x32_bf16 v[{OA}:{OA+3}], v[{VC}:{VC+3}], v[{PX}:{PX+3}], v[{OA}:{OA+3}]', f's_cmp_eq_u32 s{sS}, 63',
        f'v_mfma_f32_16x16x32_bf16 v[{OA+4}:{OA+7}], v[{VC+4}:{VC+7}], v[{PX}:{PX+3}], v[{OA+4}:{OA+7}]', 's_cbranch_scc1 rec_fin',
        f'v_rcp_f32 v{LA}, v{LA}']
    z1=[f'v_mov_b64 v[{r}:{r+1}], 0' for r in list(range(72,80,2))+list(range(48,56,2))]
    B+=z1[0:5]
    B+=[f'v_cndmask_b32 v{OA+i}, v{OA+i}, v{OA+4+i}, s[{sODD}:{sODD+1}]' for i in range(4)]
    B+=[f'v_pk_mul_f32 v[{OA+i}:{OA+i+1}], v[{OA+i}:{OA+i+1}], v[{LA}:{LA+1}] op_sel_hi:[1,0]' for i in (0,2)]
    B+=[f'v_cvt_pk_bf16_f32 v{OA+4}, v{OA}, v{OA+1}', f'v_cvt_pk_bf16_f32 v{OA+5}, v{OA+2}, v{OA+3}', f'ds_write_b64 v{vOW}, v[{OA+4}:{OA+5}]']
    emit(B)
    if not E('RSA',1): emit(rs[:1]+rs[2:])
    emit(z1[5:8])
    emit(rot_m())
    a('s_waitcnt lgkmcnt(0)')
    a('s_barrier')
    OFR=56
    a(f'ds_read_b128 v[{OFR}:{OFR+3}], v{vL16} offset:{R_O}')
    a(f'ds_read_b128 v[{OFR+4}:{OFR+7}], v{vL16} offset:{R_O+1024}')
    emit(wrd(7))
    if not E('RSA',1): emit(rs[1:2])
    RA=124; RB=24
    vq=[]
    def rl():
        vq.extend(['r','r'])
        return [f'buffer_load_dwordx4 v[{RB+4*L}:{RB+4*L+3}], v{vL16}, {W}, s{sRG2} offen offset:{L*1024} sc1' for L in range(2)]
    def epi(T_):
        r=WA[T_]; d=WA[T_&6]+(T_&1)
        return [f'v_add_f32 v{r}, v{r}, v{r+1}', f'v_add_f32 v{r+2}, v{r+2}, v{r+3}', f'v_cvt_pk_bf16_f32 v{d}, v{r}, v{r+2}']
    def pst(c):
        vq.append('s')
        return f'buffer_store_dwordx2 v[{WA[2*c]}:{WA[2*c]+1}], v{vPST}, {W}, s{sPa if c==0 else sPq+c} offen{sc}'
    pend=[]
    RL=[E('RL0',99),E('RL1',99),99,99][w]
    a(f's_mov_b32 s{sRG2}, s{sRG}')
    a('s_waitcnt lgkmcnt(3)')
    for i in range(16):
        T_,t2=i>>1,i&1
        b = wo_reg(i) if i<8 else WIN[i-8]
        a(f'v_smfmac_f32_16x16x64_bf16 v[{WA[T_]}:{WA[T_]+3}], v[{OFR+4*t2}:{OFR+4*t2+3}], v[{b}:{b+7}], v{vIDX}')
        if i==1: emit(stamp())
        if i==RL: emit(rl())
        if i in (7,11,15): a(pst((i-7)//4))
        if i==0: a('s_waitcnt lgkmcnt(2)')
        if i==12: a('s_waitcnt lgkmcnt(0)')
        if i>=3 and (i&1)==1: pend+=epi((i-3)//2)
        for _ in range(2 if i&1 else 1):
            if pend: a(pend.pop(0))
    emit(pend)
    if RL==16: emit(rl())
    emit(epi(7))
    a(pst(3))
    emit(stamp())
    hk=zero_acc()+xbase()+x_reads(0,4)+house_salu()
    def L(k,d): return [int(x) for x in os.environ.get(k,d).split(',') if x]
    now=0
    for tm in L(f'A{w}',['20,130','40,150','100,200,300','130,230,330'][w]):
        while now+5<=tm and hk:
            a(hk.pop(0)); now+=5
        delay(a,tm-now); now=max(now,tm)
        emit(rl()); now+=16
    emit(hk)
    first=vq.index('r')+1
    a(f's_waitcnt vmcnt({len(vq)-1-first})')
    mm=[f'v_mfma_f32_16x16x32_bf16 v[{RA}:{RA+3}], v[{ONES}:{ONES+3}], v[{RB}:{RB+3}], 0',
        f'v_mfma_f32_16x16x32_bf16 v[{RA}:{RA+3}], v[{ONES}:{ONES+3}], v[{RB+4}:{RB+7}], v[{RA}:{RA+3}]']
    c=chk(RB)
    emit(c[:3]); a(mm[0]); emit(c[3:]); a(mm[1])
    a(f's_cbranch_vccnz rec_go_{tag}' if SOLO else f's_cbranch_vccnz rec_f0_{tag}')
    a.label(f'rec_go_{tag}')
    a(f'v_lshrrev_b32 v{T}, 2, v{vL16}')
    a(f'ds_read_b32 v{PM}, v{T} offset:{R_F}')
    emit(v_reads(w))
    for sh in (4,8):
        for r in (2,3): a(f'v_add_f32 v{RA+r}, v{RA+r}, v{RA+r} row_ror:{sh} row_mask:0xf bank_mask:0xf')
    a(f's_mov_b64 exec, s[{sPM}:{sPM+1}]')
    a(f'v_cvt_pk_bf16_f32 v{RA}, v{RA+2}, v{RA+3}')
    a(f'buffer_store_dword v{RA}, v{vMST}, {W}, s{sMa} offen{sc}')
    a('s_mov_b64 exec, -1')
    emit(stamp())
    a('s_waitcnt lgkmcnt(2)')
    a(f'v_cmp_eq_u32 s[{sKVM}:{sKVM+1}], s{sHI}, v{PM}')
    now=20
    for tm in GL:
        delay(a,tm-now); now=max(now,tm)
        emit(gl(MF,w)); now+=16
    emit(stamp())
    if stamps:
        a('s_waitcnt lgkmcnt(0)')
        n=nst[0]
        if SNAP:
            for j in range(3):
                a(f's_cmp_eq_u32 s{sS}, {SNAP+j}')
                for k in range(n): a(f's_cselect_b32 s{sACC+4*j+k}, s{sTS+2*k}, s{sACC+4*j+k}')
            n=0
        for k in range(n):
            prev = f's{sACC+15}' if k==0 else f's{sTS+2*(k-1)}'
            a(f's_sub_u32 s{sU0}, s{sTS+2*k}, {prev}')
            a(f's_add_u32 s{sACC+k}, s{sACC+k}, s{sU0}')
        if n: a(f's_mov_b32 s{sACC+15}, s{sTS+2*(n-1)}')
        a(f's_cmp_eq_u32 s{sS}, 9')
        for k in range(n): a(f's_cselect_b32 s{sACC+k}, 0, s{sACC+k}')
        a(f's_cselect_b32 s{sACC+14}, s{sSPIN}, s{sACC+14}')
    if RT==1 and w==0:
        l=a.newlabel('rs')
        a(f's_and_b32 s8, s{sS}, 7'); a('s_cmp_lg_u32 s8, 0'); a(f's_cbranch_scc1 {l}')
        a(f's_lshr_b32 s8, s{sS}, 3')
        rtstamp(a,8,idx_s=8)
        a.label(l)
    a(f's_branch rec_enter_{tag}')
    a.label(f'rec_f0_{tag}')
    a('s_mov_b64 exec, vcc')
    emit(rl())
    a('s_mov_b64 exec, -1')
    emit(spin(0x10000))
    a(f's_cbranch_scc1 rec_go_{tag}')
    for _ in range(E('SPR',1)):
        emit(c[:3]); a(mm[0]); emit(c[3:]); a(mm[1]); a(f's_cbranch_vccz rec_go_{tag}')
    emit(c[:3]); a(mm[0]); emit(c[3:]); a(mm[1])
    a(f's_cbranch_vccnz rec_f0_{tag}')
    a(f's_branch rec_go_{tag}')
```

```python
from common import *
from k_main import *
import common
QF_=common.QF
OFLAG=FLAGS+0x10000; X1FLAG=FLAGS+0x20000; HHFLAG=FLAGS+0x30000
D_MODA=96; D_READY=192
sIDX=63; sSP=52
W=srd4(sWS)

def dbg_add(a):
    pass

def wait_mbox(a, level, tag):
    a(f's_cmp_lg_u32 s{sW}, 0')
    a(f's_cbranch_scc1 {tag}_ok')
    a.label(f'{tag}_w')
    a(f'buffer_load_dword v127, off, {W}, s{sMB} sc1')
    a(f's_add_u32 s{sSP}, s{sSP}, 1')
    a('s_waitcnt vmcnt(0)')
    a(f'v_readfirstlane_b32 s{sT0}, v127')
    a(f's_cmp_ge_u32 s{sT0}, {level}')
    a(f's_cbranch_scc1 {tag}_ok')
    a(f's_cmp_gt_u32 s{sSP}, {SPIN_MAX}')
    a(f's_cbranch_scc1 {tag}_ok')
    a('s_sleep 1')
    a(f's_branch {tag}_w')
    a.label(f'{tag}_ok')
    a('s_barrier')

def arrive_notify(a, off, target, level, tag):
    a('v_mov_b32 v127, 1')
    a(f's_mov_b32 s{sT1}, {off}')
    a('s_mov_b64 exec, 1')
    a(f'buffer_atomic_add v127, off, {srd4(sDBG)}, s{sT1} sc0')
    a('s_mov_b64 exec, -1')
    a('s_waitcnt vmcnt(0)')
    a(f'v_readfirstlane_b32 s{sT0}, v127')
    a(f's_cmp_lg_u32 s{sT0}, {target-1}')
    a(f's_cbranch_scc1 {tag}_na')
    a('v_min_u32 v126, 7, v0')
    a('v_lshlrev_b32 v126, 2, v126')
    a('v_add_u32 v125, 144, v126')
    a('v_cmp_eq_u32 vcc, 0, v126')
    a('v_cndmask_b32 v126, v125, v126, vcc')
    a.label(f'{tag}_tk')
    a(f'buffer_load_dword v127, v126, {srd4(sDBG)}, 0 offen sc1')
    a(f's_add_u32 s{sSP}, s{sSP}, 1')
    a(f's_cmp_gt_u32 s{sSP}, {SPIN_MAX}')
    a('s_waitcnt vmcnt(0)')
    a('v_cmp_gt_u32 vcc, 32, v127')
    a(f's_cbranch_scc1 {tag}_tg')
    a(f's_cbranch_vccnz {tag}_tk')
    a.label(f'{tag}_tg')
    a('v_lshlrev_b32 v126, 7, v0')
    a(f'v_mov_b32 v127, {level}')
    for i in range(4):
        a(f's_mov_b32 s{sT1}, {MBOX+i*8192}')
        a(f'buffer_store_dword v127, v126, {W}, s{sT1} offen sc1')
    a.label(f'{tag}_na')

def arrive_dbg(a, off, tag):
    a('s_waitcnt vmcnt(0)')
    a('s_barrier')
    a(f's_cmp_lg_u32 s{sW}, 0')
    a(f's_cbranch_scc1 {tag}_na')
    arrive_notify(a,off,160,2,tag)

def set_flag(a, addr_s, tag, wave=0):
    a(f's_cmp_lg_u32 s{sW}, {wave}')
    a(f's_cbranch_scc1 {tag}_nf')
    a('v_mov_b32 v127, 1')
    a('s_mov_b64 exec, 1')
    a(f'buffer_store_dword v127, off, {W}, s{addr_s} sc1')
    a('s_mov_b64 exec, -1')
    a.label(f'{tag}_nf')

def wait_flags(a, addr_s, want, voff, tag, sleep=int(os.environ.get('SL','1'))):
    a.label(f'{tag}_pw')
    a(f'buffer_load_dword v127, v{voff}, {W}, s{addr_s} offen sc1')
    a(f's_add_u32 s{sSP}, s{sSP}, 1')
    a(f's_cmp_gt_u32 s{sSP}, {SPIN_MAX}')
    a('s_waitcnt vmcnt(0)')
    a(f'v_cmp_ne_u32 vcc, {want}, v127')
    a(f's_cbranch_scc1 {tag}_pk')
    a(f's_cbranch_vccz {tag}_pk')
    a(f's_sleep {sleep}')
    a(f's_branch {tag}_pw')
    a.label(f'{tag}_pk')

def mod_body(a):
    a(f's_load_dwordx4 s[4:7], s[0:1], {KA["c"]}')
    a(f's_lshl_b32 s{sT0}, s{sW}, 6')
    a(f'v_add_u32 v64, s{sT0}, v0')
    a('v_and_b32 v1, 3, v64')
    a('v_lshrrev_b32 v2, 2, v64')
    a('v_lshlrev_b32 v3, 4, v2')
    a(f's_mov_b32 s{sT0}, 49152')
    a(f'v_mul_lo_u32 v8, v2, s{sT0}')
    a(f's_lshl_b32 s{sT0}, s{sIDX}, 6')
    a('v_lshl_add_u32 v8, v1, 4, v8')
    a(f'v_add_u32 v8, s{sT0}, v8')
    a('s_waitcnt lgkmcnt(0)')
    srd(a,32,4,1024); srd(a,36,6,512*3072*2)
    a('buffer_load_dwordx4 v[4:7], v3, s[32:35], 0 offen')
    for i in range(8):
        a(f's_mov_b32 s{sT0}, {i*6144}')
        a(f'buffer_load_dwordx4 v[{16+4*i}:{19+4*i}], v8, s[36:39], s{sT0} offen')
    a('s_waitcnt vmcnt(8)')
    for i in range(4):
        a(f'v_lshlrev_b32 v{48+2*i}, 16, v{4+i}')
        a(f'v_and_b32 v{49+2*i}, 0xffff0000, v{4+i}')
    for i in range(8): a(f'v_mul_f32 v{56+i}, 0xbfb8aa3b, v{48+i}')
    for i in range(8): a(f'v_exp_f32 v{56+i}, v{56+i}')
    for i in range(8): a(f'v_add_f32 v{56+i}, 1.0, v{56+i}')
    for i in range(8): a(f'v_rcp_f32 v{56+i}, v{56+i}')
    for i in range(8): a(f'v_mul_f32 v{48+i}, v{48+i}, v{56+i}')
    for i in range(4): round_bf16_pair(a,48+2*i,49+2*i,56)
    a('s_waitcnt vmcnt(0)')
    for i in range(8):
        for j in range(4):
            a(f'v_lshlrev_b32 v10, 16, v{16+4*i+j}')
            a(f'v_and_b32 v11, 0xffff0000, v{16+4*i+j}')
            if i==0:
                a(f'v_mul_f32 v{56+2*j}, v48, v10'); a(f'v_mul_f32 v{57+2*j}, v48, v11')
            else:
                a(f'v_fmac_f32 v{56+2*j}, v{48+i}, v10'); a(f'v_fmac_f32 v{57+2*j}, v{48+i}, v11')
    a('v_lshlrev_b32 v9, 5, v64')
    a('ds_write_b128 v9, v[56:59]')
    a('ds_write_b128 v9, v[60:63] offset:16')
    a('s_waitcnt lgkmcnt(0)')
    a('s_barrier')
    a('v_and_b32 v1, 31, v64')
    a('v_lshrrev_b32 v2, 5, v64')
    a('v_lshlrev_b32 v9, 10, v2')
    a('v_lshl_add_u32 v9, v1, 2, v9')
    for i in range(8): a(f'ds_read_b32 v{16+i}, v9 offset:{i*128}')
    a('s_waitcnt lgkmcnt(0)')
    for i in range(1,8): a(f'v_add_f32 v16, v16, v{16+i}')
    a('v_lshlrev_b32 v9, 2, v64')
    a('ds_write_b32 v9, v16 offset:8192')
    a('s_waitcnt lgkmcnt(0)')
    a('s_barrier')
    a('v_lshlrev_b32 v9, 2, v1')
    for i in range(8): a(f'ds_read_b32 v{16+i}, v9 offset:{8192+i*128}')
    a('s_waitcnt lgkmcnt(0)')
    for i in range(1,8): a(f'v_add_f32 v16, v16, v{16+i}')
    round_bf16(a,16,17)
    a(f's_lshr_b32 s{sT0}, s{sIDX}, 4')
    a(f's_cmp_eq_u32 s{sT0}, 1')
    a('s_cbranch_scc1 mod_p1')
    a(f's_cmp_eq_u32 s{sT0}, 4')
    a('s_cbranch_scc0 mod_st')
    a.label('mod_p1')
    a('v_add_f32 v16, 1.0, v16')
    round_bf16(a,16,17)
    a.label('mod_st')
    a(f's_lshl_b32 s{sT0}, s{sIDX}, 7')
    a(f's_add_u32 s{sT0}, s{sT0}, {MOD}')
    a(f's_cmp_lg_u32 s{sW}, 0')
    a('s_cbranch_scc1 mod_ns')
    a(f'buffer_store_dword v16, v9, {W}, s{sT0} offen sc1')
    a(f's_cmp_ge_u32 s{sIDX}, 32')
    a('s_cbranch_scc1 mod_ns')
    a('s_waitcnt vmcnt(0)')
    arrive_notify(a,D_MODA,32,1,'moda')
    a.label('mod_ns')

LX=16; LF=32; LSC=64; LSH=96
LRED=0x27C00
def ln_setup(a):
    a('v_and_b32 v1, 15, v0')
    a('v_lshrrev_b32 v2, 4, v0')
    a('v_lshlrev_b32 v4, 10, v1')
    a('v_lshl_add_u32 v4, v2, 4, v4')
    a(f's_lshl_b32 s{sT0}, s{sW}, 8')
    a(f'v_add_u32 v4, s{sT0}, v4')
    a('v_lshlrev_b32 v5, 5, v2')
    a(f's_lshl_b32 s{sT0}, s{sW}, 9')
    a(f'v_add_u32 v5, s{sT0}, v5')
    a('v_lshlrev_b32 v8, 2, v1')
    a(f'v_add_u32 v8, {LRED}, v8')
    a(f's_lshl_b32 s{sT0}, s{sW}, 6')
    a(f'v_add_u32 v9, s{sT0}, v8')
    a('v_lshlrev_b32 v3, 4, v0')
def ln_load_mod(a, sec_shift, sec_scale):
    a(f's_mov_b32 s{sT0}, {MOD+sec_scale*2048}')
    a(f's_mov_b32 s{sT1}, {MOD+sec_shift*2048}')
    for k in range(4):
        for hf in range(2):
            a(f'buffer_load_dwordx4 v[{LSC+8*k+4*hf}:{LSC+3+8*k+4*hf}], v5, {W}, s{sT0} offen offset:{k*128+hf*16} sc1')
            a(f'buffer_load_dwordx4 v[{LSH+8*k+4*hf}:{LSH+3+8*k+4*hf}], v5, {W}, s{sT1} offen offset:{k*128+hf*16} sc1')
def ln_load_x(a, srdname, soff, sc=''):
    for k in range(4):
        a(f'buffer_load_dwordx4 v[{LX+4*k}:{LX+3+4*k}], v4, {srdname}, s{soff} offen offset:{k*64}{sc}')
def ln_stats(a):
    for j in range(16):
        a(f'v_lshlrev_b32 v{LF+2*j}, 16, v{LX+j}')
        a(f'v_and_b32 v{LF+1+2*j}, 0xffff0000, v{LX+j}')
    a(f'v_add_f32 v6, v{LF}, v{LF+1}'); a(f'v_add_f32 v7, v{LF+2}, v{LF+3}')
    for j in range(4,32,2):
        a(f'v_add_f32 v6, v6, v{LF+j}'); a(f'v_add_f32 v7, v7, v{LF+1+j}')
    a('v_add_f32 v6, v6, v7')
    xlane_reduce(a,'v_add_f32',6,7)
    a('ds_write_b32 v9, v6')
    a('s_waitcnt lgkmcnt(0)'); a('s_barrier')
    for k in range(4): a(f'ds_read_b32 v{10+k}, v8 offset:{k*64}')
    a('s_waitcnt lgkmcnt(0)')
    a('v_add_f32 v10, v10, v11'); a('v_add_f32 v12, v12, v13'); a('v_add_f32 v10, v10, v12')
    a('v_mul_f32 v10, 0x3b000000, v10')
    a(f'v_sub_f32 v11, v{LF}, v10'); a('v_mul_f32 v6, v11, v11')
    a(f'v_sub_f32 v12, v{LF+1}, v10'); a('v_mul_f32 v7, v12, v12')
    for j in range(2,32,2):
        a(f'v_sub_f32 v11, v{LF+j}, v10'); a(f'v_sub_f32 v12, v{LF+1+j}, v10')
        a('v_fmac_f32 v6, v11, v11'); a('v_fmac_f32 v7, v12, v12')
    a('v_add_f32 v6, v6, v7')
    xlane_reduce(a,'v_add_f32',6,7)
    a('ds_write_b32 v9, v6 offset:256')
    a('s_waitcnt lgkmcnt(0)'); a('s_barrier')
    for k in range(4): a(f'ds_read_b32 v{11+k}, v8 offset:{256+k*64}')
    a('s_waitcnt lgkmcnt(0)')
    a('v_add_f32 v11, v11, v12'); a('v_add_f32 v13, v13, v14'); a('v_add_f32 v11, v11, v13')
    a('v_mul_f32 v11, 0x3b000000, v11')
    round_bf16_pair(a,10,11,12)
    a('v_add_f32 v11, 0x3727c5ac, v11')
    round_bf16(a,11,12)
    a('v_sqrt_f32 v11, v11')
    round_bf16(a,11,12)
    a('v_rcp_f32 v11, v11')
def ln_apply(a):
    perm=[0,2,1,3]
    for k in range(4):
        for j in range(4):
            e0=LF+8*k+2*j; e1=e0+1
            a(f'v_sub_f32 v{e0}, v{e0}, v10'); a(f'v_sub_f32 v{e1}, v{e1}, v10')
            round_bf16_pair(a,e0,e1,12)
            a(f'v_mul_f32 v{e0}, v{e0}, v11'); a(f'v_mul_f32 v{e1}, v{e1}, v11')
            round_bf16_pair(a,e0,e1,12)
            a(f'v_mul_f32 v{e0}, v{e0}, v{e0+32}'); a(f'v_mul_f32 v{e1}, v{e1}, v{e1+32}')
            round_bf16_pair(a,e0,e1,12)
            a(f'v_add_f32 v{e0}, v{e0}, v{e0+64}'); a(f'v_add_f32 v{e1}, v{e1}, v{e1+64}')
            a(f'v_cvt_pk_bf16_f32 v{LX+4*k+perm[j]}, v{e0}, v{e1}')
    for k in range(4):
        a(f'v_permlane16_swap_b32 v{LX+4*k}, v{LX+1+4*k}')
        a(f'v_permlane16_swap_b32 v{LX+2+4*k}, v{LX+3+4*k}')

def ln_fast(a):
    for j in range(16):
        a(f'v_lshlrev_b32 v{LF+2*j}, 16, v{LX+j}')
        a(f'v_and_b32 v{LF+1+2*j}, 0xffff0000, v{LX+j}')
    a(f'v_pk_add_f32 v[6:7], v[{LF}:{LF+1}], v[{LF+2}:{LF+3}]')
    a(f'v_pk_add_f32 v[10:11], v[{LF+4}:{LF+5}], v[{LF+6}:{LF+7}]')
    for j in range(8,32,4):
        a(f'v_pk_add_f32 v[6:7], v[6:7], v[{LF+j}:{LF+j+1}]')
        a(f'v_pk_add_f32 v[10:11], v[10:11], v[{LF+j+2}:{LF+j+3}]')
    a('v_pk_add_f32 v[6:7], v[6:7], v[10:11]')
    a('v_add_f32 v6, v6, v7')
    xlane_reduce(a,'v_add_f32',6,7)
    a('v_mul_f32 v6, 0x3c000000, v6')
    a(f'v_pk_add_f32 v[12:13], v[{LF}:{LF+1}], v[6:7] op_sel_hi:[1,0] neg_lo:[0,1] neg_hi:[0,1]')
    a('v_pk_mul_f32 v[10:11], v[12:13], v[12:13]')
    for j in range(2,32,2):
        a(f'v_pk_add_f32 v[12:13], v[{LF+j}:{LF+j+1}], v[6:7] op_sel_hi:[1,0] neg_lo:[0,1] neg_hi:[0,1]')
        a('v_pk_fma_f32 v[10:11], v[12:13], v[12:13], v[10:11]')
    a('v_add_f32 v7, v10, v11')
    xlane_reduce(a,'v_add_f32',7,10)
    a('ds_write2_b32 v9, v6, v7 offset0:0 offset1:64')
    a('s_waitcnt lgkmcnt(0)'); a('s_barrier')
    a(f'ds_read2_b32 v[{LX}:{LX+1}], v8 offset0:0 offset1:16')
    a(f'ds_read2_b32 v[{LX+2}:{LX+3}], v8 offset0:32 offset1:48')
    a(f'ds_read2_b32 v[{LX+4}:{LX+5}], v8 offset0:64 offset1:80')
    a(f'ds_read2_b32 v[{LX+6}:{LX+7}], v8 offset0:96 offset1:112')
    a('s_waitcnt lgkmcnt(0)')
    a(f'v_add_f32 v10, v{LX}, v{LX+1}'); a(f'v_add_f32 v11, v{LX+2}, v{LX+3}'); a('v_add_f32 v10, v10, v11')
    a('v_mul_f32 v10, 0x3e800000, v10')
    a(f'v_add_f32 v11, v{LX+4}, v{LX+5}'); a(f'v_add_f32 v12, v{LX+6}, v{LX+7}'); a('v_add_f32 v11, v11, v12')
    a('v_mul_f32 v11, 0x3c000000, v11')
    for k in range(4):
        a(f'v_sub_f32 v12, v{LX+k}, v10'); a('v_fmac_f32 v11, v12, v12')
    a('v_mul_f32 v11, 0x3e800000, v11')
    round_bf16_pair(a,10,11,12)
    a('v_add_f32 v11, 0x3727c5ac, v11')
    round_bf16(a,11,12)
    a('v_sqrt_f32 v11, v11')
    round_bf16(a,11,12)
    a('v_rcp_f32 v12, v11')
    a('v_mul_f32 v10, v10, v12')
    perm=[0,2,1,3]
    for k in range(4):
        for j in range(4):
            e=LF+8*k+2*j
            a(f'v_pk_fma_f32 v[{e}:{e+1}], v[{e}:{e+1}], v[12:13], v[10:11] op_sel_hi:[1,0,0] neg_lo:[0,0,1] neg_hi:[0,0,1]')
        for j in range(4):
            e=LF+8*k+2*j
            a(f'v_pk_fma_f32 v[{e}:{e+1}], v[{e}:{e+1}], v[{e+32}:{e+33}], v[{e+64}:{e+65}]')
        for j in range(4):
            e=LF+8*k+2*j
            a(f'v_cvt_pk_bf16_f32 v{LX+4*k+perm[j]}, v{e}, v{e+1}')
    for k in range(4):
        a(f'v_permlane16_swap_b32 v{LX+4*k}, v{LX+1+4*k}')
        a(f'v_permlane16_swap_b32 v{LX+2+4*k}, v{LX+3+4*k}')

NWO=4; NUP=4; NDN=4
tB=32; tRES=36; tOUT=40; tCS=64; tU=65; tUS=66; tFA=67; tFB=68; tT2=69
def gen_workers(a):
    a.label('work_start')
    a(f's_mov_b32 s{sSP}, 0')
    a(f's_cmp_lt_u32 s{sROLE}, 96')
    a('s_cbranch_scc1 qkv_start')
    a(f's_sub_u32 s{sIDX}, s{sROLE}, 96')
    rtstamp(a,0)
    a(f's_cmp_ge_u32 s{sIDX}, 128')
    a('s_cbranch_scc1 pre_init')
    a(f's_cmp_ge_u32 s{sIDX}, 96')
    a('s_cbranch_scc1 pre_ln')
    mod_body(a)
    a.label('pre_ln')
    a(f's_load_dwordx2 s[4:5], s[0:1], {KA["x"]}')
    ln_setup(a)
    a('s_waitcnt lgkmcnt(0)')
    srd(a,32,4,2<<20)
    a(f's_lshl_b32 s{sT2}, s{sIDX}, 14')
    ln_load_x(a,'s[32:35]',sT2)
    a('s_waitcnt vmcnt(0)')
    ln_stats(a)
    wait_mbox(a,1,'ln1m')
    ln_load_mod(a,0,1)
    a('s_waitcnt vmcnt(0)')
    ln_apply(a)
    a(f's_lshl_b32 s{sT0}, s{sW}, 12')
    a(f's_add_u32 s{sT2}, s{sT2}, s{sT0}')
    a(f's_add_u32 s{sT2}, s{sT2}, {H1F}')
    for k in range(4):
        a(f'buffer_store_dwordx4 v[{LX+4*k}:{LX+3+4*k}], v3, {W}, s{sT2} offen offset:{k*1024} sc1')
    arrive_dbg(a,D_READY,'ln1a')
    a('s_branch pre_done')
    a.label('pre_init')
    a('v_mov_b64 v[4:5], 0'); a('v_mov_b64 v[6:7], 0')
    a('v_lshlrev_b32 v3, 4, v0')
    a(f's_sub_u32 s{sT0}, s{sIDX}, 128')
    a(f's_lshl_b32 s{sT0}, s{sT0}, 13')
    a(f's_lshl_b32 s{sT1}, s{sW}, 11')
    a(f's_add_u32 s{sT0}, s{sT0}, s{sT1}')
    a(f's_add_u32 s{sT0}, s{sT0}, {FLAGS}')
    a(f'buffer_store_dwordx4 v[4:7], v3, {W}, s{sT0} offen sc1')
    a(f'buffer_store_dwordx4 v[4:7], v3, {W}, s{sT0} offen offset:1024 sc1')
    arrive_dbg(a,D_READY,'inia')
    a.label('pre_done')
    rtstamp(a,1)
    a(f's_cmp_ge_u32 s{sIDX}, 128')
    a('s_cbranch_scc1 dn_start')
    a(f's_bitcmp1_b32 s{sIDX}, 4')
    a('s_cbranch_scc0 wo_start')
    a('s_branch up_start')
    gen_ksplit(a,'wo'); gen_ksplit(a,'dn'); gen_up(a); gen_qkv(a)
    a.label('main_done')
    a('s_endpgm')

def gen_ksplit(a, which):
    L=which
    a.label(f'{L}_start')
    if which=='wo':
        NK=32; NT=2; a_base=OF; a_rt=131072; gate=2; nset=NWO
        a(f's_load_dwordx2 s[4:5], s[0:1], {KA["Wo"]}')
        a(f's_load_dwordx2 s[6:7], s[0:1], {KA["x"]}')
        a(f's_lshr_b32 s{tU}, s{sIDX}, 5')
        a(f's_and_b32 s{tCS}, s{sIDX}, 15')
        a('s_waitcnt lgkmcnt(0)')
        srd(a,tB,4,4<<20); srd(a,tRES,6,2<<20)
        res=srd4(tRES); res_off=0; res_sc=''; out=W; out_off=X1; out_sc=' sc1'
    else:
        NK=14; NT=4; a_base=HH; a_rt=56*1024; gate=5; nset=NDN
        a(f's_load_dwordx2 s[4:5], s[0:1], {KA["wd"]}')
        a(f's_load_dwordx2 s[6:7], s[0:1], {KA["out"]}')
        a(f's_bfe_u32 s{tU}, s{sIDX}, 0x20003')
        a(f's_and_b32 s{tCS}, s{sIDX}, 7')
        a('s_waitcnt lgkmcnt(0)')
        srd(a,tB,4,1792*1024); srd(a,tOUT,6,2<<20)
        res=W; res_off=X1; res_sc=' sc1'; out=srd4(tOUT); out_off=0; out_sc=''
    RB=NT*32
    LPR=RB//16
    lg=LPR.bit_length()-1
    KB=32*RB
    RING=32768//KB
    NI=KB//1024
    a('s_barrier')
    a('v_lshlrev_b32 v2, 4, v0')
    a(f'v_lshrrev_b32 v3, {lg}, v0')
    a('v_lshlrev_b32 v1, 10, v3')
    a(f'v_and_b32 v3, {LPR-1}, v0')
    a('v_lshl_add_u32 v1, v3, 4, v1')
    a(f's_mul_i32 s{sT0}, s{tCS}, {RB}')
    a(f'v_add_u32 v1, s{sT0}, v1')
    a(f's_lshl_b32 s{sLB}, s{sW}, 15')
    a('v_lshrrev_b32 v3, 2, v0')
    a(f'v_mul_u32_u24 v4, {RB}, v3')
    a('v_and_b32 v3, 3, v0')
    a('v_lshl_add_u32 v4, v3, 3, v4')
    a(f'v_add_u32 v4, s{sLB}, v4')
    GS=2; G=NK//GS; tG=72
    for g in range(G):
        a(f's_add_u32 s{sT0}, s{tCS}, {g}')
        if G==16: a(f's_and_b32 s{sT0}, s{sT0}, 15')
        else:
            for _ in range(2):
                a(f's_sub_u32 s{sT1}, s{sT0}, {G}'); a(f's_cmp_ge_u32 s{sT0}, {G}'); a(f's_cselect_b32 s{sT0}, s{sT1}, s{sT0}')
        a(f's_mul_i32 s{sT1}, s{sW}, {NK}')
        a(f's_lshl_b32 s{sT0}, s{sT0}, 1')
        a(f's_add_u32 s{sT0}, s{sT0}, s{sT1}')
        a(f's_lshl_b32 s{tG+g}, s{sT0}, 10')
    def issue(kk):
        a(f's_lshl_b32 s{tT2}, s{tG+kk//GS}, 5')
        for i in range(NI):
            a(f's_add_u32 m0, s{sLB}, {(kk%RING)*KB+i*1024}')
            a(f's_add_u32 s{sT0}, s{tT2}, {((kk%GS)*32+i*(64//LPR))*1024}')
            a(f'buffer_load_dwordx4 v1, {srd4(tB)}, s{sT0} offen lds')
    a('s_waitcnt vmcnt(0)')
    n0=min(RING,NK)
    for kk in range(n0): issue(kk)
    o=NI*n0
    for kk in range(NK):
        a(f's_waitcnt vmcnt({o-NI})'); o-=NI
        for tau in range(NT):
            for i in range(2):
                r=(kk*NT+tau)*4+2*i
                a(f'ds_read_b64_tr_b16 a[{r}:{r+1}], v4 offset:{(kk%RING)*KB+i*16*RB+tau*32}')
        if kk+RING<NK:
            a('s_waitcnt lgkmcnt(0)')
            issue(kk+RING); o+=NI
    wait_mbox(a,2,f'{L}rd')
    a('v_and_b32 v5, 15, v0')
    a('v_lshrrev_b32 v6, 4, v0')
    a('v_lshlrev_b32 v7, 10, v5')
    a('v_lshl_add_u32 v7, v6, 3, v7')
    a(f's_mul_i32 s{sT0}, s{tCS}, {RB}')
    a(f's_and_b32 s{sT1}, s{sW}, {NT-1}')
    a(f's_lshl_b32 s{sT1}, s{sT1}, 5')
    a(f's_add_u32 s{sT0}, s{sT0}, s{sT1}')
    a(f'v_add_u32 v7, s{sT0}, v7')
    a('v_lshlrev_b32 v8, 4, v6')
    a(f's_lshl_b32 s{sT0}, s{sT0}, 1')
    a(f's_add_u32 s{sT0}, s{sT0}, {MOD+gate*2048}')
    a(f'buffer_load_dwordx4 v[12:15], v8, {W}, s{sT0} offen sc1')
    RED=0x20000
    a(f's_mul_i32 s{sT0}, s{sW}, {NT*1024}')
    a(f's_add_u32 s{sT0}, s{sT0}, {RED}')
    a(f'v_add_u32 v9, s{sT0}, v2')
    a(f's_lshl_b32 s{sT0}, s{sT1}, 5')
    a(f's_add_u32 s{sT0}, s{sT0}, {RED}')
    a(f'v_add_u32 v10, s{sT0}, v2')
    if which=='wo':
        a('v_and_b32 v11, 15, v0'); a('v_lshlrev_b32 v11, 2, v11')
    else:
        a('v_min_u32 v11, 13, v0'); a('v_lshlrev_b32 v11, 2, v11')
    a(f's_lshl_b32 s{sT0}, s{sW}, 7'); a(f'v_add_u32 v11, s{sT0}, v11')
    a('s_waitcnt vmcnt(0) lgkmcnt(0)')
    rtstamp(a,2)
    AF=128; ACC=64
    a.label(f'{L}_loop')
    a(f's_lshl_b32 s{tFA}, s{tU}, 9'); a(f's_add_u32 s{tFA}, s{tFA}, {OFLAG if which=="wo" else HHFLAG}')
    a(f's_mul_i32 s{sT2}, s{tU}, {a_rt}')
    a(f's_add_u32 s{sT2}, s{sT2}, {a_base}')
    a(f's_lshl_b32 s{tT2}, s{tU}, 14')
    a(f's_add_u32 s{sT1}, s{tT2}, {res_off}')
    wait_flags(a,tFA,1,11,L)
    for kk in range(NK):
        if kk%GS==0: a(f's_add_u32 s{sT0}, s{sT2}, s{tG+kk//GS}')
        a(f'buffer_load_dwordx4 v[{AF+4*kk}:{AF+4*kk+3}], v2, {W}, s{sT0} offen offset:{(kk%GS)*1024} sc1')
    a(f'buffer_load_dwordx2 v[24:25], v7, {res}, s{sT1} offen{res_sc}')
    for kk in range(NK):
        a(f's_waitcnt vmcnt({NK-kk})')
        for tau in range(NT):
            r=(kk*NT+tau)*4; acc=ACC+4*tau
            c='0' if kk==0 else f'v[{acc}:{acc+3}]'
            a(f'v_mfma_f32_16x16x32_bf16 v[{acc}:{acc+3}], a[{r}:{r+3}], v[{AF+4*kk}:{AF+4*kk+3}], {c}')
    for tau in range(NT): a(f'ds_write_b128 v9, v[{ACC+4*tau}:{ACC+4*tau+3}] offset:{tau*1024}')
    a('s_waitcnt lgkmcnt(0)')
    a('s_barrier')
    R=32
    for w in range(4): a(f'ds_read_b128 v[{R+4*w}:{R+4*w+3}], v10 offset:{w*NT*1024}')
    a('s_waitcnt lgkmcnt(0) vmcnt(0)')
    a('s_barrier')
    if NT<4:
        a(f's_cmp_ge_u32 s{sW}, {NT}')
        a(f's_cbranch_scc1 {L}_next')
    for r in range(4):
        a(f'v_add_f32 v{R+r}, v{R+r}, v{R+4+r}')
        a(f'v_add_f32 v{R+8+r}, v{R+8+r}, v{R+12+r}')
    for r in range(4): a(f'v_add_f32 v{R+r}, v{R+r}, v{R+8+r}')
    round_bf16_pair(a,R,R+1,26); round_bf16_pair(a,R+2,R+3,26)
    for r in range(4): a(f'v_mul_f32 v{R+r}, v{R+r}, v{12+r}')
    round_bf16_pair(a,R,R+1,26); round_bf16_pair(a,R+2,R+3,26)
    a('v_lshlrev_b32 v26, 16, v24'); a('v_and_b32 v27, 0xffff0000, v24')
    a('v_lshlrev_b32 v28, 16, v25'); a('v_and_b32 v29, 0xffff0000, v25')
    for r in range(4): a(f'v_add_f32 v{R+r}, v{R+r}, v{26+r}')
    a(f'v_cvt_pk_bf16_f32 v24, v{R}, v{R+1}')
    a(f'v_cvt_pk_bf16_f32 v25, v{R+2}, v{R+3}')
    a(f's_add_u32 s{sT1}, s{tT2}, {out_off}')
    a(f'buffer_store_dwordx2 v[24:25], v7, {out}, s{sT1} offen{out_sc}')
    if which=='wo':
        a(f's_lshl_b32 s{tFB}, s{tU}, 9'); a(f's_lshr_b32 s{sT0}, s{tCS}, 2'); a(f's_lshl_b32 s{sT0}, s{sT0}, 7'); a(f's_add_u32 s{tFB}, s{tFB}, s{sT0}')
        a(f's_and_b32 s{sT0}, s{tCS}, 3'); a(f's_lshl_b32 s{sT0}, s{sT0}, 3'); a(f's_add_u32 s{tFB}, s{tFB}, s{sT0}')
        a(f's_lshl_b32 s{sT0}, s{sW}, 2'); a(f's_add_u32 s{tFB}, s{tFB}, s{sT0}'); a(f's_add_u32 s{tFB}, s{tFB}, {X1FLAG}')
        a('v_mov_b32 v127, 1')
        a('s_waitcnt vmcnt(0)')
        a('s_mov_b64 exec, 1')
        a(f'buffer_store_dword v127, off, {W}, s{tFB} sc1')
        a('s_mov_b64 exec, -1')
    a.label(f'{L}_next')
    a(f's_add_u32 s{tU}, s{tU}, {nset}')
    a(f's_cmp_lt_u32 s{tU}, 128')
    a(f's_cbranch_scc1 {L}_loop')
    rtstamp(a,3)
    a('s_branch main_done')

def gen_up(a):
    L='up'
    a.label('up_start')
    a(f's_and_b32 s{tCS}, s{sIDX}, 15'); a(f's_lshr_b32 s{tU}, s{sIDX}, 5')
    a(f's_cmp_lt_u32 s{tCS}, 14'); a('s_cbranch_scc0 main_done')
    a(f's_load_dwordx4 s[4:7], s[0:1], {KA["wg"]}')
    a('s_waitcnt lgkmcnt(0)')
    srd(a,tB,4,512*3584); srd(a,tRES,6,512*3584)
    RS=3584
    a('s_barrier')
    a(f's_lshl_b32 s{sLB}, s{sW}, 15')
    a('v_bfe_u32 v2, v0, 2, 1'); a('v_bfe_u32 v3, v0, 4, 1'); a('v_lshl_add_u32 v2, v3, 1, v2')
    a('v_bfe_u32 v3, v0, 3, 1'); a('v_lshl_add_u32 v2, v3, 2, v2')
    a('v_bfe_u32 v3, v0, 5, 1'); a('v_lshl_add_u32 v2, v3, 3, v2')
    a(f'v_mul_u32_u24 v1, {RS}, v2')
    a('v_lshlrev_b32 v3, 1, v3'); a('v_xor_b32 v3, v3, v0'); a('v_and_b32 v3, 3, v3')
    a('v_lshl_add_u32 v1, v3, 4, v1')
    a(f's_lshl_b32 s{sT0}, s{tCS}, 8'); a(f's_lshl_b32 s{sT1}, s{sW}, 6'); a(f's_add_u32 s{sT0}, s{sT0}, s{sT1}')
    a(f'v_add_u32 v1, s{sT0}, v1')
    a('v_bfe_u32 v2, v0, 5, 1'); a('v_lshlrev_b32 v4, 10, v2')
    a('v_bfe_u32 v2, v0, 3, 1'); a('v_mul_u32_u24 v2, 544, v2'); a('v_add_u32 v4, v4, v2')
    a('v_bfe_u32 v2, v0, 4, 1'); a('v_lshl_add_u32 v4, v2, 7, v4')
    a('v_bfe_u32 v2, v0, 2, 1'); a('v_lshl_add_u32 v4, v2, 6, v4')
    a('v_and_b32 v2, 3, v0'); a('v_lshl_add_u32 v4, v2, 3, v4')
    a(f'v_add_u32 v4, s{sLB}, v4'); a('v_xor_b32 v5, 32, v4')
    def issue(u):
        X,j=u>>3,u&7
        for i in range(4):
            a(f's_add_u32 m0, s{sLB}, {j*4096+i*1024}')
            a(f's_mov_b32 s{sT0}, {(j*64+i*16)*RS}')
            a(f'buffer_load_dwordx4 v1, {srd4([tB,tRES][X])}, s{sT0} offen lds')
    a('s_waitcnt vmcnt(0)')
    for u in range(8): issue(u)
    o=32
    for u in range(16):
        X,j=u>>3,u&7
        a(f's_waitcnt vmcnt({o-4})'); o-=4
        for tau in range(2):
            b=X*128+(tau*8+j)*8
            for hh in range(2):
                for y in range(2):
                    a(f'ds_read_b64_tr_b16 a[{b+4*hh+2*y}:{b+4*hh+2*y+1}], v{4+tau} offset:{j*4096+hh*2048+y*256}')
        a('s_waitcnt lgkmcnt(0)')
        if u+8<16: issue(u+8); o+=4
    wait_mbox(a,2,'uprd')
    ln_setup(a)
    ln_load_mod(a,3,4)
    a('v_and_b32 v15, 7, v0'); a('v_lshlrev_b32 v15, 2, v15')
    a(f's_lshl_b32 s{sT0}, s{sW}, 7'); a(f'v_add_u32 v15, s{sT0}, v15')
    a(f's_lshl_b32 s{sT0}, s{tCS}, 2'); a(f's_add_u32 s{sT0}, s{sT0}, s{sW}')
    a(f's_mul_i32 s{sT1}, s{sT0}, 4682'); a(f's_lshr_b32 s{sT1}, s{sT1}, 16')
    a(f's_mul_i32 s{sT2}, s{sT1}, 72'); a(f's_lshl_b32 s{sT0}, s{sT0}, 2'); a(f's_add_u32 s{tT2}, s{sT0}, s{sT2}'); a(f's_add_u32 s{tT2}, s{tT2}, {HHFLAG}')
    a(f's_lshl_b32 s{sT0}, s{sW}, 12'); a(f'v_add_u32 v2, s{sT0}, v3')
    a('s_waitcnt vmcnt(0)')
    a('v_mov_b32 v224, v127')
    rtstamp(a,2)
    AF=128; ACC=192
    a.label('up_loop')
    a(f's_lshl_b32 s{tFA}, s{tU}, 9'); a(f's_add_u32 s{tFA}, s{tFA}, {X1FLAG}')
    a(f's_lshl_b32 s{sT2}, s{tU}, 14'); a(f's_add_u32 s{sT2}, s{sT2}, {X1}')
    wait_flags(a,tFA,1,15,L)
    ln_load_x(a,W,sT2,' sc1')
    a('v_mov_b32 v127, v224')
    a('s_waitcnt vmcnt(0)')
    ln_fast(a)
    for k in range(4): a(f'ds_write_b128 v2, v[{LX+4*k}:{LX+3+4*k}] offset:{k*1024}')
    a('s_waitcnt lgkmcnt(0)')
    a('s_barrier')
    for kap in range(12): a(f'ds_read_b128 v[{AF+4*kap}:{AF+4*kap+3}], v3 offset:{kap*1024}')
    for kap in range(16):
        issued=min(16,12+kap)
        a(f's_waitcnt lgkmcnt({issued-kap-1})')
        t,hh=kap>>1,kap&1
        for X in range(2):
            for tau in range(2):
                b=X*128+(tau*8+t)*8+4*hh; acc=ACC+(X*2+tau)*4
                c='0' if kap==0 else f'v[{acc}:{acc+3}]'
                a(f'v_mfma_f32_16x16x32_bf16 v[{acc}:{acc+3}], a[{b}:{b+3}], v[{AF+4*kap}:{AF+4*kap+3}], {c}')
        if kap+12<16: a(f'ds_read_b128 v[{AF+4*(kap+12)}:{AF+4*(kap+12)+3}], v3 offset:{(kap+12)*1024}')
    for r in range(0,16,2): round_bf16_pair(a,ACC+r,ACC+r+1,10)
    for r in range(8): a(f'v_mul_f32 v{ACC+r}, v{ACC+r}, v{ACC+8+r}')
    for r in range(4): a(f'v_cvt_pk_bf16_f32 v{208+r}, v{ACC+2*r}, v{ACC+2*r+1}')
    a(f's_mul_i32 s{sT0}, s{tU}, {56*1024}')
    a(f's_lshl_b32 s{sT1}, s{tCS}, 12'); a(f's_add_u32 s{sT0}, s{sT0}, s{sT1}')
    a(f's_lshl_b32 s{sT1}, s{sW}, 10'); a(f's_add_u32 s{sT0}, s{sT0}, s{sT1}')
    a(f's_add_u32 s{sT0}, s{sT0}, {HH}')
    a(f'buffer_store_dwordx4 v[208:211], v3, {W}, s{sT0} offen sc1')
    a(f's_lshl_b32 s{tFB}, s{tU}, 9'); a(f's_add_u32 s{tFB}, s{tFB}, s{tT2}')
    a('v_mov_b32 v127, 1')
    a('s_barrier')
    a('s_waitcnt vmcnt(0)')
    a('s_mov_b64 exec, 1')
    a(f'buffer_store_dword v127, off, {W}, s{tFB} sc1')
    a('s_mov_b64 exec, -1')
    a(f's_add_u32 s{tU}, s{tU}, {NUP}')
    a(f's_cmp_lt_u32 s{tU}, 128')
    a('s_cbranch_scc1 up_loop')
    rtstamp(a,3)
    a('s_branch main_done')

LEAD=int(os.environ.get('LEAD','4'))
wS=72; wBa=73; wBb=74; wA=75; wO=76; wPF=77; wOFL=78; wKFL=79; wC=80; wMASK=82; wNU=98; wEH=99
def gen_qkv(a):
    a.label('qkv_start')
    a(f's_sub_u32 s{sT0}, s{sROLE}, 32')
    a(f's_lshr_b32 s{sH}, s{sT0}, 1')
    a(f's_and_b32 s{sSLOT}, s{sT0}, 1')
    rtstamp(a,0)
    vL=8; vA=9
    a(f'v_lshlrev_b32 v{vL}, 4, v0')
    a(f's_lshl_b32 s{sLB}, s{sW}, 12')
    a(f's_add_u32 s{sLB}, s{sLB}, {L_WO}')
    a(f's_lshl_b32 s13, s{sH}, 8')
    coop_addrs(a,96,112,[8192],['H'],col_s=13)
    for i in range(2): a(f'v_add_u32 v{116+i}, 0x10000, v{112+i}')
    def issue(u): coop_issue(a,u,96,srd4([sWQ,sWK,sWV][u>>3]),[f's_mov_b32 s{sT0}, {(u&7)<<19}'])
    for u in range(8): issue(u)
    out=32
    for u in range(24):
        a(f's_waitcnt vmcnt({out-4})'); out-=4
        a('s_barrier')
        if u>=1 and u+7<24: issue(u+7); out+=4
        coop_reads(a,u,112,116,lambda tau: wreg(u>>3,tau,u&7))
        a('s_waitcnt lgkmcnt(0)')
    rtstamp(a,1)
    wait_mbox(a,2,'qkrd')
    rtstamp(a,2)
    def dma(seg_s, buf_s):
        a(f's_min_u32 s{sT0}, s{seg_s}, 63')
        a(f's_lshl_b32 s{sT0}, s{sT0}, 15')
        a(f's_lshl_b32 s{sT1}, s{sW}, 13')
        a(f's_add_u32 s{sT0}, s{sT0}, s{sT1}')
        a(f's_add_u32 s{sT0}, s{sT0}, {H1F}')
        a(f's_add_u32 s{sT1}, s{sT1}, s{buf_s}')
        for hf in range(2):
            a(f's_add_u32 m0, s{sT1}, {hf*4096}')
            if hf: a(f's_add_u32 s{sT0}, s{sT0}, 4096')
            for i in range(4):
                a(f'buffer_load_dwordx4 v{vL}, {W}, s{sT0} offen offset:{i*1024} sc1 lds')
    a(f's_mov_b32 s{wS}, s{sSLOT}')
    a(f's_sub_u32 s{wA}, s{sSLOT}, {2*LEAD}')
    a(f's_mov_b32 s{wBa}, 0'); a(f's_mov_b32 s{wBb}, 0x8000')
    dma(wS,wBa)
    a(f's_and_b32 s{wNU}, s{sW}, 1')
    a(f's_lshr_b32 s{wEH}, s{sW}, 1')
    a(f's_mov_b32 s{wC}, 0x3e0293ee')
    a('v_and_b32 v1, 15, v0')
    a('v_lshrrev_b32 v2, 4, v0')
    a('v_lshlrev_b32 v3, 2, v2')
    a('v_sub_u32 v3, v3, v1')
    a(f's_lshl_b32 s{sT0}, s{wNU}, 4')
    a(f'v_subrev_u32 v3, s{sT0}, v3')
    for mu in range(2):
        for r in range(4):
            a(f'v_cmp_ge_i32 vcc, {-(r+16*mu)}, v3')
            a(f's_mov_b64 s[{wMASK+2*(4*mu+r)}:{wMASK+2*(4*mu+r)+1}], vcc')
    vKMo=10; ONES=12; NEG=11
    a('v_lshrrev_b32 v3, 2, v1')
    a(f'v_lshlrev_b32 v{vKMo}, 8, v3')
    a(f'v_lshl_add_u32 v{vKMo}, v2, 6, v{vKMo}')
    a('v_and_b32 v3, 1, v1')
    a(f'v_lshl_add_u32 v{vKMo}, v3, 2, v{vKMo}')
    for i in range(4): a(f'v_mov_b32 v{ONES+i}, 0x3f803f80')
    a(f'v_mov_b32 v{NEG}, 0xf149f2ca')
    a(f's_mov_b32 s{wOFL}, 0')
    ACC=16; HW=64
    LA_=0x10000
    KMr=96; VMr=112; FL=116; wRDY=81
    a(f's_lshl_b32 s{sT0}, s{wNU}, 12')
    a(f's_add_u32 s{sT0}, s{sT0}, {LA_}')
    a(f'v_add_u32 v4, s{sT0}, v{vL}')
    a(f'v_add_u32 v5, {LA_+8192}, v{vL}')
    a(f's_lshl_b32 s{sT0}, s{wEH}, 12')
    a(f's_add_u32 s{sT0}, s{sT0}, {LA_+16384}')
    a(f'v_add_u32 v6, s{sT0}, v{vL}')
    a(f's_lshl_b32 s{wPF+24}, s{sH}, 7')
    a(f's_add_u32 s{wPF+24}, s{wPF+24}, {RECFLAG}')
    wRF=wPF+24
    def km_loads():
        a(f's_lshr_b32 s{sT0}, s{wO}, 1')
        a(f's_add_u32 s{sT0}, s{sT0}, {KM}')
        for u in range(4):
            for d in range(4):
                a(f'buffer_load_dword v{KMr+4*u+d}, v{vKMo}, {W}, s{sT0} offen offset:{u*1024+d*16} sc1')
        a(f's_lshl_b32 s{sT1}, s{wEH}, 11')
        a(f's_add_u32 s{sT0}, s{sT0}, s{sT1}')
        a(f's_add_u32 s{sT0}, s{sT0}, {1<<17}')
        for z in range(2):
            a(f'buffer_load_dwordx2 v[{VMr+2*z}:{VMr+2*z+1}], v{vL}, {W}, s{sT0} offen offset:{z*1024+8} sc1')
    def bflag(addr_s):
        a('s_mov_b64 exec, 1')
        a(f'buffer_store_{"byte" if addr_s==wKFL else "dword"} v7, off, {W}, s{addr_s} sc1')
        a('s_mov_b64 exec, -1')
    a('v_mov_b32 v7, 1')
    a(f's_lshl_b32 s100, s{wNU}, 9'); a(f's_lshr_b32 s{sT0}, s{sH}, 3'); a(f's_lshl_b32 s{sT0}, s{sT0}, 7'); a(f's_add_u32 s100, s100, s{sT0}')
    a(f's_and_b32 s{sT0}, s{sH}, 7'); a(f's_lshl_b32 s{sT0}, s{sT0}, 3'); a(f's_add_u32 s100, s100, s{sT0}')
    a(f's_lshl_b32 s{sT0}, s{wEH}, 2'); a(f's_add_u32 s100, s100, s{sT0}'); a(f's_add_u32 s100, s100, {OFLAG}')
    a('s_waitcnt vmcnt(0)')
    a.label('qa_loop')
    a('s_barrier')
    a(f's_mov_b32 s{wRDY}, 0')
    a(f's_mov_b32 s{wKFL}, -1')
    a(f's_cmp_ge_i32 s{wA}, 64')
    a('s_cbranch_scc1 qa_last')
    a(f's_max_i32 s{sT2}, s{wA}, 0')
    a(f's_lshl_b32 s{wO}, s{sT2}, 18')
    a(f's_lshl_b32 s{sT1}, s{sH}, 13')
    a(f's_add_u32 s{wO}, s{wO}, s{sT1}')
    a(f's_lshl_b32 s{sT1}, s{sW}, 11')
    a(f's_add_u32 s{sT2}, s{wO}, s{sT1}')
    attd=[]
    for X,base in enumerate((QF_,KF,VF)):
        attd.append([f's_add_u32 m0, s{sT1}, {LA_+X*8192}', f's_add_u32 s{sT0}, s{sT2}, {base}', f'buffer_load_dwordx4 v{vL}, {W}, s{sT0} offen sc1 lds'])
        attd.append([f'buffer_load_dwordx4 v{vL}, {W}, s{sT0} offen offset:1024 sc1 lds'])
    a(f's_cmp_ge_u32 s{wS}, 64')
    a('s_cbranch_scc1 qa_noq')
    a(f'v_add_u32 v{vA}, s{wBa}, v{vL}')
    frs=[(kap,mu) for kap in range(16) for mu in range(2)]
    def rd(i):
        kap,mu=frs[i]; b=HW+4*(i%8)
        return f'ds_read_b128 v[{b}:{b+3}], v{vA} offset:{mu*16384+kap*1024}'
    for i in range(6): a(rd(i))
    a(f's_add_u32 s4, s{wS}, 2')
    a('s_min_u32 s4, s4, 63')
    a('s_lshl_b32 s4, s4, 15')
    a(f's_lshl_b32 s5, s{sW}, 13')
    a('s_add_u32 s4, s4, s5')
    a(f's_add_u32 s4, s4, {H1F}')
    a(f's_add_u32 s5, s5, s{wBb}')
    h1d=[]
    for hf in range(2):
        for i in range(4):
            pre=[f's_add_u32 m0, s5, {hf*4096}']+(['s_add_u32 s4, s4, 4096'] if hf else ['s_nop 0']) if i==0 else []
            h1d.append(pre+[f'buffer_load_dwordx4 v{vL}, {W}, s4 offen offset:{i*1024} sc1 lds'])
    bg=attd+h1d+[[f'buffer_load_dword v{FL}, off, {W}, s{wRF} sc1']]
    for i,(kap,mu) in enumerate(frs):
        issued=min(6+i,32)
        a(f's_waitcnt lgkmcnt({issued-i-1})')
        hb=HW+4*(i%8); t,hh=kap>>1,kap&1
        for X in range(3):
            for tau in range(2):
                k,b=wreg(X,tau,t); b+=4*hh
                acc=ACC+((X*2+tau)*2+mu)*4
                c='0' if kap==0 else f'v[{acc}:{acc+3}]'
                wf=f'{k}[{b}:{b+3}]'; hf=f'v[{hb}:{hb+3}]'
                if X<2: a(f'v_mfma_f32_16x16x32_bf16 v[{acc}:{acc+3}], {wf}, {hf}, {c}')
                else:   a(f'v_mfma_f32_16x16x32_bf16 v[{acc}:{acc+3}], {hf}, {wf}, {c}')
                if X==0 and tau==1 and 6+i<32: a(rd(6+i))
                if X>=1 and tau==0 and bg:
                    for o in bg.pop(0): a(o)
        if i==10:
            assert not bg
            a(f's_cmp_eq_u32 s{wOFL}, 0')
            a('s_cbranch_scc1 qaof_nf')
            a('s_waitcnt vmcnt(15)')
            bflag(wOFL)
            a(f's_mov_b32 s{wOFL}, 0')
            a.label('qaof_nf')
        if i==20:
            a('s_waitcnt vmcnt(1)')
            a(f's_cmp_lt_i32 s{wA}, 2')
            a('s_cbranch_scc0 qa_fl')
            a('s_waitcnt vmcnt(0)')
            a.label('qa_fl')
            a(f'v_readfirstlane_b32 s{sT1}, v{FL}')
            a(f's_cmp_gt_i32 s{sT1}, s{wA}')
            a('s_cbranch_scc0 qa_nokm')
            a(f's_mov_b32 s{wRDY}, 1')
            km_loads()
            a.label('qa_nokm')
    a(f's_lshl_b32 s{sT0}, s{wS}, 18')
    a(f's_lshl_b32 s{sT1}, s{sH}, 13')
    a(f's_add_u32 s{sT0}, s{sT0}, s{sT1}')
    a(f's_lshl_b32 s{sT1}, s{sW}, 10')
    a(f's_add_u32 s{sT2}, s{sT0}, s{sT1}')
    a(f's_add_u32 s{sT3}, s{sT2}, s{sT1}')
    a('s_barrier')
    for X,base in ((1,KF),(0,QF_)):
        for mu in range(2):
            a0=ACC+((X*2+0)*2+mu)*4; a1=ACC+((X*2+1)*2+mu)*4
            for r in range(4): a(f'v_cvt_pk_bf16_f32 v{a0+r}, v{a0+r}, v{a1+r}')
            a(f's_add_u32 s{sT0}, s{sT2}, {base+mu*4096}')
            a(f'buffer_store_dwordx4 v[{a0}:{a0+3}], v{vL}, {W}, s{sT0} offen'+(' sc1' if (X or int(os.environ.get('QS','0'))) else ''))
    a(f's_add_u32 s{sT0}, s{sT3}, {VF}')
    for tau in range(2):
        a0=ACC+((4+tau)*2+0)*4; a1=ACC+((4+tau)*2+1)*4
        a(f'v_cvt_pk_bf16_f32 v{a0}, v{a0}, v{a0+1}'); a(f'v_cvt_pk_bf16_f32 v{a0+1}, v{a0+2}, v{a0+3}')
        a(f'v_cvt_pk_bf16_f32 v{a0+2}, v{a1}, v{a1+1}'); a(f'v_cvt_pk_bf16_f32 v{a0+3}, v{a1+2}, v{a1+3}')
        a(f'buffer_store_dwordx4 v[{a0}:{a0+3}], v{vL}, {W}, s{sT0} offen offset:{tau*1024} sc1')
    a(f's_lshl_b32 s{wKFL}, s{sH}, 8')
    a(f's_lshl_b32 s{sT1}, s{wS}, 2')
    a(f's_add_u32 s{wKFL}, s{wKFL}, s{sT1}')
    a(f's_add_u32 s{wKFL}, s{wKFL}, s{sW}')
    a(f's_add_u32 s{wKFL}, s{wKFL}, {KVFLAG}')
    a(f's_mov_b32 s{sT0}, s{wBa}'); a(f's_mov_b32 s{wBa}, s{wBb}'); a(f's_mov_b32 s{wBb}, s{sT0}')
    a(f's_add_u32 s{wS}, s{wS}, 2')
    a(f's_cmp_lt_i32 s{wA}, 0')
    a('s_cbranch_scc0 qa_att2')
    a('s_waitcnt vmcnt(0)')
    bflag(wKFL)
    a(f's_add_u32 s{wA}, s{wA}, 2')
    a('s_branch qa_loop')
    a.label('qa_last')
    a('s_waitcnt vmcnt(0)')
    bflag(wOFL)
    a('s_branch qa_end')
    a.label('qa_noq')
    for g in attd:
        for o in g: a(o)
    a('s_waitcnt vmcnt(6)')
    bflag(wOFL)
    a('s_waitcnt vmcnt(1)')
    a('s_barrier')
    a.label('qa_att2')
    Q=64; K=16; V=80; SX=48; SM=56; LA=60; PX=120; PM=124; T=118
    OA=16; VMp=32; OUT=40
    for u in range(4): a(f'ds_read_b128 v[{Q+4*u}:{Q+4*u+3}], v4 offset:{u*1024}')
    for f in range(8): a(f'ds_read_b128 v[{K+4*f}:{K+4*f+3}], v5 offset:{f*1024}')
    a('s_waitcnt lgkmcnt(4)')
    for t in range(4): a(f'ds_read_b128 v[{V+4*t}:{V+4*t+3}], v6 offset:{t*1024}')
    for mu in range(2):
        if mu: a('s_waitcnt lgkmcnt(4)')
        for u in range(4):
            c='0' if u==0 else f'v[{SX+4*mu}:{SX+4*mu+3}]'
            a(f'v_mfma_f32_16x16x32_bf16 v[{SX+4*mu}:{SX+4*mu+3}], v[{K+16*mu+4*u}:{K+16*mu+4*u+3}], v[{Q+4*u}:{Q+4*u+3}], {c}')
    for i in range(8):
        a(f'v_cndmask_b32 v{SX+i}, v{NEG}, v{SX+i}, s[{wMASK+2*i}:{wMASK+2*i+1}]')
    a(f'v_max3_f32 v{T}, v{SX}, v{SX+1}, v{SX+2}')
    a(f'v_max3_f32 v{T+1}, v{SX+3}, v{SX+4}, v{SX+5}')
    a(f'v_max3_f32 v{T}, v{T}, v{SX+6}, v{SX+7}')
    a(f'v_max_f32 v{T}, v{T}, v{T+1}')
    a(f's_cmp_eq_u32 s{wRDY}, 1')
    a('s_cbranch_scc1 att_rdy')
    a.label('att_poll')
    a(f'buffer_load_dword v{FL}, off, {W}, s{wRF} sc1')
    a(f's_add_u32 s{sSP}, s{sSP}, 1')
    a('s_waitcnt vmcnt(0)')
    a(f'v_readfirstlane_b32 s{sT1}, v{FL}')
    a(f's_cmp_gt_u32 s{sT1}, s{wA}')
    a('s_cbranch_scc1 att_go')
    a(f's_cmp_lt_i32 s{wKFL}, 0')
    a('s_cbranch_scc1 att_nk')
    bflag(wKFL)
    a(f's_mov_b32 s{wKFL}, -1')
    a.label('att_nk')
    a(f's_cmp_gt_u32 s{sSP}, {SPIN_MAX}')
    a('s_cbranch_scc1 att_go')
    a('s_sleep 1')
    a('s_branch att_poll')
    a.label('att_go')
    km_loads()
    a('s_waitcnt vmcnt(0)')
    a('s_branch att_have')
    a.label('att_rdy')
    a('s_waitcnt vmcnt(6)')
    a.label('att_have')
    for u in range(4):
        c='0' if u==0 else f'v[{SM}:{SM+3}]'
        a(f'v_mfma_f32_16x16x32_bf16 v[{SM}:{SM+3}], v[{KMr+4*u}:{KMr+4*u+3}], v[{Q+4*u}:{Q+4*u+3}], {c}')
    for t in range(4):
        a(f'v_mov_b32 v{VMp+2*t}, v{VMr+t}')
        a(f'v_mov_b32 v{VMp+2*t+1}, 0')
    a(f'v_max3_f32 v{T}, v{T}, v{SM}, v{SM+1}')
    xlane_reduce(a,'v_max_f32',T,T+1)
    a(f'v_mul_f32 v{T}, s{wC}, v{T}')
    scs=[SX+i for i in range(8)]+[SM,SM+1]
    for r in scs: a(f'v_fma_f32 v{r}, v{r}, s{wC}, -v{T}')
    for r in scs: a(f'v_exp_f32 v{r}, v{r}')
    for i in range(4): a(f'v_cvt_pk_bf16_f32 v{PX+i}, v{SX+2*i}, v{SX+2*i+1}')
    a(f'v_cvt_pk_bf16_f32 v{PM}, v{SM}, v{SM+1}')
    a(f'v_mov_b32 v{PM+1}, 0')
    a('s_waitcnt lgkmcnt(0)')
    a(f'v_mfma_f32_16x16x32_bf16 v[{LA}:{LA+3}], v[{ONES}:{ONES+3}], v[{PX}:{PX+3}], 0')
    for t in range(4):
        a(f'v_mfma_f32_16x16x32_bf16 v[{OA+4*t}:{OA+4*t+3}], v[{V+4*t}:{V+4*t+3}], v[{PX}:{PX+3}], 0')
    a(f'v_mfma_f32_16x16x16_bf16 v[{LA}:{LA+3}], v[{ONES}:{ONES+1}], v[{PM}:{PM+1}], v[{LA}:{LA+3}]')
    for t in range(4):
        a(f'v_mfma_f32_16x16x16_bf16 v[{OA+4*t}:{OA+4*t+3}], v[{VMp+2*t}:{VMp+2*t+1}], v[{PM}:{PM+1}], v[{OA+4*t}:{OA+4*t+3}]')
    a(f's_lshl_b32 s{sT0}, s{wA}, 18')
    a(f's_lshl_b32 s{sT1}, s{wNU}, 17')
    a(f's_add_u32 s{sT0}, s{sT0}, s{sT1}')
    a(f's_lshl_b32 s{sT1}, s{sH}, 12')
    a(f's_add_u32 s{sT0}, s{sT0}, s{sT1}')
    a(f's_lshl_b32 s{sT1}, s{wEH}, 11')
    a(f's_add_u32 s{sT0}, s{sT0}, s{sT1}')
    a(f's_add_u32 s{sT0}, s{sT0}, {OF}')
    a(f'v_rcp_f32 v{LA}, v{LA}')
    for i in range(16): a(f'v_mul_f32 v{OA+i}, v{OA+i}, v{LA}')
    for i in range(8): a(f'v_cvt_pk_bf16_f32 v{OUT+i}, v{OA+2*i}, v{OA+2*i+1}')
    for z in range(2):
        a(f'buffer_store_dwordx4 v[{OUT+4*z}:{OUT+4*z+3}], v{vL}, {W}, s{sT0} offen offset:{z*1024} sc1')
    a(f's_cmp_lt_i32 s{wKFL}, 0')
    a('s_cbranch_scc1 att_nk2')
    a('s_waitcnt vmcnt(2)')
    bflag(wKFL)
    a.label('att_nk2')
    a(f's_lshl_b32 s{wOFL}, s{wA}, 10')
    a(f's_add_u32 s{wOFL}, s{wOFL}, s100')
    a(f's_add_u32 s{wA}, s{wA}, 2')
    a('s_branch qa_loop')
    a.label('qa_end')
    rtstamp(a,3)
    a('s_branch main_done')
```

```python
from asmlib import *

NAME='adaLN_cond__memory_aug_recurrent_mem_tr__glu_gated_bilinear__prompt'
KA=dict(x=0,mem0=8,Wq=16,Wk=24,Wv=32,Wo=40,seg=48,Bx=56,wg=64,wu=72,wd=80,c=88,wmod=96,out=104,dbg=112,ws=120)
WS_BYTES=268435456
FLAGS=0x700000; KVFLAG=FLAGS; RECFLAG=FLAGS+0x2000
MOD=0x10000
MRING=0x20000
PRING=0x40000
H1F=0x100000
X1=0x300000
H2F=0x500000
HH=0x800000
QF=0x1000000
KF=0x2000000
VF=0x3000000
OF=0x4000000
KM=0x5100000
VM=0x5800000

def srd(a, d, ptr, nbytes):
    a(f's_mov_b32 s{d}, s{ptr}')
    a(f's_and_b32 s{d+1}, s{ptr+1}, 0xffff')
    a(f's_mov_b32 s{d+2}, {nbytes}')
    a(f's_mov_b32 s{d+3}, 0x00020000')

def kernel_head(a, label):
    a('.p2align 8')
    a(f'.globl {label}')
    a(f'.type {label},@function')
    a.label(label)

def kernel_desc(label, vgpr, sgpr, accum):
    return f'''.p2align 6
.amdhsa_kernel {label}
  .amdhsa_next_free_vgpr {vgpr}
  .amdhsa_next_free_sgpr {sgpr}
  .amdhsa_accum_offset {accum}
  .amdhsa_group_segment_fixed_size 0
  .amdhsa_kernarg_size 128
  .amdhsa_user_sgpr_count 2
  .amdhsa_user_sgpr_kernarg_segment_ptr 1
  .amdhsa_system_sgpr_workgroup_id_x 1
  .amdhsa_float_denorm_mode_32 3
.end_amdhsa_kernel
'''

def round_bf16(a, r, tmp):
    a(f'v_cvt_pk_bf16_f32 v{tmp}, v{r}, v{r}')
    a(f'v_lshlrev_b32 v{r}, 16, v{tmp}')

def round_bf16_pair(a, r0, r1, tmp):
    a(f'v_cvt_pk_bf16_f32 v{tmp}, v{r0}, v{r1}')
    a(f'v_lshlrev_b32 v{r0}, 16, v{tmp}')
    a(f'v_and_b32 v{r1}, 0xffff0000, v{tmp}')

def xlane_reduce(a, op, r, t):
    a(f'v_mov_b32 v{t}, v{r}')
    a(f'v_permlane16_swap_b32 v{t}, v{r}')
    a(f'{op} v{r}, v{t}, v{r}')
    a(f'v_mov_b32 v{t}, v{r}')
    a(f'v_permlane32_swap_b32 v{t}, v{r}')
    a(f'{op} v{r}, v{t}, v{r}')

import os as _os
RT=int(_os.environ.get('RT','0'))
def rtstamp(a, idx, role_s=53, wave_s=54, ws=24, vt=127, idx_s=None):
    if not RT: return
    l=a.newlabel('rt')
    a(f's_cmp_lg_u32 s{wave_s}, 0')
    a(f's_cbranch_scc1 {l}')
    a('s_memrealtime s[4:5]')
    a(f's_lshl_b32 s6, s{role_s}, 8')
    a(f's_add_u32 s6, s6, {0x6200000+idx*4}')
    if idx_s is not None:
        a(f's_lshl_b32 s7, s{idx_s}, 2'); a('s_add_u32 s6, s6, s7')
    a('s_waitcnt lgkmcnt(0)')
    a(f'v_mov_b32 v{vt}, s4')
    a('s_mov_b64 exec, 1')
    a(f'buffer_store_dword v{vt}, off, s[{ws}:{ws+3}], s6')
    a('s_mov_b64 exec, -1')
    a('s_waitcnt vmcnt(0)')
    a.label(l)

def lstamp(a, k):
    if RT==3: a(f's_memrealtime s[{14+2*k}:{15+2*k}]')
def ldump(a, n, role_s=53, wave_s=54, ws=24):
    if RT!=3: return
    l=a.newlabel('ld')
    a('s_waitcnt lgkmcnt(0)')
    a('s_mov_b64 exec, 1')
    a(f's_lshl_b32 s7, s{wave_s}, 5')
    for k in range(n):
        a(f's_lshl_b32 s6, s{role_s}, 8'); a(f's_add_u32 s6, s6, {0x6200000+(8+k)*4}'); a('s_add_u32 s6, s6, s7')
        a(f'v_mov_b32 v126, s{14+2*k}')
        a(f'buffer_store_dword v126, off, s[{ws}:{ws+3}], s6')
    a('s_mov_b64 exec, -1')
    a.label(l)
```

```python
from common import *
import os

sWS=24; sDBG=28; sWQ=32; sWK=36; sWV=40; sWO=44; sM0=48
sMODE=52; sROLE=53; sW=54; sH=55; sSLOT=56; sXCC=57; sLB=58; sT0=59; sT1=60; sT2=61; sT3=62
sMB=3; MBOX=0x18000
sKT=64
L_M=0x0; L_K=0x2000; L_V=0x4000; L_QK=0x6000; L_SEL=0x7400; L_WO=0x8000
QK_RS=544
SPIN_MAX=1<<22
QORD=[[0,1,2,3],[1,0,2,3],[2,0,1,3],[3,0,1,2]]

def srd4(b): return f's[{b}:{b+3}]'

def interleave(a, main, side, start=0, per=1):
    side=list(side)
    for k,m in enumerate(main):
        a(m)
        if k>=start:
            for _ in range(per):
                if side: a(side.pop(0))
    for s_ in side: a(s_)


def wreg(X, tau, j):
    off=(tau*8+j)*8
    return ('a',X*128+off) if X<2 else ('v',128+off)

def gen_common(a, label):
    kernel_head(a,label)
    a('s_cmp_ge_u32 s2, 0' if os.environ.get('EMPTY')=='1' else 's_cmp_ge_u32 s2, 256')
    a('s_cbranch_scc1 main_done')
    a(f's_load_dwordx8 s[8:15], s[0:1], {KA["mem0"]}')
    a(f's_load_dwordx2 s[16:17], s[0:1], {KA["Wo"]}')
    a(f's_load_dwordx4 s[20:23], s[0:1], {KA["dbg"]}')
    a(f's_getreg_b32 s{sXCC}, hwreg(HW_REG_XCC_ID)')
    a(f's_and_b32 s{sXCC}, s{sXCC}, 7')
    a('v_lshrrev_b32 v1, 6, v0')
    a(f'v_readfirstlane_b32 s{sW}, v1')
    a('v_and_b32 v0, 63, v0')
    a('s_waitcnt lgkmcnt(0)')
    srd(a,sWS,22,WS_BYTES); srd(a,sDBG,20,256)
    srd(a,sWQ,10,4<<20); srd(a,sWK,12,4<<20); srd(a,sWV,14,4<<20); srd(a,sWO,16,4<<20); srd(a,sM0,8,8192)
    a(f's_lshl_b32 s{sMB}, s2, 7')
    a(f's_add_u32 s{sMB}, s{sMB}, {MBOX}')
    a(f's_cmp_lg_u32 s{sW}, 0')
    a('s_cbranch_scc1 role_wait')
    a(f's_mov_b32 s{sT0}, s{sXCC}')
    if os.environ.get('SCATTER'): a(f's_lshr_b32 s{sT0}, s2, 5')
    if os.environ.get('SCATTER2'): a(f's_mov_b32 s{sT0}, 3')
    a(f's_mov_b32 s{sT2}, 0')
    a('s_mov_b64 exec, 1')
    a.label('role_loop')
    a(f's_cmp_eq_u32 s{sT0}, 0')
    a('s_cbranch_scc1 role_tk')
    a('v_mov_b32 v1, 0')
    a(f'buffer_store_dword v1, off, {srd4(sWS)}, s{sMB} sc1')
    a('s_waitcnt vmcnt(0)')
    a.label('role_tk')
    a('v_mov_b32 v1, 1')
    a(f's_lshl_b32 s{sT1}, s{sT0}, 2')
    a(f's_add_u32 s{sT1}, s{sT1}, 144')
    a(f's_cmp_eq_u32 s{sT0}, 0')
    a(f's_cselect_b32 s{sT1}, 0, s{sT1}')
    a(f'buffer_atomic_add v1, off, {srd4(sDBG)}, s{sT1} sc0')
    a('s_waitcnt vmcnt(0)')
    a(f'v_readfirstlane_b32 s{sT1}, v1')
    a(f's_cmp_lt_u32 s{sT1}, 32')
    a('s_cbranch_scc1 role_got')
    a(f's_add_u32 s{sT0}, s{sT0}, 1')
    a(f's_and_b32 s{sT0}, s{sT0}, 7')
    a(f's_add_u32 s{sT2}, s{sT2}, 1')
    a(f's_cmp_lt_u32 s{sT2}, 8')
    a('s_cbranch_scc1 role_loop')
    a(f's_mov_b32 s{sT0}, 8')
    a(f's_mov_b32 s{sT1}, 0')
    a.label('role_got')
    a(f's_lshl_b32 s{sT0}, s{sT0}, 5')
    a(f's_add_u32 s{sT0}, s{sT0}, s{sT1}')
    a(f'v_mov_b32 v1, s{sT0}')
    a('v_mov_b32 v2, 0')
    a('ds_write_b32 v2, v1')
    a('s_mov_b64 exec, -1')
    a('s_waitcnt lgkmcnt(0)')
    a.label('role_wait')
    a('s_barrier')
    a('v_mov_b32 v2, 0')
    a('ds_read_b32 v1, v2')
    a('s_waitcnt lgkmcnt(0)')
    a(f'v_readfirstlane_b32 s{sROLE}, v1')
    a('s_barrier')
    a(f's_cmp_ge_u32 s{sROLE}, 0' if os.environ.get('EMPTY')=='2' else f's_cmp_ge_u32 s{sROLE}, 256')
    a('s_cbranch_scc1 main_done')
    a(f's_lshl_b32 s{sLB}, s{sW}, 15')
    a(f's_add_u32 s{sLB}, s{sLB}, {L_WO}')
    a(f's_cmp_lt_u32 s{sROLE}, 32')
    a('s_cbranch_scc1 rec_start')
    a('s_branch work_start')

def gen_loader(a, tag, rot_is_wave):
    for j in range(8):
        if rot_is_wave:
            tab=sum((2*QORD[w][j>>1]+(j&1))<<(4*w) for w in range(4))
            a(f's_lshl_b32 s{sT0}, s{sW}, 2')
            a(f's_lshr_b32 s{sT0}, {tab}, s{sT0}')
            a(f's_and_b32 s{sT0}, s{sT0}, 7')
            a(f's_lshl_b32 s{sKT+j}, s{sT0}, 19')
        else:
            a(f's_mov_b32 s{sKT+j}, {j<<19}')
    a('v_bfe_u32 v2, v0, 2, 1')
    a('v_bfe_u32 v3, v0, 4, 1')
    a('v_lshl_add_u32 v2, v3, 1, v2')
    a('v_bfe_u32 v3, v0, 3, 1')
    a('v_lshl_add_u32 v2, v3, 2, v2')
    a('v_bfe_u32 v3, v0, 5, 1')
    a('v_lshl_add_u32 v2, v3, 3, v2')
    a('v_lshlrev_b32 v1, 13, v2')
    a('v_lshlrev_b32 v3, 1, v3')
    a('v_xor_b32 v3, v3, v0')
    a('v_and_b32 v3, 3, v3')
    a('v_lshl_add_u32 v1, v3, 4, v1')
    a(f's_lshl_b32 s{sT0}, s{sH}, 8')
    a(f's_lshl_b32 s{sT1}, s{sW}, 6')
    a(f's_add_u32 s{sT0}, s{sT0}, s{sT1}')
    a(f'v_add_u32 v1, s{sT0}, v1')
    a('v_bfe_u32 v2, v0, 5, 1')
    a('v_lshlrev_b32 v4, 10, v2')
    a('v_bfe_u32 v2, v0, 3, 1')
    a('v_mul_u32_u24 v2, 544, v2')
    a('v_add_u32 v4, v4, v2')
    a('v_bfe_u32 v2, v0, 4, 1')
    a('v_lshl_add_u32 v4, v2, 7, v4')
    a('v_bfe_u32 v2, v0, 2, 1')
    a('v_lshl_add_u32 v4, v2, 6, v4')
    a('v_and_b32 v2, 3, v0')
    a('v_lshl_add_u32 v4, v2, 3, v4')
    a(f'v_add_u32 v4, s{sLB}, v4')
    a('v_xor_b32 v5, 32, v4')
    srds=[sWQ,sWK,sWV]
    def issue(u):
        X,j=u>>3,u&7
        for i in range(4):
            a(f's_add_u32 m0, s{sLB}, {j*4096+i*1024}')
            a(f's_add_u32 s{sT0}, s{sKT+j}, {i*131072}')
            a(f'buffer_load_dwordx4 v1, {srd4(srds[X])}, s{sT0} offen lds')
    def consume(u):
        X,j=u>>3,u&7
        for tau in range(2):
            k,b=wreg(X,tau,j)
            for hh in range(2):
                for y in range(2):
                    a(f'ds_read_b64_tr_b16 {k}[{b+4*hh+2*y}:{b+4*hh+2*y+1}], v{4+tau} offset:{j*4096+hh*2048+y*256}')
    return issue, consume


def coop_addrs(a, D, A, strides, pats, col_s=None):
    a('v_lshrrev_b32 v16, 4, v0')
    a('v_and_b32 v17, 15, v0')
    a('v_and_b32 v18, 1, v16'); a('v_lshlrev_b32 v18, 1, v18')
    a('v_xor_b32 v17, v17, v18')
    a(f's_lshl_b32 s{sT0}, s{sW}, 4')
    a(f'v_add_u32 v16, s{sT0}, v16')
    for k,st in enumerate(strides):
        a(f's_mov_b32 s{sT0}, {st}')
        a(f'v_mul_lo_u32 v18, v16, s{sT0}')
        if k==0 and col_s is not None: a(f'v_add_u32 v18, s{col_s}, v18')
        for i in range(4):
            a(f'v_xor_b32 v19, {i<<2}, v17')
            a(f'v_lshl_add_u32 v{D+4*k+i}, v19, 4, v18')
            if i: a(f'v_add_u32 v{D+4*k+i}, {4*i*st}, v{D+4*k+i}')
    for k,pat in enumerate(pats):
        if pat=='H': b16,rb3,rb2=5,3,4
        else:        b16,rb3,rb2=4,5,3
        r=A+2*k
        a(f'v_bfe_u32 v2, v0, {b16}, 1'); a(f'v_lshlrev_b32 v{r}, 12, v2')
        a(f'v_bfe_u32 v2, v0, {rb3}, 1'); a(f'v_lshl_add_u32 v{r}, v2, 11, v{r}'); a('v_lshlrev_b32 v3, 3, v2')
        a(f'v_bfe_u32 v2, v0, {rb2}, 1'); a(f'v_lshl_add_u32 v{r}, v2, 10, v{r}'); a('v_lshl_add_u32 v3, v2, 2, v3')
        a('v_bfe_u32 v2, v0, 2, 1'); a(f'v_lshl_add_u32 v{r}, v2, 8, v{r}'); a('v_lshl_add_u32 v3, v2, 1, v3')
        a('v_bfe_u32 v2, v0, 1, 1')
        a(f's_lshl_b32 s{sT0}, s{sW}, 2')
        a(f'v_add_u32 v2, s{sT0}, v2')
        a('v_xor_b32 v2, v2, v3')
        a(f'v_lshl_add_u32 v{r}, v2, 4, v{r}')
        a('v_and_b32 v2, 1, v0')
        a(f'v_lshl_add_u32 v{r}, v2, 3, v{r}')
        a(f'v_add_u32 v{r}, {L_WO}, v{r}')
        a(f'v_xor_b32 v{r+1}, 32, v{r}')

def coop_issue(a, u, dreg, srd_, soff_expr):
    for l in soff_expr: a(l)
    for i in range(4):
        a(f's_add_u32 m0, s{sLB}, {(u&7)*16384+i*1024}')
        a(f'buffer_load_dwordx4 v{dreg+i}, {srd_}, s{sT0} offen lds')

def coop_reads(a, u, areg, hi, dst):
    sl=u&7
    for tau in range(2):
        k,b=dst(tau)
        ad=(areg if sl<4 else hi)+tau
        for hh in range(2):
            for y in range(2):
                a(f'ds_read_b64_tr_b16 {k}[{b+4*hh+2*y}:{b+4*hh+2*y+1}], v{ad} offset:{(sl&3)*16384+hh*8192+y*512}')
```

```python
from common import *
from k_main import *
import os
E=lambda k,d: int(os.environ.get(k,str(d)))

R_K=0x0
R_V=0x2000
R_M=0x4000
R_QK=0x6000
R_O=0x7200
vT=0; vIDX=1; vL16=2; vQKW=3; vQR=4; vKR=5; vOW=6; vWO=7; vPST=8; vMST=9; NEG1=10; PM=14
MF=16; QA=48; KA_=56; VA=64; VC=72; ONES=80; VM0=84; VM1=86; KX=88
QFR=[16,20,120,124]
sS=72; sMa=73; sMb=74; sMc=75; sPa=76; sPb=77; sPc=78; sMa2=79; sKVM=80; sODD=82; sSPIN=84; sKB=85; sC=86
sU0=88; sU1=89; sKO=90; sVO=91; sFV=93; sHW=94; sRO=95
sPUB=96; sPR=97; sRG=98; sRG2=99; sHA=92; sHI=70; sFLA=100; sH13=101; sPUB0=63; sPq=64
sPM=68
sTS=4; sACC=32
STSEL=[x for x in os.environ.get('STSEL','').split(',') if x]
SOLO=E('SOLO',0)
SNAP=E('SNAP',0)
ABL=[x for x in os.environ.get('ABL','').split(',') if x]
HINT=0x3000
def wo_reg(f):
    j,tau=f>>1,f&1
    return wreg(2,tau,j)[1]

def delay(a,cyc):
    n=cyc//4
    while n>0:
        c=min(n,16); a(f's_nop {c-1}'); n-=c

def wo_lds(f):
    c,tile,t2=f>>2,(f>>1)&1,f&1
    return ((c-2)*2+t2)*16384+tile*2048

def gen_rec(a, stamps=False):
    global SPIN_MAX
    if stamps: SPIN_MAX=1<<30
    W=srd4(sWS)
    a.label('rec_start')
    a(f's_mov_b32 s{sH}, s{sROLE}')
    rtstamp(a,0)
    D1,D2,A0,A2,H0,H2=96,100,112,114,116,118
    a(f's_lshl_b32 s{sLB}, s{sW}, 12')
    a(f's_add_u32 s{sLB}, s{sLB}, {L_WO}')
    a(f's_lshl_b32 s13, s{sH}, 8')
    a(f's_lshl_b32 s12, s{sH}, 17')
    coop_addrs(a,D1,A0,[8192,1024],[],col_s=13)
    q=[]
    def issue(u):
        X,j=u>>3,u&7
        if X<3: coop_issue(a,u,D1,srd4([sWQ,sWK,sWV][X]),[f's_mov_b32 s{sT0}, {j<<19}'])
        else: coop_issue(a,u,D2,srd4(sWO),[f's_add_u32 s{sT0}, s12, {(j&1)*65536+(j>>1)*256}'])
        q.extend([('u',u)]*4)
    def wait_for(tag):
        idx=max(i for i,t in enumerate(q) if t==tag)
        a(f's_waitcnt vmcnt({len(q)-1-idx})')
        del q[:idx+1]
    def vm(text,tag):
        a(text); q.append(tag)
    for u in range(8): issue(u)
    coop_addrs(a,D1,A0,[],['H','O'])
    for i in range(4): a(f'v_add_u32 v{H0+i}, 0x10000, v{A0+i}')
    a(f'v_lshlrev_b32 v{vL16}, 4, v0')
    a(f'v_add_u32 v{vWO}, s{sLB}, v{vL16}')
    a(f'v_add_u32 v{vWO}, 0x10000, v{vWO}')
    for r in range(NEG1,NEG1+4): a(f'v_mov_b32 v{r}, -1')
    a('v_and_b32 v19, 1, v0')
    a(f'v_mov_b32 v{vIDX}, 0x4444')
    a('v_mov_b32 v16, 0xeeee')
    a('v_cmp_eq_u32 vcc, 1, v19')
    a(f'v_cndmask_b32 v{vIDX}, v{vIDX}, v16, vcc')
    a(f's_mov_b32 s{sODD}, 0xaaaaaaaa'); a(f's_mov_b32 s{sODD+1}, 0xaaaaaaaa')
    a(f's_mov_b32 s{sPM}, 0x000f000f'); a(f's_mov_b32 s{sPM+1}, 0x000f000f')
    a('v_and_b32 v16, 15, v0')
    a('v_lshrrev_b32 v17, 4, v0')
    a(f'v_mul_u32_u24 v{vQKW}, {2*QK_RS}, v17')
    a(f'v_lshl_add_u32 v{vQKW}, v16, 2, v{vQKW}')
    a(f's_lshl_b32 s{sT1}, s{sW}, 6')
    a(f's_add_u32 s{sT1}, s{sT1}, {R_QK}')
    a(f'v_add_u32 v{vQKW}, s{sT1}, v{vQKW}')
    a('v_lshrrev_b32 v18, 1, v16')
    a(f'v_mul_u32_u24 v{vQR}, {QK_RS}, v18')
    a(f'v_lshl_add_u32 v{vQR}, v17, 4, v{vQR}')
    a(f'v_add_u32 v{vQR}, {R_QK}, v{vQR}')
    a('v_lshrrev_b32 v18, 2, v16')
    a('v_lshlrev_b32 v18, 1, v18')
    a('v_add_u32 v18, v18, v19')
    a(f'v_mul_u32_u24 v{vKR}, {QK_RS}, v18')
    a(f'v_lshl_add_u32 v{vKR}, v17, 4, v{vKR}')
    a(f'v_add_u32 v{vKR}, {R_QK+256}, v{vKR}')
    a('v_lshrrev_b32 v18, 1, v17')
    a(f'v_lshlrev_b32 v{vOW}, 8, v18')
    a('v_lshrrev_b32 v18, 1, v16')
    a(f'v_lshl_add_u32 v{vOW}, v18, 5, v{vOW}')
    a('v_and_b32 v18, 1, v17')
    a(f'v_lshl_add_u32 v{vOW}, v18, 4, v{vOW}')
    a(f'v_lshl_add_u32 v{vOW}, v19, 3, v{vOW}')
    a(f's_lshl_b32 s{sT1}, s{sW}, 9')
    a(f's_add_u32 s{sT1}, s{sT1}, {R_O}')
    a(f'v_add_u32 v{vOW}, s{sT1}, v{vOW}')
    a('v_lshrrev_b32 v18, 3, v0')
    a(f'v_lshlrev_b32 v{vPST}, 11, v18')
    a('v_and_b32 v18, 7, v0')
    a(f'v_lshl_add_u32 v{vPST}, v18, 3, v{vPST}')
    a(f's_lshl_b32 s{sT1}, s{sW}, 14')
    a(f's_lshl_b32 s{sT2}, s{sH}, 6')
    a(f's_add_u32 s{sT1}, s{sT1}, s{sT2}')
    a(f'v_add_u32 v{vPST}, s{sT1}, v{vPST}')
    a('v_lshrrev_b32 v18, 1, v17')
    a(f'v_lshlrev_b32 v{vMST}, 5, v18'); a('v_lshlrev_b32 v24, 10, v18')
    a('v_and_b32 v18, 3, v0')
    a(f'v_lshl_add_u32 v{vMST}, v18, 2, v{vMST}'); a('v_lshl_add_u32 v24, v18, 2, v24')
    a('v_and_b32 v18, 1, v17')
    a(f'v_lshl_add_u32 v{vMST}, v18, 8, v{vMST}'); a('v_lshl_add_u32 v24, v18, 5, v24')
    a(f's_lshr_b32 s{sT1}, s{sH}, 3'); a(f's_lshl_b32 s{sT3}, s{sT1}, 6'); a(f's_lshl_b32 s{sT1}, s{sT1}, 9')
    a(f's_and_b32 s{sT2}, s{sH}, 1'); a(f's_lshl_b32 s{sT2}, s{sT2}, 4')
    a(f's_add_u32 s{sT1}, s{sT1}, s{sT2}'); a(f's_add_u32 s{sT3}, s{sT3}, s{sT2}')
    a(f's_bfe_u32 s{sT2}, s{sH}, 0x20001'); a(f's_lshl_b32 s{sT0}, s{sT2}, 11'); a(f's_lshl_b32 s{sT2}, s{sT2}, 6')
    a(f's_add_u32 s{sT1}, s{sT1}, s{sT2}'); a(f's_add_u32 s{sT3}, s{sT3}, s{sT0}')
    a(f's_lshl_b32 s{sT2}, s{sW}, 11'); a(f's_add_u32 s{sT1}, s{sT1}, s{sT2}')
    a(f's_lshl_b32 s{sT2}, s{sW}, 8'); a(f's_add_u32 s{sT3}, s{sT3}, s{sT2}')
    a(f'v_add_u32 v{vMST}, s{sT1}, v{vMST}')
    vm(f'buffer_load_dword v106, v24, {srd4(sM0)}, s{sT3} offen','m0')
    a('v_mov_b32 v24, 0x3f80'); a('v_mov_b32 v25, 0x3f800000'); a('v_mov_b32 v26, 0x3f803f80')
    a('v_and_b32 v18, 3, v16')
    for d in range(4):
        lo=4*(d&1)+2+(d>>1)
        a(f'v_cmp_eq_u32 vcc, {lo}, v16')
        a(f'v_cndmask_b32 v{ONES+d}, 0, v24, vcc')
        a(f'v_cmp_eq_u32 vcc, {lo+8}, v16')
        a(f'v_cndmask_b32 v{ONES+d}, v{ONES+d}, v25, vcc')
        a('v_cmp_eq_u32 vcc, 0, v18')
        a(f'v_cndmask_b32 v{ONES+d}, v{ONES+d}, v26, vcc')
    for r in (VM0,VM0+1,VM1,VM1+1,PM+1): a(f'v_mov_b32 v{r}, 0')
    a(f's_mov_b32 s{sC}, 0x3e0293ee'); a(f's_mov_b32 s{sC+1}, 0x3e0293ee')
    a(f's_mov_b32 s{sS}, 0')
    a(f's_mov_b32 s{sMa}, {MRING}'); a(f's_mov_b32 s{sMb}, {MRING+8192}'); a(f's_mov_b32 s{sMc}, {MRING+16384}')
    a(f's_mov_b32 s{sPa}, {PRING}'); a(f's_mov_b32 s{sPb}, {PRING+0x40000}'); a(f's_mov_b32 s{sPc}, {PRING+0x80000}')
    a(f's_mov_b32 s{sSPIN}, 0')
    a(f's_lshl_b32 s{sH13}, s{sH}, 13')
    a(f's_lshl_b32 s{sT1}, s{sW}, 11')
    a(f's_add_u32 s{sHW}, s{sH13}, s{sT1}')
    a(f's_add_u32 s{sKO}, s{sHW}, {KF}')
    a(f's_add_u32 s{sVO}, s{sHW}, {VF}')
    a(f's_lshl_b32 s{sRO}, s{sW}, 16')
    a(f's_lshl_b32 s{sT2}, s{sH}, 11')
    a(f's_add_u32 s{sRO}, s{sRO}, s{sT2}')
    a(f's_lshl_b32 s{sFLA}, s{sH}, 7')
    a(f's_add_u32 s{sFLA}, s{sFLA}, {RECFLAG}')
    a(f's_lshl_b32 s{sT2}, s{sW}, 2'); a(f's_add_u32 s{sFLA}, s{sFLA}, s{sT2}')
    a(f's_lshr_b32 s{sPUB}, s{sHW}, 1')
    a(f's_add_u32 s{sPUB}, s{sPUB}, {KM-(1<<17)}')
    a(f's_mov_b32 s{sFV}, 0')
    a(f's_mov_b32 s{sKB}, 0')
    a(f's_mov_b32 s{sHI}, 0x01010101')
    a(f's_lshl_b32 s{sHA}, s{sH}, 8'); a(f's_add_u32 s{sHA}, s{sHA}, {KVFLAG}')
    for sl in range(3):
        a(f's_add_u32 s{sT1}, s{sHW}, {PRING+sl*0x40000}')
        vm(f'buffer_store_dwordx4 v[{NEG1}:{NEG1+3}], v{vL16}, {W}, s{sT1} offen sc1','i')
        vm(f'buffer_store_dwordx4 v[{NEG1}:{NEG1+3}], v{vL16}, {W}, s{sT1} offen offset:1024 sc1','i')
    vm(f'buffer_store_dword v{NEG1}, v{vMST}, {W}, s{sMb} offen sc1','i')
    vm(f'buffer_store_dword v{NEG1}, v{vMST}, {W}, s{sMc} offen sc1','i')
    a(f'v_lshrrev_b32 v107, 2, v{vL16}')
    def kvdma(f):
        a(f's_lshl_b32 s{sT1}, s{sW}, 11')
        a(f's_add_u32 m0, s{sT1}, {R_K}')
        f(f'buffer_load_dwordx4 v{vL16}, {W}, s{sKO} offen sc1 lds')
        f(f'buffer_load_dwordx4 v{vL16}, {W}, s{sKO} offen offset:1024 sc1 lds')
        a(f's_add_u32 m0, s{sT1}, {R_V}')
        f(f'buffer_load_dwordx4 v{vL16}, {W}, s{sVO} offen sc1 lds')
        f(f'buffer_load_dwordx4 v{vL16}, {W}, s{sVO} offen offset:1024 sc1 lds')
    def polls(f, dma=True):
        a(f's_mov_b32 s{sT1}, 192'); f(f'buffer_load_dword v108, off, {srd4(sDBG)}, s{sT1} sc1')
        a(f's_mov_b32 s{sT1}, 64'); f(f'buffer_load_dword v109, off, {srd4(sDBG)}, s{sT1} sc1')
        f(f'buffer_load_dword v110, v107, {W}, s{sHA} offen sc1')
        if dma: kvdma(f)
    TMPX=16; TMPW=88
    for u in range(32):
        X,j=u>>3,u&7
        wait_for(('u',u))
        a('s_barrier')
        if u>=1 and u+7<32: issue(u+7)
        if u>=29:
            for tau,b in enumerate((88,120)):
                for hh in range(2): a(f'ds_write_b128 v{vWO}, v[{b+4*hh}:{b+4*hh+3}] offset:{(u-29)*16384+tau*2048+hh*1024}')
            a('s_waitcnt lgkmcnt(0)')
        if u==28:
            for l in xbase(): a(l)
            for x in range(8):
                for hh in range(2): a(f'ds_write_b128 v{vT}, v[{TMPX+8*x+4*hh}:{TMPX+8*x+4*hh+3}] offset:{(x>>1)*16384+(x&1)*2048+hh*1024}')
                if x==3: a('s_waitcnt lgkmcnt(0)')
        if X<2: coop_reads(a,u,A0,H0,lambda tau: wreg(X,tau,j))
        elif X==2:
            done=a.newlabel('wv')
            for w in range(4):
                nx=a.newlabel('wv')
                if w<3:
                    a(f's_cmp_lg_u32 s{sW}, {w}'); a(f's_cbranch_scc1 {nx}')
                sj=2*QORD[w].index(j>>1)+(j&1)
                coop_reads(a,u,A0,H0,lambda tau: ('v',TMPX+8*(2*sj+tau)) if sj<4 else wreg(2,tau,sj))
                if w<3:
                    a(f's_branch {done}'); a.label(nx)
            a.label(done)
        elif u<28: coop_reads(a,u,A2,H2,lambda tau: ('v',wo_reg(((j>>1)*2+tau)*2+(j&1))))
        else: coop_reads(a,u,A2,H2,lambda tau: ('v',(88,120)[tau]))
        a('s_waitcnt lgkmcnt(0)')
        if u==8:
            vm(f'buffer_store_dword v106, v{vMST}, {W}, s{sMa} offen sc1','i')
        if u==17:
            a(f's_cmp_eq_u32 s{sXCC}, 0')
            a(f's_cselect_b32 s{sT0}, 1, 0x10001')
            a(f'v_mov_b32 v106, s{sT0}')
            a(f's_cmp_eq_u32 s{sW}, 0')
            a('s_cselect_b32 exec_lo, 1, 0')
            a('s_mov_b32 exec_hi, 0')
            a(f's_mov_b32 s{sT1}, 64')
            a(f'buffer_atomic_add v106, off, {srd4(sDBG)}, s{sT1}')
            a('s_mov_b64 exec, -1')
        if u==E('PU',28): polls(lambda t: vm(t,'p'))
    a('s_barrier')
    for tau,b in enumerate((88,120)):
        for hh in range(2): a(f'ds_write_b128 v{vWO}, v[{b+4*hh}:{b+4*hh+3}] offset:{3*16384+tau*2048+hh*1024}')
    rtstamp(a,1)
    a(f's_mov_b32 s{sT3}, 0')
    a.label('rec_chk')
    a('s_waitcnt vmcnt(0)')
    a(f'v_readfirstlane_b32 s{sT2}, v108')
    a(f'v_readfirstlane_b32 s{sT0}, v109')
    a(f'v_cmp_eq_u32 s[{sKVM}:{sKVM+1}], s{sHI}, v110')
    a(f's_add_u32 s{sSPIN}, s{sSPIN}, 1')
    a(f's_cmp_gt_u32 s{sSPIN}, {SPIN_MAX}')
    a('s_cbranch_scc1 rec_go')
    a(f's_cmp_lt_u32 s{sT2}, 160')
    a('s_cbranch_scc1 rec_again')
    a(f's_and_b32 s{sT2}, s{sT0}, 0xffff')
    a(f's_cmp_lt_u32 s{sT2}, 32')
    a('s_cbranch_scc1 rec_again')
    a(f's_bitcmp1_b64 s[{sKVM}:{sKVM+1}], 0')
    a('s_cbranch_scc1 rec_go')
    a.label('rec_again')
    a('s_sleep 8')
    a(f's_mov_b32 s{sT3}, 1')
    polls(a,False)
    a('s_branch rec_chk')
    a.label('rec_go')
    a(f's_cmp_eq_u32 s{sT3}, 0')
    a('s_cbranch_scc1 rec_go2')
    kvdma(a)
    a('s_waitcnt vmcnt(0)')
    a.label('rec_go2')
    rtstamp(a,3)
    a('s_waitcnt lgkmcnt(0)')
    for t in house_salu(first=True): a(t)
    a(f's_cmp_eq_u32 s{sT0}, 32')
    a('s_cbranch_scc0 rec_slow')
    for w in range(4):
        a(f's_cmp_eq_u32 s{sW}, {w}')
        a(f's_cbranch_scc1 rec_redo_f{w}')
    a.label('rec_slow')
    for w in range(3):
        a(f's_cmp_eq_u32 s{sW}, {w}')
        a(f's_cbranch_scc1 rec_redo_s{w}')
    a('s_branch rec_redo_s3')
    for fast in (True,False):
        for w in range(4):
            gen_loop(a, fast, w, stamps)
    a.label('rec_fin')
    a(f'v_mov_b32 v{KA_+2}, v{VM0}')
    a(f'v_add_f32 v{VA+4}, v{VA+4}, v{VA+5}'); a(f'v_add_f32 v{VA+6}, v{VA+6}, v{VA+7}')
    a(f'v_cvt_pk_bf16_f32 v{KA_+3}, v{VA+4}, v{VA+6}')
    a(f's_add_u32 s{sU0}, s{sPUB}, {1<<17}')
    a(f'buffer_store_dwordx4 v[{KA_}:{KA_+3}], v{vL16}, {W}, s{sU0} offen sc1')
    if stamps:
        a('s_waitcnt lgkmcnt(0)')
        a(f's_sub_u32 s{sACC+14}, s{sSPIN}, s{sACC+14}')
        for k in range(16): a(f'v_writelane_b32 v126, s{sACC+k}, {k}')
        a(f's_lshl_b32 s{sU0}, s{sH}, 8')
        a(f's_lshl_b32 s{sU1}, s{sW}, 6')
        a(f's_add_u32 s{sU0}, s{sU0}, s{sU1}')
        a(f's_add_u32 s{sU0}, s{sU0}, 0x6000000')
        a(f'v_lshrrev_b32 v127, 2, v{vL16}')
        a('s_mov_b64 exec, 0xffff')
        a(f'buffer_store_dword v126, v127, {W}, s{sU0} offen')
        a('s_mov_b64 exec, -1')
    a('s_waitcnt vmcnt(0)')
    a(f'v_mov_b32 v124, 64')
    a('s_mov_b64 exec, 1')
    a(f'buffer_store_dword v124, off, {W}, s{sFLA} sc1')
    a('s_mov_b64 exec, -1')
    rtstamp(a,4)
    if E('WB',0):
        a(f's_cmp_lg_u32 s{sH}, 0')
        a('s_cbranch_scc1 main_done')
        a('s_waitcnt vmcnt(0)')
        a('buffer_wbl2 sc1')
    a('s_branch main_done')

def xreg(x): return [88,96,104,112,120,16,104,112][x]
def xbase(): return [f'v_add_u32 v{vT}, 0xffff0000, v{vWO}']
def x_reads(lo,hi):
    r=[]
    for x in range(lo,hi):
        b=xreg(x)
        r+=[f'ds_read_b128 v[{b}:{b+3}], v{vT} offset:{(x>>1)*16384+(x&1)*2048}', f'ds_read_b128 v[{b+4}:{b+7}], v{vT} offset:{(x>>1)*16384+(x&1)*2048+1024}']
    return r
def zero_acc():
    return [f'v_mov_b64 v[{r}:{r+1}], 0' for r in range(VA+6,QA-2,-2)]
def v_reads(w):
    return [f'ds_read_b128 v[{VC+4*t}:{VC+4*t+3}], v{vL16} offset:{R_V+w*2048+t*1024}' for t in range(2)]
def rot_m():
    return [f's_mov_b32 s{sU0}, s{sMa}', f's_mov_b32 s{sMa}, s{sMb}', f's_mov_b32 s{sMb}, s{sMc}', f's_mov_b32 s{sMc}, s{sU0}', f's_add_u32 s{sMa2}, s{sMa}, 4096']
def house_salu(first=False):
    r=[]
    if not first:
        r+=[f's_mov_b32 s{sU0}, s{sPa}', f's_mov_b32 s{sPa}, s{sPb}', f's_mov_b32 s{sPb}, s{sPc}', f's_mov_b32 s{sPc}, s{sU0}',
            f's_add_u32 s{sPUB}, s{sPUB}, {1<<17}', f's_mov_b32 s{sFV}, s{sS}',
            f's_add_u32 s{sS}, s{sS}, 1']
    if first: r+=[f's_add_u32 s{sMa2}, s{sMa}, 4096']
    r+=[
        f's_add_u32 s{sU1}, s{sS}, 1', f's_min_u32 s{sU1}, s{sU1}, 63',
        f's_lshl_b32 s{sU0}, s{sU1}, 18', f's_add_u32 s{sU0}, s{sU0}, s{sHW}',
        f's_add_u32 s{sKO}, s{sU0}, {KF}', f's_add_u32 s{sVO}, s{sU0}, {VF}',
        f's_add_u32 s{sPR}, s{sPc}, s{sRO}', f's_add_u32 s{sRG}, s{sPa}, s{sRO}']
    r+=[f's_add_u32 s{sPq+c}, s{sPa}, {c*65536}' for c in range(1,4)]
    return r

def gen_loop(a, fast, w, stamps):
    tag=('f' if fast else 's')+str(w)
    sc='' if fast else ' sc1'
    W=srd4(sWS)
    nst=[0]; nall=[0]
    def stamp():
        nall[0]+=1
        if stamps and (not STSEL or str(nall[0]-1) in STSEL):
            k=nst[0]; nst[0]+=1
            return [f'{"s_memrealtime" if SNAP else "s_memtime"} s[{sTS+2*k}:{sTS+2*k+1}]']
        return []
    def emit(lst):
        for t in lst: a(t)
    def sm(X,tau,j):
        k,b=wreg(X,tau,j if X==2 else 2*QORD[w][j>>1]+(j&1))
        if X==2 and j<4: b=xreg(2*j+tau)
        acc=[QA,KA_,VA][X]+4*tau
        return f'v_smfmac_f32_16x16x64_bf16 v[{acc}:{acc+3}], v[{MF+4*j}:{MF+4*j+3}], {k}[{b}:{b+7}], v{vIDX}'
    def moff(j): return R_M+(2*QORD[w][j>>1]+(j&1))*1024
    def gl(b,c):
        return [f'buffer_load_dwordx4 v[{b+4*L}:{b+4*L+3}], v{vL16}, {W}, s{sMa if c<2 else sMa2} offen offset:{(c&1)*2048+L*1024} sc1' for L in range(2)]
    def spin(inc):
        return [f's_add_u32 s{sSPIN}, s{sSPIN}, {inc if stamps else 1}', f's_cmp_gt_u32 s{sSPIN}, {SPIN_MAX}']
    T=vT; C2=PM
    def chk(b):
        return [f'v_max3_u32 v{T}, v{b}, v{b+1}, v{b+2}', f'v_max3_u32 v{C2}, v{b+3}, v{b+4}, v{b+5}',
                f'v_max3_u32 v{T}, v{T}, v{b+6}, v{b+7}', f'v_max_u32 v{T}, v{T}, v{C2}', f'v_cmp_eq_u32 vcc, -1, v{T}']
    a.label(f'rec_redo_{tag}')
    emit(xbase()+x_reads(0,4)+v_reads(w)+zero_acc())
    emit(gl(MF,w))
    a('s_waitcnt vmcnt(0) lgkmcnt(0)')
    a(f's_branch rec_enter_{tag}')
    a.label(f'rec_g0_{tag}')
    a('s_mov_b64 exec, vcc')
    emit(gl(MF,w))
    a('s_mov_b64 exec, -1')
    emit(spin(1))
    a(f's_cbranch_scc0 rec_enter_{tag}')
    a(f's_branch rec_ok0_{tag}')
    a.label(f'rec_lf_{tag}')
    a(f'v_mov_b32 v{PM}, s{sS}')
    a('s_waitcnt vmcnt(8)')
    a('s_mov_b64 exec, 1')
    a(f'buffer_store_dword v{PM}, off, {W}, s{sFLA} sc1')
    a('s_mov_b64 exec, -1')
    if E('FLM',2)==2: a(f's_branch rec_lfx_{tag}')
    a.label(f'rec_kvw_{tag}')
    a(f's_add_u32 s{sT2}, s{sT2}, 1')
    a(f'v_lshrrev_b32 v{PM}, 2, v{vL16}')
    a(f'buffer_load_dword v{PM}, v{PM}, {W}, s{sHA} offen sc1')
    a('s_waitcnt vmcnt(0)')
    a(f'v_cmp_eq_u32 s[{sKVM}:{sKVM+1}], s{sHI}, v{PM}')
    a(f's_cmp_gt_u32 s{sT2}, {1<<22}')
    a(f's_cbranch_scc1 rec_kvok_{tag}')
    a(f's_bitcmp1_b64 s[{sKVM}:{sKVM+1}], s{sU1}')
    a(f's_cbranch_scc0 rec_kvw_{tag}')
    a(f's_branch rec_kvok_{tag}')
    a('.p2align 6')
    a.label(f'rec_enter_{tag}')
    if SOLO: a('s_waitcnt vmcnt(0)')
    for _ in range(E('SPG',1)):
        emit(chk(MF)); a(f's_branch rec_ok0_{tag}' if SOLO else f's_cbranch_vccz rec_ok0_{tag}')
    emit(chk(MF))
    a(f's_cbranch_vccnz rec_g0_{tag}')
    a.label(f'rec_ok0_{tag}')
    emit(stamp())
    seq=[]; ex={}
    def put(i,*ops): ex.setdefault(i,[]).extend(ops)
    def grp(X,c): return [sm(X,tau,j) for j in (2*c,2*c+1) for tau in range(2)]
    seq+=grp(2,0)+grp(0,0)+grp(1,0)
    seq+=grp(0,1)+grp(0,2)+grp(0,3)
    seq+=grp(1,1)+grp(1,2)+grp(1,3)
    seq+=grp(2,1)
    vv=[sm(2,0,4),sm(2,0,5),sm(2,0,6),sm(2,0,7),sm(2,1,4),sm(2,1,5),sm(2,1,6),sm(2,1,7)]
    seq+=vv[0:6]
    SX=QA; SM=KA_+4; KMF=KX; T2=KA_+2
    def sx(mu,u):
        c = '0' if u==0 else f'v[{SX+4*mu}:{SX+4*mu+3}]'
        f=KX+4*(mu*4+u)
        return f'v_mfma_f32_16x16x32_bf16 v[{SX+4*mu}:{SX+4*mu+3}], v[{f}:{f+3}], v[{QFR[u]}:{QFR[u]+3}], {c}'
    seq+=[sx(0,u) for u in range(4)]+[sx(1,u) for u in range(4)]
    seq+=[vv[6]]
    for u in range(4):
        c='0' if u==0 else f'v[{SM}:{SM+3}]'
        seq.append(f'v_mfma_f32_16x16x32_bf16 v[{SM}:{SM+3}], v[{KMF+4*u}:{KMF+4*u+3}], v[{QFR[u]}:{QFR[u]+3}], {c}')
    seq+=[vv[7]]
    mw=[f'ds_write_b128 v{vL16}, v[{MF}:{MF+3}] offset:{moff(0)}', f'ds_write_b128 v{vL16}, v[{MF+4}:{MF+7}] offset:{moff(1)}']
    put(0,mw[0]); put(1,mw[1])
    B1=E('B1',6)
    mr=[f'ds_read_b128 v[{MF+4*j}:{MF+4*j+3}], v{vL16} offset:{moff(j)}' for j in range(2,8)]
    put(B1,'s_waitcnt lgkmcnt(0)','s_barrier')
    put(B1,mr[0]); put(B1+1,*mr[1:3]); put(B1+2,*mr[3:5]); put(B1+3,mr[5])
    put(11,'s_waitcnt lgkmcnt(5)'); put(13,'s_waitcnt lgkmcnt(4)'); put(15,'s_waitcnt lgkmcnt(0)')
    kx=[f'ds_read_b128 v[{KX+4*f}:{KX+4*f+3}], v{vL16} offset:{R_K+f*1024}' for f in range(8)]
    for f in range(4): put(16+f, kx[f])
    put(10, f's_bitcmp1_b64 s[{sKVM}:{sKVM+1}], s{sU1}', f's_cbranch_scc0 rec_kvw_{tag}', f'rec_kvok_{tag}:')
    put(11, f's_mov_b32 m0, {R_V+w*2048}')
    put(12, f'buffer_load_dwordx4 v{vL16}, {W}, s{sVO} offen sc1 lds')
    put(13, f'buffer_load_dwordx4 v{vL16}, {W}, s{sVO} offen offset:1024 sc1 lds')
    R_F=0x7A00+w*256
    put(8, f'v_lshrrev_b32 v{T}, 2, v{vL16}')
    put(14, f's_mov_b32 m0, {R_F}')
    put(15, f'buffer_load_dword v{T}, {W}, s{sHA} offen sc1 lds')
    put(16,*xbase())
    put(19,'s_waitcnt vmcnt(4)')
    xr=x_reads(4,8)
    for i in range(8): put(20+i, xr[i])
    rs=[f'buffer_store_dwordx4 v[{NEG1}:{NEG1+3}], v{vL16}, {W}, s{sPR} offen{sc}',
        f'buffer_store_dwordx4 v[{NEG1}:{NEG1+3}], v{vL16}, {W}, s{sPR} offen offset:1024{sc}',
        f's_mov_b64 exec, s[{sPM}:{sPM+1}]', f'buffer_store_dword v{NEG1}, v{vMST}, {W}, s{sMc} offen{sc}', 's_mov_b64 exec, -1']
    if E('RSA',1):
        put(E('RS0',20)+(w&1), rs[0]); put(E('RS1',32)+(w&1), rs[1]); put(E('RS2',28),*rs[2:])
    put(9, f'buffer_store_dwordx4 v[120:123], v{vL16}, {W}, s{sPUB} offen sc1')
    FLM=E('FLM',2)
    if FLM==0:
        put(17, f'v_mov_b32 v{PM}, s{sS}')
        put(57, 's_waitcnt vmcnt(8)', 's_mov_b64 exec, 1', f'buffer_store_dword v{PM}, off, {W}, s{sFLA} sc1', 's_mov_b64 exec, -1')
    else:
        if w==0:
            put(17, f'v_mov_b32 v{PM}, s{sFV}')
            put(31, f'v_lshrrev_b32 v{T}, 2, v{vL16}')
            put(33, f's_cmp_lt_u32 s{sS}, {E("LF",56)+1}')
            put(34, 's_cselect_b64 exec, 15, 0' if FLM==2 else 's_mov_b64 exec, 15', f'buffer_store_dword v{PM}, v{T}, {W}, s{sFLA} offen sc1', 's_mov_b64 exec, -1')
        if FLM==2:
            put(55, f's_cmp_ge_u32 s{sS}, {E("LF",56)}')
            put(56, f's_cbranch_scc1 rec_lf_{tag}', f'rec_lfx_{tag}:')
            put(57, f's_cmp_eq_u32 s{sS}, 63')
    def pp(acc,d0,d1):
        return [f'v_add_f32 v{acc}, v{acc}, v{acc+1}', f'v_add_f32 v{acc+2}, v{acc+2}, v{acc+3}',
                f'v_add_f32 v{acc+4}, v{acc+4}, v{acc+5}', f'v_add_f32 v{acc+6}, v{acc+6}, v{acc+7}',
                f'v_cvt_pk_bf16_f32 v{d0}, v{acc}, v{acc+4}', f'v_cvt_pk_bf16_f32 v{d1}, v{acc+2}, v{acc+6}']
    q=pp(QA,QA,QA+1)
    for i in range(6): put(24+i,q[i])
    put(30, f'ds_write2_b32 v{vQKW}, v{QA}, v{QA+1} offset0:0 offset1:{QK_RS//4}')
    qf=[f'ds_read_b128 v[{QFR[u]}:{QFR[u]+3}], v{vQR} offset:{u*64}' for u in range(4)]
    put(35,'s_waitcnt lgkmcnt(1)')
    put(37,'s_waitcnt lgkmcnt(0)','s_barrier'); put(38,*qf[0:2]); put(39,*qf[2:4])
    put(40,*kx[4:6]); put(41,*kx[6:8])
    k=pp(KA_,KA_,KA_+1)
    for i in range(6): put(36+i,k[i])
    put(42, f'ds_write2_b32 v{vQKW}, v{KA_}, v{KA_+1} offset0:64 offset1:{QK_RS//4+64}')
    put(45, 's_waitcnt lgkmcnt(5)')
    WA=[24,28,32,36,72,76,48,52]
    z0=[f'v_mov_b64 v[{r}:{r+1}], 0' for r in range(24,40,2)]
    kmf=[f'ds_read_b128 v[{KMF+4*u}:{KMF+4*u+3}], v{vKR} offset:{u*64}' for u in range(4)]
    put(44,z0[0]); put(45,z0[1]); put(46,*z0[2:4]); put(47,*z0[4:6]); put(53,*z0[6:8])
    put(47, f's_mov_b32 m0, {R_K+w*2048}')
    put(48,'s_waitcnt lgkmcnt(0)','s_barrier',kmf[0]); put(49,*kmf[1:4])
    put(50, f'buffer_load_dwordx4 v{vL16}, {W}, s{sKO} offen sc1 lds')
    put(51, f'buffer_load_dwordx4 v{vL16}, {W}, s{sKO} offen offset:1024 sc1 lds')
    put(50, f'v_add_f32 v{VA}, v{VA}, v{VA+1}', f'v_add_f32 v{VA+2}, v{VA+2}, v{VA+3}')
    put(52, f'v_cvt_pk_bf16_f32 v{VM0}, v{VA}, v{VA+2}', f'v_max3_f32 v{T}, v{SX}, v{SX+1}, v{SX+2}')
    put(54, 's_waitcnt lgkmcnt(0)')
    WIN=[104,112,88,96,16,120,40,64]
    def wrd(f):
        b=WIN[f]
        return [f'ds_read_b128 v[{b}:{b+3}], v{vWO} offset:{wo_lds(f+8)}', f'ds_read_b128 v[{b+4}:{b+7}], v{vWO} offset:{wo_lds(f+8)+1024}']
    put(55,*wrd(0)); put(56,*wrd(1))
    put(57, f'v_max3_f32 v{T2}, v{SX+3}, v{SX+4}, v{SX+5}', f'v_max3_f32 v{T}, v{T}, v{SX+6}, v{SX+7}')
    put(58, f'v_max_f32 v{T}, v{T}, v{T2}')
    put(53, f's_cmp_eq_u32 s{sS}, 63')
    put(59,'s_cbranch_scc1 rec_fin',*wrd(2))
    put(58,*wrd(3))
    sta=[int(x) for x in os.environ.get('STA','17,37,58').split(',')]
    for i,m in enumerate(seq):
        a(m)
        ops=ex.get(i,[])
        if ABL:
            ops=[o for o in ops if not any(p in o for p in ABL)]
        if i in sta: emit(stamp())
        emit([o for o in ops if not o.startswith('v_')]); emit([o for o in ops if o.startswith('v_')])
    assert max(ex)<len(seq)
    B=[]
    B+=[f'v_max3_f32 v{T}, v{T}, v{SM}, v{SM+1}', f'v_mov_b32 v{T2}, v{T}']+wrd(4)
    B+=[f'v_permlane16_swap_b32 v{T2}, v{T}', f'v_max_f32 v{T}, v{T2}, v{T}', f'v_mov_b32 v{T2}, v{T}',
        f'v_add_f32 v{VA+4}, v{VA+4}, v{VA+5}', f'v_add_f32 v{VA+6}, v{VA+6}, v{VA+7}',
        f'v_permlane32_swap_b32 v{T2}, v{T}', f'v_max_f32 v{T}, v{T2}, v{T}', f'v_mul_f32 v{T2}, s{sC}, v{T}']
    for r in (SM,SX,SX+2,SX+4,SX+6):
        B.append(f'v_pk_fma_f32 v[{r}:{r+1}], v[{r}:{r+1}], s[{sC}:{sC+1}], v[{T2}:{T2+1}] op_sel_hi:[1,1,0] neg_lo:[0,0,1] neg_hi:[0,0,1]')
    B+=[f'v_exp_f32 v{SM}, v{SM}', f'v_exp_f32 v{SM+1}, v{SM+1}', f'v_cvt_pk_bf16_f32 v{VM1}, v{VA+4}, v{VA+6}', f'v_cvt_pk_bf16_f32 v{PM}, v{SM}, v{SM+1}']
    OA=VA; LA=SM; PX=SX
    exs=[f'v_exp_f32 v{r}, v{r}' for r in range(SX,SX+8)]
    B+=exs[0:2]+[f'v_mfma_f32_16x16x16_bf16 v[{LA}:{LA+3}], v[{ONES}:{ONES+1}], v[{PM}:{PM+1}], 0']
    B+=exs[2:4]+[f'v_mfma_f32_16x16x16_bf16 v[{OA}:{OA+3}], v[{VM0}:{VM0+1}], v[{PM}:{PM+1}], 0']
    B+=exs[4:6]+[f'v_mfma_f32_16x16x16_bf16 v[{OA+4}:{OA+7}], v[{VM1}:{VM1+1}], v[{PM}:{PM+1}], 0']
    B+=exs[6:8]+[f'v_cvt_pk_bf16_f32 v{PX+i}, v{SX+2*i}, v{SX+2*i+1}' for i in range(4)]
    B+=wrd(5)
    B+=[f'v_mfma_f32_16x16x32_bf16 v[{LA}:{LA+3}], v[{ONES}:{ONES+3}], v[{PX}:{PX+3}], v[{LA}:{LA+3}]']
    B+=wrd(6)
    B+=[f'v_mfma_f32_16x16x32_bf16 v[{OA}:{OA+3}], v[{VC}:{VC+3}], v[{PX}:{PX+3}], v[{OA}:{OA+3}]']
    B+=[f'v_mfma_f32_16x16x32_bf16 v[{OA+4}:{OA+7}], v[{VC+4}:{VC+7}], v[{PX}:{PX+3}], v[{OA+4}:{OA+7}]',
        f'v_rcp_f32 v{LA}, v{LA}']
    z1=[f'v_mov_b64 v[{r}:{r+1}], 0' for r in list(range(72,80,2))+list(range(48,56,2))]
    B+=z1[0:7]
    B+=[f'v_cndmask_b32 v{OA+i}, v{OA+i}, v{OA+4+i}, s[{sODD}:{sODD+1}]' for i in range(4)]
    B+=[f'v_pk_mul_f32 v[{OA+i}:{OA+i+1}], v[{OA+i}:{OA+i+1}], v[{LA}:{LA+1}] op_sel_hi:[1,0]' for i in (0,2)]
    B+=[f'v_cvt_pk_bf16_f32 v{OA+4}, v{OA}, v{OA+1}', f'v_cvt_pk_bf16_f32 v{OA+5}, v{OA+2}, v{OA+3}', f'ds_write_b64 v{vOW}, v[{OA+4}:{OA+5}]']
    emit(B)
    if not E('RSA',1): emit(rs[:1]+rs[2:])
    emit(z1[7:8])
    emit(rot_m())
    a('s_waitcnt lgkmcnt(0)')
    a('s_barrier')
    OFR=56
    a(f'ds_read_b128 v[{OFR}:{OFR+3}], v{vL16} offset:{R_O}')
    a(f'ds_read_b128 v[{OFR+4}:{OFR+7}], v{vL16} offset:{R_O+1024}')
    emit(wrd(7))
    if not E('RSA',1): emit(rs[1:2])
    RA=124; RB=24
    vq=[]
    def rl():
        vq.extend(['r','r'])
        return [f'buffer_load_dwordx4 v[{RB+4*L}:{RB+4*L+3}], v{vL16}, {W}, s{sRG2} offen offset:{L*1024} sc1' for L in range(2)]
    def epi(T_):
        r=WA[T_]; d=WA[T_&6]+(T_&1)
        return [f'v_add_f32 v{r}, v{r}, v{r+1}', f'v_add_f32 v{r+2}, v{r+2}, v{r+3}', f'v_cvt_pk_bf16_f32 v{d}, v{r}, v{r+2}']
    def pst(c):
        vq.append('s')
        return f'buffer_store_dwordx2 v[{WA[2*c]}:{WA[2*c]+1}], v{vPST}, {W}, s{sPa if c==0 else sPq+c} offen{sc}'
    pend=[]
    RL=[E('RL0',99),E('RL1',99),99,99][w]
    a(f's_mov_b32 s{sRG2}, s{sRG}')
    a('s_waitcnt lgkmcnt(3)')
    for i in range(16):
        T_,t2=i>>1,i&1
        b = wo_reg(i) if i<8 else WIN[i-8]
        a(f'v_smfmac_f32_16x16x64_bf16 v[{WA[T_]}:{WA[T_]+3}], v[{OFR+4*t2}:{OFR+4*t2+3}], v[{b}:{b+7}], v{vIDX}')
        if i==1: emit(stamp())
        if i==RL: emit(rl())
        if i in (7,11,15): a(pst((i-7)//4))
        if i==0: a('s_waitcnt lgkmcnt(2)')
        if i==12: a('s_waitcnt lgkmcnt(0)')
        if i>=3 and (i&1)==1: pend+=epi((i-3)//2)
        for _ in range(2 if i&1 else 1):
            if pend: a(pend.pop(0))
    emit(pend)
    if RL==16: emit(rl())
    emit(epi(7))
    a(pst(3))
    emit(stamp())
    neg=lambda b: [f'v_mov_b64 v[{r}:{r+1}], -1' for r in range(b,b+8,2)]
    hsv=house_salu(); nh=E('NH',[0,0,6,10][w])
    hk=neg(RB)+zero_acc()+neg(MF)+xbase()+x_reads(0,4)+[f'ds_read2_b32 v[120:121], v{vQKW} offset0:64 offset1:{QK_RS//4+64}', f'v_mov_b32 v122, v{VM0}', f'v_mov_b32 v123, v{VM1}']+hsv[:nh]; hsv=hsv[nh:]
    n=E(f'A{w}',[4,8,20,28][w])
    emit(hk[:n]); emit(rl()); emit(hk[n:])
    a('s_waitcnt vmcnt(6)')
    mm=[f'v_mfma_f32_16x16x32_bf16 v[{RA}:{RA+3}], v[{ONES}:{ONES+3}], v[{RB}:{RB+3}], 0',
        f'v_mfma_f32_16x16x32_bf16 v[{RA}:{RA+3}], v[{ONES}:{ONES+3}], v[{RB+4}:{RB+7}], v[{RA}:{RA+3}]']
    c=chk(RB)
    if SOLO: a('s_waitcnt vmcnt(0)')
    a.label(f'rec_rs_{tag}')
    for _ in range(E('SPR',1)):
        emit(c[:3]); a(mm[0]); emit(c[3:]); a(mm[1]); a(f's_branch rec_go_{tag}' if SOLO else f's_cbranch_vccz rec_go_{tag}')
    emit(c[:3]); a(mm[0]); emit(c[3:]); a(mm[1])
    a(f's_cbranch_vccnz rec_f0_{tag}')
    a.label(f'rec_go_{tag}')
    a(f'v_lshrrev_b32 v{T}, 2, v{vL16}')
    a(f'ds_read_b32 v{PM}, v{T} offset:{R_F}')
    emit(v_reads(w))
    for sh in (4,8):
        for r in (2,3): a(f'v_add_f32 v{RA+r}, v{RA+r}, v{RA+r} row_ror:{sh} row_mask:0xf bank_mask:0xf')
    a(f's_mov_b64 exec, s[{sPM}:{sPM+1}]')
    a(f'v_cvt_pk_bf16_f32 v{RA}, v{RA+2}, v{RA+3}')
    a(f'buffer_store_dword v{RA}, v{vMST}, {W}, s{sMa} offen{sc}')
    a('s_mov_b64 exec, -1')
    emit(stamp())
    emit(hsv)
    a('s_waitcnt lgkmcnt(0)')
    a(f'v_cmp_eq_u32 s[{sKVM}:{sKVM+1}], s{sHI}, v{PM}')
    emit(gl(MF,w))
    emit(stamp())
    if stamps:
        a('s_waitcnt lgkmcnt(0)')
        n=nst[0]
        if SNAP:
            for j in range(3):
                a(f's_cmp_eq_u32 s{sS}, {SNAP+j}')
                for k in range(n): a(f's_cselect_b32 s{sACC+4*j+k}, s{sTS+2*k}, s{sACC+4*j+k}')
            n=0
        for k in range(n):
            prev = f's{sACC+15}' if k==0 else f's{sTS+2*(k-1)}'
            a(f's_sub_u32 s{sU0}, s{sTS+2*k}, {prev}')
            a(f's_add_u32 s{sACC+k}, s{sACC+k}, s{sU0}')
        if n: a(f's_mov_b32 s{sACC+15}, s{sTS+2*(n-1)}')
        a(f's_cmp_eq_u32 s{sS}, 9')
        for k in range(n): a(f's_cselect_b32 s{sACC+k}, 0, s{sACC+k}')
        a(f's_cselect_b32 s{sACC+14}, s{sSPIN}, s{sACC+14}')
    if RT==1 and w==0:
        l=a.newlabel('rs')
        a(f's_and_b32 s8, s{sS}, 7'); a('s_cmp_lg_u32 s8, 0'); a(f's_cbranch_scc1 {l}')
        a(f's_lshr_b32 s8, s{sS}, 3')
        rtstamp(a,8,idx_s=8)
        a.label(l)
    a(f's_branch rec_enter_{tag}')
    a.label(f'rec_f0_{tag}')
    a('s_mov_b64 exec, vcc')
    emit(rl())
    a('s_mov_b64 exec, -1')
    emit(spin(0x10000))
    a(f's_cbranch_scc0 rec_rs_{tag}')
    a(f's_branch rec_go_{tag}')
```

```python
from common import *
from k_main import *
import common
QF_=common.QF
OFLAG=FLAGS+0x10000; X1FLAG=FLAGS+0x20000; HHFLAG=FLAGS+0x30000
D_MODA=96; D_READY=192
sIDX=63; sSP=52
W=srd4(sWS)

def dbg_add(a):
    pass

def wait_mbox(a, level, tag):
    a(f's_cmp_lg_u32 s{sW}, 0')
    a(f's_cbranch_scc1 {tag}_ok')
    a.label(f'{tag}_w')
    a(f'buffer_load_dword v127, off, {W}, s{sMB} sc1')
    a(f's_add_u32 s{sSP}, s{sSP}, 1')
    a('s_waitcnt vmcnt(0)')
    a(f'v_readfirstlane_b32 s{sT0}, v127')
    a(f's_cmp_ge_u32 s{sT0}, {level}')
    a(f's_cbranch_scc1 {tag}_ok')
    a(f's_cmp_gt_u32 s{sSP}, {SPIN_MAX}')
    a(f's_cbranch_scc1 {tag}_ok')
    a('s_sleep 1')
    a(f's_branch {tag}_w')
    a.label(f'{tag}_ok')
    a('s_barrier')

def arrive_notify(a, off, target, level, tag):
    a('v_mov_b32 v127, 1')
    a(f's_mov_b32 s{sT1}, {off}')
    a('s_mov_b64 exec, 1')
    a(f'buffer_atomic_add v127, off, {srd4(sDBG)}, s{sT1} sc0')
    a('s_mov_b64 exec, -1')
    a('s_waitcnt vmcnt(0)')
    a(f'v_readfirstlane_b32 s{sT0}, v127')
    a(f's_cmp_lg_u32 s{sT0}, {target-1}')
    a(f's_cbranch_scc1 {tag}_na')
    a('v_min_u32 v126, 7, v0')
    a('v_lshlrev_b32 v126, 2, v126')
    a('v_add_u32 v125, 144, v126')
    a('v_cmp_eq_u32 vcc, 0, v126')
    a('v_cndmask_b32 v126, v125, v126, vcc')
    a.label(f'{tag}_tk')
    a(f'buffer_load_dword v127, v126, {srd4(sDBG)}, 0 offen sc1')
    a(f's_add_u32 s{sSP}, s{sSP}, 1')
    a(f's_cmp_gt_u32 s{sSP}, {SPIN_MAX}')
    a('s_waitcnt vmcnt(0)')
    a('v_cmp_gt_u32 vcc, 32, v127')
    a(f's_cbranch_scc1 {tag}_tg')
    a(f's_cbranch_vccnz {tag}_tk')
    a.label(f'{tag}_tg')
    a('v_lshlrev_b32 v126, 7, v0')
    a(f'v_mov_b32 v127, {level}')
    for i in range(4):
        a(f's_mov_b32 s{sT1}, {MBOX+i*8192}')
        a(f'buffer_store_dword v127, v126, {W}, s{sT1} offen sc1')
    a.label(f'{tag}_na')

def arrive_dbg(a, off, tag):
    a('s_waitcnt vmcnt(0)')
    a('s_barrier')
    a(f's_cmp_lg_u32 s{sW}, 0')
    a(f's_cbranch_scc1 {tag}_na')
    arrive_notify(a,off,160,2,tag)

def set_flag(a, addr_s, tag, wave=0):
    a(f's_cmp_lg_u32 s{sW}, {wave}')
    a(f's_cbranch_scc1 {tag}_nf')
    a('v_mov_b32 v127, 1')
    a('s_mov_b64 exec, 1')
    a(f'buffer_store_dword v127, off, {W}, s{addr_s} sc1')
    a('s_mov_b64 exec, -1')
    a.label(f'{tag}_nf')

def wait_flags(a, addr_s, want, voff, tag, sleep=int(os.environ.get('SL','1'))):
    a.label(f'{tag}_pw')
    a(f'buffer_load_dword v127, v{voff}, {W}, s{addr_s} offen sc1')
    a(f's_add_u32 s{sSP}, s{sSP}, 1')
    a(f's_cmp_gt_u32 s{sSP}, {SPIN_MAX}')
    a('s_waitcnt vmcnt(0)')
    a(f'v_cmp_gt_u32 vcc, s{want}, v127')
    a(f's_cbranch_scc1 {tag}_pk')
    a(f's_cbranch_vccz {tag}_pk')
    a(f's_sleep {sleep}')
    a(f's_branch {tag}_pw')
    a.label(f'{tag}_pk')

def mod_body(a):
    a(f's_load_dwordx4 s[4:7], s[0:1], {KA["c"]}')
    a(f's_lshl_b32 s{sT0}, s{sW}, 6')
    a(f'v_add_u32 v64, s{sT0}, v0')
    a('v_and_b32 v1, 3, v64')
    a('v_lshrrev_b32 v2, 2, v64')
    a('v_lshlrev_b32 v3, 4, v2')
    a(f's_mov_b32 s{sT0}, 49152')
    a(f'v_mul_lo_u32 v8, v2, s{sT0}')
    a(f's_lshl_b32 s{sT0}, s{sIDX}, 6')
    a('v_lshl_add_u32 v8, v1, 4, v8')
    a(f'v_add_u32 v8, s{sT0}, v8')
    a('s_waitcnt lgkmcnt(0)')
    srd(a,32,4,1024); srd(a,36,6,512*3072*2)
    a('buffer_load_dwordx4 v[4:7], v3, s[32:35], 0 offen')
    for i in range(8):
        a(f's_mov_b32 s{sT0}, {i*6144}')
        a(f'buffer_load_dwordx4 v[{16+4*i}:{19+4*i}], v8, s[36:39], s{sT0} offen')
    a('s_waitcnt vmcnt(8)')
    for i in range(4):
        a(f'v_lshlrev_b32 v{48+2*i}, 16, v{4+i}')
        a(f'v_and_b32 v{49+2*i}, 0xffff0000, v{4+i}')
    for i in range(8): a(f'v_mul_f32 v{56+i}, 0xbfb8aa3b, v{48+i}')
    for i in range(8): a(f'v_exp_f32 v{56+i}, v{56+i}')
    for i in range(8): a(f'v_add_f32 v{56+i}, 1.0, v{56+i}')
    for i in range(8): a(f'v_rcp_f32 v{56+i}, v{56+i}')
    for i in range(8): a(f'v_mul_f32 v{48+i}, v{48+i}, v{56+i}')
    for i in range(4): round_bf16_pair(a,48+2*i,49+2*i,56)
    a('s_waitcnt vmcnt(0)')
    for i in range(8):
        for j in range(4):
            a(f'v_lshlrev_b32 v10, 16, v{16+4*i+j}')
            a(f'v_and_b32 v11, 0xffff0000, v{16+4*i+j}')
            if i==0:
                a(f'v_mul_f32 v{56+2*j}, v48, v10'); a(f'v_mul_f32 v{57+2*j}, v48, v11')
            else:
                a(f'v_fmac_f32 v{56+2*j}, v{48+i}, v10'); a(f'v_fmac_f32 v{57+2*j}, v{48+i}, v11')
    a('v_lshlrev_b32 v9, 5, v64')
    a('ds_write_b128 v9, v[56:59]')
    a('ds_write_b128 v9, v[60:63] offset:16')
    a('s_waitcnt lgkmcnt(0)')
    a('s_barrier')
    a('v_and_b32 v1, 31, v64')
    a('v_lshrrev_b32 v2, 5, v64')
    a('v_lshlrev_b32 v9, 10, v2')
    a('v_lshl_add_u32 v9, v1, 2, v9')
    for i in range(8): a(f'ds_read_b32 v{16+i}, v9 offset:{i*128}')
    a('s_waitcnt lgkmcnt(0)')
    for i in range(1,8): a(f'v_add_f32 v16, v16, v{16+i}')
    a('v_lshlrev_b32 v9, 2, v64')
    a('ds_write_b32 v9, v16 offset:8192')
    a('s_waitcnt lgkmcnt(0)')
    a('s_barrier')
    a('v_lshlrev_b32 v9, 2, v1')
    for i in range(8): a(f'ds_read_b32 v{16+i}, v9 offset:{8192+i*128}')
    a('s_waitcnt lgkmcnt(0)')
    for i in range(1,8): a(f'v_add_f32 v16, v16, v{16+i}')
    round_bf16(a,16,17)
    a(f's_lshr_b32 s{sT0}, s{sIDX}, 4')
    a(f's_cmp_eq_u32 s{sT0}, 1')
    a('s_cbranch_scc1 mod_p1')
    a(f's_cmp_eq_u32 s{sT0}, 4')
    a('s_cbranch_scc0 mod_st')
    a.label('mod_p1')
    a('v_add_f32 v16, 1.0, v16')
    round_bf16(a,16,17)
    a.label('mod_st')
    a(f's_lshl_b32 s{sT0}, s{sIDX}, 7')
    a(f's_add_u32 s{sT0}, s{sT0}, {MOD}')
    a(f's_cmp_lg_u32 s{sW}, 0')
    a('s_cbranch_scc1 mod_ns')
    a(f'buffer_store_dword v16, v9, {W}, s{sT0} offen sc1')
    a(f's_cmp_ge_u32 s{sIDX}, 32')
    a('s_cbranch_scc1 mod_ns')
    a('s_waitcnt vmcnt(0)')
    arrive_notify(a,D_MODA,32,1,'moda')
    a.label('mod_ns')

LX=16; LF=32; LSC=64; LSH=96
LRED=0x27C00
def ln_setup(a):
    a('v_and_b32 v1, 15, v0')
    a('v_lshrrev_b32 v2, 4, v0')
    a('v_lshlrev_b32 v4, 10, v1')
    a('v_lshl_add_u32 v4, v2, 4, v4')
    a(f's_lshl_b32 s{sT0}, s{sW}, 8')
    a(f'v_add_u32 v4, s{sT0}, v4')
    a('v_lshlrev_b32 v5, 5, v2')
    a(f's_lshl_b32 s{sT0}, s{sW}, 9')
    a(f'v_add_u32 v5, s{sT0}, v5')
    a('v_lshlrev_b32 v8, 2, v1')
    a(f'v_add_u32 v8, {LRED}, v8')
    a(f's_lshl_b32 s{sT0}, s{sW}, 6')
    a(f'v_add_u32 v9, s{sT0}, v8')
    a('v_lshlrev_b32 v3, 4, v0')
def ln_load_mod(a, sec_shift, sec_scale):
    a(f's_mov_b32 s{sT0}, {MOD+sec_scale*2048}')
    a(f's_mov_b32 s{sT1}, {MOD+sec_shift*2048}')
    for k in range(4):
        for hf in range(2):
            a(f'buffer_load_dwordx4 v[{LSC+8*k+4*hf}:{LSC+3+8*k+4*hf}], v5, {W}, s{sT0} offen offset:{k*128+hf*16} sc1')
            a(f'buffer_load_dwordx4 v[{LSH+8*k+4*hf}:{LSH+3+8*k+4*hf}], v5, {W}, s{sT1} offen offset:{k*128+hf*16} sc1')
def ln_load_x(a, srdname, soff, sc=''):
    for k in range(4):
        a(f'buffer_load_dwordx4 v[{LX+4*k}:{LX+3+4*k}], v4, {srdname}, s{soff} offen offset:{k*64}{sc}')
def ln_stats(a):
    for j in range(16):
        a(f'v_lshlrev_b32 v{LF+2*j}, 16, v{LX+j}')
        a(f'v_and_b32 v{LF+1+2*j}, 0xffff0000, v{LX+j}')
    a(f'v_add_f32 v6, v{LF}, v{LF+1}'); a(f'v_add_f32 v7, v{LF+2}, v{LF+3}')
    for j in range(4,32,2):
        a(f'v_add_f32 v6, v6, v{LF+j}'); a(f'v_add_f32 v7, v7, v{LF+1+j}')
    a('v_add_f32 v6, v6, v7')
    xlane_reduce(a,'v_add_f32',6,7)
    a('ds_write_b32 v9, v6')
    a('s_waitcnt lgkmcnt(0)'); a('s_barrier')
    for k in range(4): a(f'ds_read_b32 v{10+k}, v8 offset:{k*64}')
    a('s_waitcnt lgkmcnt(0)')
    a('v_add_f32 v10, v10, v11'); a('v_add_f32 v12, v12, v13'); a('v_add_f32 v10, v10, v12')
    a('v_mul_f32 v10, 0x3b000000, v10')
    a(f'v_sub_f32 v11, v{LF}, v10'); a('v_mul_f32 v6, v11, v11')
    a(f'v_sub_f32 v12, v{LF+1}, v10'); a('v_mul_f32 v7, v12, v12')
    for j in range(2,32,2):
        a(f'v_sub_f32 v11, v{LF+j}, v10'); a(f'v_sub_f32 v12, v{LF+1+j}, v10')
        a('v_fmac_f32 v6, v11, v11'); a('v_fmac_f32 v7, v12, v12')
    a('v_add_f32 v6, v6, v7')
    xlane_reduce(a,'v_add_f32',6,7)
    a('ds_write_b32 v9, v6 offset:256')
    a('s_waitcnt lgkmcnt(0)'); a('s_barrier')
    for k in range(4): a(f'ds_read_b32 v{11+k}, v8 offset:{256+k*64}')
    a('s_waitcnt lgkmcnt(0)')
    a('v_add_f32 v11, v11, v12'); a('v_add_f32 v13, v13, v14'); a('v_add_f32 v11, v11, v13')
    a('v_mul_f32 v11, 0x3b000000, v11')
    round_bf16_pair(a,10,11,12)
    a('v_add_f32 v11, 0x3727c5ac, v11')
    round_bf16(a,11,12)
    a('v_sqrt_f32 v11, v11')
    round_bf16(a,11,12)
    a('v_rcp_f32 v11, v11')
def ln_apply(a):
    perm=[0,2,1,3]
    for k in range(4):
        for j in range(4):
            e0=LF+8*k+2*j; e1=e0+1
            a(f'v_sub_f32 v{e0}, v{e0}, v10'); a(f'v_sub_f32 v{e1}, v{e1}, v10')
            round_bf16_pair(a,e0,e1,12)
            a(f'v_mul_f32 v{e0}, v{e0}, v11'); a(f'v_mul_f32 v{e1}, v{e1}, v11')
            round_bf16_pair(a,e0,e1,12)
            a(f'v_mul_f32 v{e0}, v{e0}, v{e0+32}'); a(f'v_mul_f32 v{e1}, v{e1}, v{e1+32}')
            round_bf16_pair(a,e0,e1,12)
            a(f'v_add_f32 v{e0}, v{e0}, v{e0+64}'); a(f'v_add_f32 v{e1}, v{e1}, v{e1+64}')
            a(f'v_cvt_pk_bf16_f32 v{LX+4*k+perm[j]}, v{e0}, v{e1}')
    for k in range(4):
        a(f'v_permlane16_swap_b32 v{LX+4*k}, v{LX+1+4*k}')
        a(f'v_permlane16_swap_b32 v{LX+2+4*k}, v{LX+3+4*k}')

def ln_fast(a):
    for j in range(16):
        a(f'v_lshlrev_b32 v{LF+2*j}, 16, v{LX+j}')
        a(f'v_and_b32 v{LF+1+2*j}, 0xffff0000, v{LX+j}')
    a(f'v_pk_add_f32 v[6:7], v[{LF}:{LF+1}], v[{LF+2}:{LF+3}]')
    a(f'v_pk_add_f32 v[10:11], v[{LF+4}:{LF+5}], v[{LF+6}:{LF+7}]')
    for j in range(8,32,4):
        a(f'v_pk_add_f32 v[6:7], v[6:7], v[{LF+j}:{LF+j+1}]')
        a(f'v_pk_add_f32 v[10:11], v[10:11], v[{LF+j+2}:{LF+j+3}]')
    a('v_pk_add_f32 v[6:7], v[6:7], v[10:11]')
    a('v_add_f32 v6, v6, v7')
    xlane_reduce(a,'v_add_f32',6,7)
    a('v_mul_f32 v6, 0x3c000000, v6')
    a(f'v_pk_add_f32 v[12:13], v[{LF}:{LF+1}], v[6:7] op_sel_hi:[1,0] neg_lo:[0,1] neg_hi:[0,1]')
    a('v_pk_mul_f32 v[10:11], v[12:13], v[12:13]')
    for j in range(2,32,2):
        a(f'v_pk_add_f32 v[12:13], v[{LF+j}:{LF+j+1}], v[6:7] op_sel_hi:[1,0] neg_lo:[0,1] neg_hi:[0,1]')
        a('v_pk_fma_f32 v[10:11], v[12:13], v[12:13], v[10:11]')
    a('v_add_f32 v7, v10, v11')
    xlane_reduce(a,'v_add_f32',7,10)
    a('ds_write2_b32 v9, v6, v7 offset0:0 offset1:64')
    a('s_waitcnt lgkmcnt(0)'); a('s_barrier')
    a(f'ds_read2_b32 v[{LX}:{LX+1}], v8 offset0:0 offset1:16')
    a(f'ds_read2_b32 v[{LX+2}:{LX+3}], v8 offset0:32 offset1:48')
    a(f'ds_read2_b32 v[{LX+4}:{LX+5}], v8 offset0:64 offset1:80')
    a(f'ds_read2_b32 v[{LX+6}:{LX+7}], v8 offset0:96 offset1:112')
    a('s_waitcnt lgkmcnt(0)')
    a(f'v_add_f32 v10, v{LX}, v{LX+1}'); a(f'v_add_f32 v11, v{LX+2}, v{LX+3}'); a('v_add_f32 v10, v10, v11')
    a('v_mul_f32 v10, 0x3e800000, v10')
    a(f'v_add_f32 v11, v{LX+4}, v{LX+5}'); a(f'v_add_f32 v12, v{LX+6}, v{LX+7}'); a('v_add_f32 v11, v11, v12')
    a('v_mul_f32 v11, 0x3c000000, v11')
    for k in range(4):
        a(f'v_sub_f32 v12, v{LX+k}, v10'); a('v_fmac_f32 v11, v12, v12')
    a('v_mul_f32 v11, 0x3e800000, v11')
    round_bf16_pair(a,10,11,12)
    a('v_add_f32 v11, 0x3727c5ac, v11')
    round_bf16(a,11,12)
    a('v_sqrt_f32 v11, v11')
    round_bf16(a,11,12)
    a('v_rcp_f32 v12, v11')
    a('v_mul_f32 v10, v10, v12')
    perm=[0,2,1,3]
    for k in range(4):
        for j in range(4):
            e=LF+8*k+2*j
            a(f'v_pk_fma_f32 v[{e}:{e+1}], v[{e}:{e+1}], v[12:13], v[10:11] op_sel_hi:[1,0,0] neg_lo:[0,0,1] neg_hi:[0,0,1]')
        for j in range(4):
            e=LF+8*k+2*j
            a(f'v_pk_fma_f32 v[{e}:{e+1}], v[{e}:{e+1}], v[{e+32}:{e+33}], v[{e+64}:{e+65}]')
        for j in range(4):
            e=LF+8*k+2*j
            a(f'v_cvt_pk_bf16_f32 v{LX+4*k+perm[j]}, v{e}, v{e+1}')
    for k in range(4):
        a(f'v_permlane16_swap_b32 v{LX+4*k}, v{LX+1+4*k}')
        a(f'v_permlane16_swap_b32 v{LX+2+4*k}, v{LX+3+4*k}')

NWO=4; NUP=4; NDN=4
tB=32; tRES=36; tOUT=40; tCS=64; tU=65; tUS=66; tFA=67; tFB=68; tT2=69
def gen_workers(a):
    a.label('work_start')
    a(f's_mov_b32 s{sSP}, 0')
    a(f's_cmp_lt_u32 s{sROLE}, 96')
    a('s_cbranch_scc1 qkv_start')
    a(f's_sub_u32 s{sIDX}, s{sROLE}, 96')
    rtstamp(a,0)
    a(f's_cmp_ge_u32 s{sIDX}, 128')
    a('s_cbranch_scc1 pre_init')
    a(f's_cmp_ge_u32 s{sIDX}, 96')
    a('s_cbranch_scc1 pre_ln')
    mod_body(a)
    a.label('pre_ln')
    a(f's_load_dwordx2 s[4:5], s[0:1], {KA["x"]}')
    ln_setup(a)
    a('s_waitcnt lgkmcnt(0)')
    srd(a,32,4,2<<20)
    a(f's_lshl_b32 s{sT2}, s{sIDX}, 14')
    ln_load_x(a,'s[32:35]',sT2)
    a('s_waitcnt vmcnt(0)')
    ln_stats(a)
    wait_mbox(a,1,'ln1m')
    ln_load_mod(a,0,1)
    a('s_waitcnt vmcnt(0)')
    ln_apply(a)
    a(f's_lshl_b32 s{sT0}, s{sW}, 12')
    a(f's_add_u32 s{sT2}, s{sT2}, s{sT0}')
    a(f's_add_u32 s{sT2}, s{sT2}, {H1F}')
    for k in range(4):
        a(f'buffer_store_dwordx4 v[{LX+4*k}:{LX+3+4*k}], v3, {W}, s{sT2} offen offset:{k*1024} sc1')
    arrive_dbg(a,D_READY,'ln1a')
    a('s_branch pre_done')
    a.label('pre_init')
    a('v_mov_b64 v[4:5], 0'); a('v_mov_b64 v[6:7], 0')
    a('v_lshlrev_b32 v3, 4, v0')
    a(f's_sub_u32 s{sT0}, s{sIDX}, 128')
    a(f's_lshl_b32 s{sT0}, s{sT0}, 13')
    a(f's_lshl_b32 s{sT1}, s{sW}, 11')
    a(f's_add_u32 s{sT0}, s{sT0}, s{sT1}')
    a(f's_add_u32 s{sT0}, s{sT0}, {FLAGS}')
    a(f'buffer_store_dwordx4 v[4:7], v3, {W}, s{sT0} offen sc1')
    a(f'buffer_store_dwordx4 v[4:7], v3, {W}, s{sT0} offen offset:1024 sc1')
    arrive_dbg(a,D_READY,'inia')
    a.label('pre_done')
    rtstamp(a,1)
    a(f's_cmp_ge_u32 s{sIDX}, 128')
    a('s_cbranch_scc1 dn_start')
    a(f's_bitcmp1_b32 s{sIDX}, 4')
    a('s_cbranch_scc0 wo_start')
    a('s_branch up_start')
    gen_ksplit(a,'wo'); gen_ksplit(a,'dn'); gen_up(a); gen_qkv(a)
    a.label('main_done')
    a('s_endpgm')

def gen_ksplit(a, which):
    L=which
    a.label(f'{L}_start')
    if which=='wo':
        NK=32; NT=2; a_base=OF; a_rt=131072; gate=2; nset=NWO
        a(f's_load_dwordx2 s[4:5], s[0:1], {KA["Wo"]}')
        a(f's_load_dwordx2 s[6:7], s[0:1], {KA["x"]}')
        a(f's_lshr_b32 s{tU}, s{sIDX}, 5')
        a(f's_and_b32 s{tCS}, s{sIDX}, 15')
        a('s_waitcnt lgkmcnt(0)')
        srd(a,tB,4,4<<20); srd(a,tRES,6,2<<20)
        res=srd4(tRES); res_off=0; res_sc=''; out=W; out_off=X1; out_sc=' sc1'
    else:
        NK=14; NT=4; a_base=HH; a_rt=56*1024; gate=5; nset=NDN
        a(f's_load_dwordx2 s[4:5], s[0:1], {KA["wd"]}')
        a(f's_load_dwordx2 s[6:7], s[0:1], {KA["out"]}')
        a(f's_bfe_u32 s{tU}, s{sIDX}, 0x20003')
        a(f's_and_b32 s{tCS}, s{sIDX}, 7')
        a('s_waitcnt lgkmcnt(0)')
        srd(a,tB,4,1792*1024); srd(a,tOUT,6,2<<20)
        res=W; res_off=X1; res_sc=' sc1'; out=srd4(tOUT); out_off=0; out_sc=''
    RB=NT*32
    LPR=RB//16
    lg=LPR.bit_length()-1
    KB=32*RB
    RING=32768//KB
    NI=KB//1024
    a('s_barrier')
    a('v_lshlrev_b32 v2, 4, v0')
    a(f'v_lshrrev_b32 v3, {lg}, v0')
    a('v_lshlrev_b32 v1, 10, v3')
    a(f'v_and_b32 v3, {LPR-1}, v0')
    a('v_lshl_add_u32 v1, v3, 4, v1')
    a(f's_mul_i32 s{sT0}, s{tCS}, {RB}')
    a(f'v_add_u32 v1, s{sT0}, v1')
    a(f's_lshl_b32 s{sLB}, s{sW}, 15')
    a('v_lshrrev_b32 v3, 2, v0')
    a(f'v_mul_u32_u24 v4, {RB}, v3')
    a('v_and_b32 v3, 3, v0')
    a('v_lshl_add_u32 v4, v3, 3, v4')
    a(f'v_add_u32 v4, s{sLB}, v4')
    GS=2; G=NK//GS; tG=72
    for g in range(G):
        a(f's_add_u32 s{sT0}, s{tCS}, {g}')
        if G==16: a(f's_and_b32 s{sT0}, s{sT0}, 15')
        else:
            for _ in range(2):
                a(f's_sub_u32 s{sT1}, s{sT0}, {G}'); a(f's_cmp_ge_u32 s{sT0}, {G}'); a(f's_cselect_b32 s{sT0}, s{sT1}, s{sT0}')
        a(f's_mul_i32 s{sT1}, s{sW}, {NK}')
        a(f's_lshl_b32 s{sT0}, s{sT0}, 1')
        a(f's_add_u32 s{sT0}, s{sT0}, s{sT1}')
        a(f's_lshl_b32 s{tG+g}, s{sT0}, 10')
    def issue(kk):
        a(f's_lshl_b32 s{tT2}, s{tG+kk//GS}, 5')
        for i in range(NI):
            a(f's_add_u32 m0, s{sLB}, {(kk%RING)*KB+i*1024}')
            a(f's_add_u32 s{sT0}, s{tT2}, {((kk%GS)*32+i*(64//LPR))*1024}')
            a(f'buffer_load_dwordx4 v1, {srd4(tB)}, s{sT0} offen lds')
    a('s_waitcnt vmcnt(0)')
    n0=min(RING,NK)
    for kk in range(n0): issue(kk)
    o=NI*n0
    for kk in range(NK):
        a(f's_waitcnt vmcnt({o-NI})'); o-=NI
        for tau in range(NT):
            for i in range(2):
                r=(kk*NT+tau)*4+2*i
                a(f'ds_read_b64_tr_b16 a[{r}:{r+1}], v4 offset:{(kk%RING)*KB+i*16*RB+tau*32}')
        if kk+RING<NK:
            a('s_waitcnt lgkmcnt(0)')
            issue(kk+RING); o+=NI
    wait_mbox(a,2,f'{L}rd')
    a('v_and_b32 v5, 15, v0')
    a('v_lshrrev_b32 v6, 4, v0')
    a('v_lshlrev_b32 v7, 10, v5')
    a('v_lshl_add_u32 v7, v6, 3, v7')
    a(f's_mul_i32 s{sT0}, s{tCS}, {RB}')
    a(f's_and_b32 s{sT1}, s{sW}, {NT-1}')
    a(f's_lshl_b32 s{sT1}, s{sT1}, 5')
    a(f's_add_u32 s{sT0}, s{sT0}, s{sT1}')
    a(f'v_add_u32 v7, s{sT0}, v7')
    a('v_lshlrev_b32 v8, 4, v6')
    a(f's_lshl_b32 s{sT0}, s{sT0}, 1')
    a(f's_add_u32 s{sT0}, s{sT0}, {MOD+gate*2048}')
    a(f'buffer_load_dwordx4 v[12:15], v8, {W}, s{sT0} offen sc1')
    RED=0x20000
    a(f's_mul_i32 s{sT0}, s{sW}, {NT*1024}')
    a(f's_add_u32 s{sT0}, s{sT0}, {RED}')
    a(f'v_add_u32 v9, s{sT0}, v2')
    a(f's_lshl_b32 s{sT0}, s{sT1}, 5')
    a(f's_add_u32 s{sT0}, s{sT0}, {RED}')
    a(f'v_add_u32 v10, s{sT0}, v2')
    if which=='wo':
        a('v_and_b32 v11, 15, v0'); a(f's_lshl_b32 s{sT0}, s{sW}, 4')
    else:
        a('v_min_u32 v11, 13, v0'); a(f's_mul_i32 s{sT0}, s{sW}, 14')
    a(f'v_add_u32 v11, s{sT0}, v11'); a('v_lshlrev_b32 v11, 7, v11')
    a(f's_lshl_b32 s{tFA}, s{tU}, 13'); a(f's_add_u32 s{tFA}, s{tFA}, {OFLAG if which=="wo" else HHFLAG}')
    if which=='wo':
        a(f's_lshl_b32 s{tFB}, s{tU}, 13'); a(f's_lshl_b32 s{sT0}, s{tCS}, 8'); a(f's_add_u32 s{tFB}, s{tFB}, s{sT0}')
        a(f's_lshl_b32 s{sT0}, s{sW}, 7'); a(f's_add_u32 s{tFB}, s{tFB}, s{sT0}'); a(f's_add_u32 s{tFB}, s{tFB}, {X1FLAG}')
    a('s_waitcnt vmcnt(0) lgkmcnt(0)')
    rtstamp(a,2)
    AF=128; ACC=64
    a.label(f'{L}_loop')
    a(f's_add_u32 s{tUS}, s{tU}, 1')
    a(f's_mul_i32 s{sT2}, s{tU}, {a_rt}')
    a(f's_add_u32 s{sT2}, s{sT2}, {a_base}')
    a(f's_lshl_b32 s{tT2}, s{tU}, 14')
    a(f's_add_u32 s{sT1}, s{tT2}, {res_off}')
    wait_flags(a,tFA,tUS,11,L)
    lstamp(a,0)
    for kk in range(NK):
        if kk%GS==0: a(f's_add_u32 s{sT0}, s{sT2}, s{tG+kk//GS}')
        a(f'buffer_load_dwordx4 v[{AF+4*kk}:{AF+4*kk+3}], v2, {W}, s{sT0} offen offset:{(kk%GS)*1024} sc1')
    a(f'buffer_load_dwordx2 v[24:25], v7, {res}, s{sT1} offen{res_sc}')
    for kk in range(NK):
        a(f's_waitcnt vmcnt({NK-kk})')
        for tau in range(NT):
            r=(kk*NT+tau)*4; acc=ACC+4*tau
            c='0' if kk==0 else f'v[{acc}:{acc+3}]'
            a(f'v_mfma_f32_16x16x32_bf16 v[{acc}:{acc+3}], a[{r}:{r+3}], v[{AF+4*kk}:{AF+4*kk+3}], {c}')
    lstamp(a,1)
    for tau in range(NT): a(f'ds_write_b128 v9, v[{ACC+4*tau}:{ACC+4*tau+3}] offset:{tau*1024}')
    a('s_waitcnt lgkmcnt(0)')
    a('s_barrier')
    R=32
    for w in range(4): a(f'ds_read_b128 v[{R+4*w}:{R+4*w+3}], v10 offset:{w*NT*1024}')
    a('s_waitcnt lgkmcnt(0) vmcnt(0)')
    a('s_barrier')
    if NT<4:
        a(f's_cmp_ge_u32 s{sW}, {NT}')
        a(f's_cbranch_scc1 {L}_next')
    for r in range(4):
        a(f'v_add_f32 v{R+r}, v{R+r}, v{R+4+r}')
        a(f'v_add_f32 v{R+8+r}, v{R+8+r}, v{R+12+r}')
    for r in range(4): a(f'v_add_f32 v{R+r}, v{R+r}, v{R+8+r}')
    round_bf16_pair(a,R,R+1,26); round_bf16_pair(a,R+2,R+3,26)
    for r in range(4): a(f'v_mul_f32 v{R+r}, v{R+r}, v{12+r}')
    round_bf16_pair(a,R,R+1,26); round_bf16_pair(a,R+2,R+3,26)
    a('v_lshlrev_b32 v26, 16, v24'); a('v_and_b32 v27, 0xffff0000, v24')
    a('v_lshlrev_b32 v28, 16, v25'); a('v_and_b32 v29, 0xffff0000, v25')
    for r in range(4): a(f'v_add_f32 v{R+r}, v{R+r}, v{26+r}')
    a(f'v_cvt_pk_bf16_f32 v24, v{R}, v{R+1}')
    a(f'v_cvt_pk_bf16_f32 v25, v{R+2}, v{R+3}')
    a(f's_add_u32 s{sT1}, s{tT2}, {out_off}')
    a(f'buffer_store_dwordx2 v[24:25], v7, {out}, s{sT1} offen{out_sc}')
    lstamp(a,2)
    if which=='wo':
        a(f'v_mov_b32 v127, s{tUS}')
        a('s_waitcnt vmcnt(0)')
        a('s_mov_b64 exec, 1')
        a(f'buffer_store_dword v127, off, {W}, s{tFB} sc1')
        a('s_mov_b64 exec, -1')
        lstamp(a,3)
    a.label(f'{L}_next')
    a(f's_add_u32 s{tU}, s{tU}, {nset}')
    a(f's_cmp_lt_u32 s{tU}, 128')
    a(f's_cbranch_scc1 {L}_loop')
    ldump(a,4)
    rtstamp(a,3)
    a('s_branch main_done')

def gen_up(a):
    L='up'
    a.label('up_start')
    a(f's_and_b32 s{tCS}, s{sIDX}, 15'); a(f's_lshr_b32 s{tU}, s{sIDX}, 5')
    a(f's_cmp_lt_u32 s{tCS}, 14'); a('s_cbranch_scc0 main_done')
    a(f's_load_dwordx4 s[4:7], s[0:1], {KA["wg"]}')
    a('s_waitcnt lgkmcnt(0)')
    srd(a,tB,4,512*3584); srd(a,tRES,6,512*3584)
    RS=3584
    a('s_barrier')
    a(f's_lshl_b32 s{sLB}, s{sW}, 15')
    a('v_bfe_u32 v2, v0, 2, 1'); a('v_bfe_u32 v3, v0, 4, 1'); a('v_lshl_add_u32 v2, v3, 1, v2')
    a('v_bfe_u32 v3, v0, 3, 1'); a('v_lshl_add_u32 v2, v3, 2, v2')
    a('v_bfe_u32 v3, v0, 5, 1'); a('v_lshl_add_u32 v2, v3, 3, v2')
    a(f'v_mul_u32_u24 v1, {RS}, v2')
    a('v_lshlrev_b32 v3, 1, v3'); a('v_xor_b32 v3, v3, v0'); a('v_and_b32 v3, 3, v3')
    a('v_lshl_add_u32 v1, v3, 4, v1')
    a(f's_lshl_b32 s{sT0}, s{tCS}, 8'); a(f's_lshl_b32 s{sT1}, s{sW}, 6'); a(f's_add_u32 s{sT0}, s{sT0}, s{sT1}')
    a(f'v_add_u32 v1, s{sT0}, v1')
    a('v_bfe_u32 v2, v0, 5, 1'); a('v_lshlrev_b32 v4, 10, v2')
    a('v_bfe_u32 v2, v0, 3, 1'); a('v_mul_u32_u24 v2, 544, v2'); a('v_add_u32 v4, v4, v2')
    a('v_bfe_u32 v2, v0, 4, 1'); a('v_lshl_add_u32 v4, v2, 7, v4')
    a('v_bfe_u32 v2, v0, 2, 1'); a('v_lshl_add_u32 v4, v2, 6, v4')
    a('v_and_b32 v2, 3, v0'); a('v_lshl_add_u32 v4, v2, 3, v4')
    a(f'v_add_u32 v4, s{sLB}, v4'); a('v_xor_b32 v5, 32, v4')
    def issue(u):
        X,j=u>>3,u&7
        for i in range(4):
            a(f's_add_u32 m0, s{sLB}, {j*4096+i*1024}')
            a(f's_mov_b32 s{sT0}, {(j*64+i*16)*RS}')
            a(f'buffer_load_dwordx4 v1, {srd4([tB,tRES][X])}, s{sT0} offen lds')
    a('s_waitcnt vmcnt(0)')
    for u in range(8): issue(u)
    o=32
    for u in range(16):
        X,j=u>>3,u&7
        a(f's_waitcnt vmcnt({o-4})'); o-=4
        for tau in range(2):
            b=X*128+(tau*8+j)*8
            for hh in range(2):
                for y in range(2):
                    a(f'ds_read_b64_tr_b16 a[{b+4*hh+2*y}:{b+4*hh+2*y+1}], v{4+tau} offset:{j*4096+hh*2048+y*256}')
        a('s_waitcnt lgkmcnt(0)')
        if u+8<16: issue(u+8); o+=4
    wait_mbox(a,2,'uprd')
    ln_setup(a)
    ln_load_mod(a,3,4)
    a('v_and_b32 v15, 7, v0'); a(f's_lshl_b32 s{sT0}, s{sW}, 3'); a(f'v_add_u32 v15, s{sT0}, v15'); a('v_lshlrev_b32 v15, 7, v15')
    a(f's_lshl_b32 s{tFA}, s{tU}, 13'); a(f's_add_u32 s{tFB}, s{tFA}, {HHFLAG}'); a(f's_add_u32 s{tFA}, s{tFA}, {X1FLAG}')
    a(f's_lshl_b32 s{sT0}, s{tCS}, 9'); a(f's_add_u32 s{tFB}, s{tFB}, s{sT0}'); a(f's_lshl_b32 s{sT0}, s{sW}, 7'); a(f's_add_u32 s{tFB}, s{tFB}, s{sT0}')
    a(f's_lshl_b32 s{sT0}, s{sW}, 12'); a(f'v_add_u32 v2, s{sT0}, v3')
    a('s_waitcnt vmcnt(0)')
    a('v_mov_b32 v224, v127')
    rtstamp(a,2)
    AF=128; ACC=192
    a.label('up_loop')
    a(f's_add_u32 s{tUS}, s{tU}, 1')
    a(f's_lshl_b32 s{sT2}, s{tU}, 14'); a(f's_add_u32 s{sT2}, s{sT2}, {X1}')
    wait_flags(a,tFA,tUS,15,L)
    lstamp(a,0)
    ln_load_x(a,W,sT2,' sc1')
    a('v_mov_b32 v127, v224')
    a('s_waitcnt vmcnt(0)')
    lstamp(a,1)
    ln_fast(a)
    lstamp(a,2)
    for k in range(4): a(f'ds_write_b128 v2, v[{LX+4*k}:{LX+3+4*k}] offset:{k*1024}')
    a('s_waitcnt lgkmcnt(0)')
    a('s_barrier')
    for kap in range(12): a(f'ds_read_b128 v[{AF+4*kap}:{AF+4*kap+3}], v3 offset:{kap*1024}')
    for kap in range(16):
        issued=min(16,12+kap)
        a(f's_waitcnt lgkmcnt({issued-kap-1})')
        t,hh=kap>>1,kap&1
        for X in range(2):
            for tau in range(2):
                b=X*128+(tau*8+t)*8+4*hh; acc=ACC+(X*2+tau)*4
                c='0' if kap==0 else f'v[{acc}:{acc+3}]'
                a(f'v_mfma_f32_16x16x32_bf16 v[{acc}:{acc+3}], a[{b}:{b+3}], v[{AF+4*kap}:{AF+4*kap+3}], {c}')
        if kap+12<16: a(f'ds_read_b128 v[{AF+4*(kap+12)}:{AF+4*(kap+12)+3}], v3 offset:{(kap+12)*1024}')
    for r in range(0,16,2): round_bf16_pair(a,ACC+r,ACC+r+1,10)
    for r in range(8): a(f'v_mul_f32 v{ACC+r}, v{ACC+r}, v{ACC+8+r}')
    for r in range(4): a(f'v_cvt_pk_bf16_f32 v{208+r}, v{ACC+2*r}, v{ACC+2*r+1}')
    a(f's_mul_i32 s{sT0}, s{tU}, {56*1024}')
    a(f's_lshl_b32 s{sT1}, s{tCS}, 12'); a(f's_add_u32 s{sT0}, s{sT0}, s{sT1}')
    a(f's_lshl_b32 s{sT1}, s{sW}, 10'); a(f's_add_u32 s{sT0}, s{sT0}, s{sT1}')
    a(f's_add_u32 s{sT0}, s{sT0}, {HH}')
    a(f'buffer_store_dwordx4 v[208:211], v3, {W}, s{sT0} offen sc1')
    lstamp(a,3)
    a(f'v_mov_b32 v127, s{tUS}')
    a('s_barrier')
    a('s_waitcnt vmcnt(0)')
    a('s_mov_b64 exec, 1')
    a(f'buffer_store_dword v127, off, {W}, s{tFB} sc1')
    a('s_mov_b64 exec, -1')
    lstamp(a,4)
    a(f's_add_u32 s{tU}, s{tU}, {NUP}')
    a(f's_cmp_lt_u32 s{tU}, 128')
    a('s_cbranch_scc1 up_loop')
    ldump(a,5)
    rtstamp(a,3)
    a('s_branch main_done')

LEAD=int(os.environ.get('LEAD','4'))
wS=72; wBa=73; wBb=74; wA=75; wO=76; wPF=77; wOFL=78; wKFL=79; wC=80; wMASK=82; wNU=98; wEH=99
def gen_qkv(a):
    a.label('qkv_start')
    a(f's_sub_u32 s{sT0}, s{sROLE}, 32')
    a(f's_lshr_b32 s{sH}, s{sT0}, 1')
    a(f's_and_b32 s{sSLOT}, s{sT0}, 1')
    rtstamp(a,0)
    vL=8; vA=9
    a(f'v_lshlrev_b32 v{vL}, 4, v0')
    a(f's_lshl_b32 s{sLB}, s{sW}, 12')
    a(f's_add_u32 s{sLB}, s{sLB}, {L_WO}')
    a(f's_lshl_b32 s13, s{sH}, 8')
    coop_addrs(a,96,112,[8192],['H'],col_s=13)
    for i in range(2): a(f'v_add_u32 v{116+i}, 0x10000, v{112+i}')
    def issue(u): coop_issue(a,u,96,srd4([sWQ,sWK,sWV][u>>3]),[f's_mov_b32 s{sT0}, {(u&7)<<19}'])
    for u in range(8): issue(u)
    out=32
    for u in range(24):
        a(f's_waitcnt vmcnt({out-4})'); out-=4
        a('s_barrier')
        if u>=1 and u+7<24: issue(u+7); out+=4
        coop_reads(a,u,112,116,lambda tau: wreg(u>>3,tau,u&7))
        a('s_waitcnt lgkmcnt(0)')
    rtstamp(a,1)
    wait_mbox(a,2,'qkrd')
    rtstamp(a,2)
    def dma(seg_s, buf_s):
        a(f's_min_u32 s{sT0}, s{seg_s}, 63')
        a(f's_lshl_b32 s{sT0}, s{sT0}, 15')
        a(f's_lshl_b32 s{sT1}, s{sW}, 13')
        a(f's_add_u32 s{sT0}, s{sT0}, s{sT1}')
        a(f's_add_u32 s{sT0}, s{sT0}, {H1F}')
        a(f's_add_u32 s{sT1}, s{sT1}, s{buf_s}')
        for hf in range(2):
            a(f's_add_u32 m0, s{sT1}, {hf*4096}')
            if hf: a(f's_add_u32 s{sT0}, s{sT0}, 4096')
            for i in range(4):
                a(f'buffer_load_dwordx4 v{vL}, {W}, s{sT0} offen offset:{i*1024} sc1 lds')
    a(f's_mov_b32 s{wS}, s{sSLOT}')
    a(f's_sub_u32 s{wA}, s{sSLOT}, {2*LEAD}')
    a(f's_mov_b32 s{wBa}, 0'); a(f's_mov_b32 s{wBb}, 0x8000')
    dma(wS,wBa)
    a(f's_and_b32 s{wNU}, s{sW}, 1')
    a(f's_lshr_b32 s{wEH}, s{sW}, 1')
    a(f's_mov_b32 s{wC}, 0x3e0293ee')
    a('v_and_b32 v1, 15, v0')
    a('v_lshrrev_b32 v2, 4, v0')
    a('v_lshlrev_b32 v3, 2, v2')
    a('v_sub_u32 v3, v3, v1')
    a(f's_lshl_b32 s{sT0}, s{wNU}, 4')
    a(f'v_subrev_u32 v3, s{sT0}, v3')
    for mu in range(2):
        for r in range(4):
            a(f'v_cmp_ge_i32 vcc, {-(r+16*mu)}, v3')
            a(f's_mov_b64 s[{wMASK+2*(4*mu+r)}:{wMASK+2*(4*mu+r)+1}], vcc')
    vKMo=10; ONES=12; NEG=11
    a('v_lshrrev_b32 v3, 2, v1')
    a(f'v_lshlrev_b32 v{vKMo}, 8, v3')
    a(f'v_lshl_add_u32 v{vKMo}, v2, 6, v{vKMo}')
    a('v_and_b32 v3, 1, v1')
    a(f'v_lshl_add_u32 v{vKMo}, v3, 2, v{vKMo}')
    for i in range(4): a(f'v_mov_b32 v{ONES+i}, 0x3f803f80')
    a(f'v_mov_b32 v{NEG}, 0xf149f2ca')
    a(f's_mov_b32 s{wOFL}, 0')
    ACC=16; HW=64
    LA_=0x10000
    KMr=96; VMr=112; FL=116; wRDY=81; FLO=117
    a(f's_lshl_b32 s{sT0}, s{wNU}, 12')
    a(f's_add_u32 s{sT0}, s{sT0}, {LA_}')
    a(f'v_add_u32 v4, s{sT0}, v{vL}')
    a(f'v_add_u32 v5, {LA_+8192}, v{vL}')
    a(f's_lshl_b32 s{sT0}, s{wEH}, 12')
    a(f's_add_u32 s{sT0}, s{sT0}, {LA_+16384}')
    a(f'v_add_u32 v6, s{sT0}, v{vL}')
    a(f's_lshl_b32 s{wPF+24}, s{sH}, 7')
    a(f's_add_u32 s{wPF+24}, s{wPF+24}, {RECFLAG}')
    wRF=wPF+24
    def km_loads():
        a(f's_lshr_b32 s{sT0}, s{wO}, 1')
        a(f's_add_u32 s{sT0}, s{sT0}, {KM}')
        for u in range(4):
            for d in range(4):
                a(f'buffer_load_dword v{KMr+4*u+d}, v{vKMo}, {W}, s{sT0} offen offset:{u*1024+d*16} sc1')
        a(f's_lshl_b32 s{sT1}, s{wEH}, 11')
        a(f's_add_u32 s{sT0}, s{sT0}, s{sT1}')
        for z in range(2):
            a(f'buffer_load_dwordx2 v[{VMr+2*z}:{VMr+2*z+1}], v{vL}, {W}, s{sT0} offen offset:{z*1024+8} sc1')
    def bflag(addr_s):
        if addr_s==wOFL: a(f'v_mov_b32 v3, s{wOFL}')
        a('s_mov_b64 exec, 1')
        if addr_s==wKFL: a(f'buffer_store_byte v7, off, {W}, s{addr_s} sc1')
        else: a(f'buffer_store_dword v3, off, {W}, s100 sc1')
        a('s_mov_b64 exec, -1')
    a('v_mov_b32 v7, 1')
    a(f'v_and_b32 v{FLO}, 3, v0'); a(f'v_lshlrev_b32 v{FLO}, 2, v{FLO}')
    a(f's_lshl_b32 s100, s{sSLOT}, 14'); a(f's_lshl_b32 s{sT0}, s{wNU}, 13'); a(f's_add_u32 s100, s100, s{sT0}')
    a(f's_lshl_b32 s{sT0}, s{sH}, 8'); a(f's_add_u32 s100, s100, s{sT0}')
    a(f's_lshl_b32 s{sT0}, s{wEH}, 7'); a(f's_add_u32 s100, s100, s{sT0}'); a(f's_add_u32 s100, s100, {OFLAG}')
    a('s_waitcnt vmcnt(0)')
    a.label('qa_loop')
    a('s_barrier')
    a(f's_mov_b32 s{wRDY}, 0')
    a(f's_mov_b32 s{wKFL}, -1')
    a(f's_cmp_ge_i32 s{wA}, 64')
    a('s_cbranch_scc1 qa_last')
    a(f's_max_i32 s{sT2}, s{wA}, 0')
    a(f's_lshl_b32 s{wO}, s{sT2}, 18')
    a(f's_lshl_b32 s{sT1}, s{sH}, 13')
    a(f's_add_u32 s{wO}, s{wO}, s{sT1}')
    a(f's_lshl_b32 s{sT1}, s{sW}, 11')
    a(f's_add_u32 s{sT2}, s{wO}, s{sT1}')
    attd=[]
    for X,base in enumerate((QF_,KF,VF)):
        attd.append([f's_add_u32 m0, s{sT1}, {LA_+X*8192}', f's_add_u32 s{sT0}, s{sT2}, {base}', f'buffer_load_dwordx4 v{vL}, {W}, s{sT0} offen sc1 lds'])
        attd.append([f'buffer_load_dwordx4 v{vL}, {W}, s{sT0} offen offset:1024 sc1 lds'])
    a(f's_cmp_ge_u32 s{wS}, 64')
    a('s_cbranch_scc1 qa_noq')
    a(f'v_add_u32 v{vA}, s{wBa}, v{vL}')
    frs=[(kap,mu) for kap in range(16) for mu in range(2)]
    def rd(i):
        kap,mu=frs[i]; b=HW+4*(i%8)
        return f'ds_read_b128 v[{b}:{b+3}], v{vA} offset:{mu*16384+kap*1024}'
    for i in range(6): a(rd(i))
    a(f's_add_u32 s4, s{wS}, 2')
    a('s_min_u32 s4, s4, 63')
    a('s_lshl_b32 s4, s4, 15')
    a(f's_lshl_b32 s5, s{sW}, 13')
    a('s_add_u32 s4, s4, s5')
    a(f's_add_u32 s4, s4, {H1F}')
    a(f's_add_u32 s5, s5, s{wBb}')
    h1d=[]
    for hf in range(2):
        for i in range(4):
            pre=[f's_add_u32 m0, s5, {hf*4096}']+(['s_add_u32 s4, s4, 4096'] if hf else ['s_nop 0']) if i==0 else []
            h1d.append(pre+[f'buffer_load_dwordx4 v{vL}, {W}, s4 offen offset:{i*1024} sc1 lds'])
    bg=attd+h1d+[[f'buffer_load_dword v{FL}, v{FLO}, {W}, s{wRF} offen sc1']]
    for i,(kap,mu) in enumerate(frs):
        issued=min(6+i,32)
        a(f's_waitcnt lgkmcnt({issued-i-1})')
        hb=HW+4*(i%8); t,hh=kap>>1,kap&1
        for X in range(3):
            for tau in range(2):
                k,b=wreg(X,tau,t); b+=4*hh
                acc=ACC+((X*2+tau)*2+mu)*4
                c='0' if kap==0 else f'v[{acc}:{acc+3}]'
                wf=f'{k}[{b}:{b+3}]'; hf=f'v[{hb}:{hb+3}]'
                if X<2: a(f'v_mfma_f32_16x16x32_bf16 v[{acc}:{acc+3}], {wf}, {hf}, {c}')
                else:   a(f'v_mfma_f32_16x16x32_bf16 v[{acc}:{acc+3}], {hf}, {wf}, {c}')
                if X==0 and tau==1 and 6+i<32: a(rd(6+i))
                if X>=1 and tau==0 and bg:
                    for o in bg.pop(0): a(o)
        if i==10:
            assert not bg
            a(f's_cmp_eq_u32 s{wOFL}, 0')
            a('s_cbranch_scc1 qaof_nf')
            a('s_waitcnt vmcnt(15)')
            bflag(wOFL)
            a(f's_mov_b32 s{wOFL}, 0')
            a.label('qaof_nf')
        if i==20:
            a('s_waitcnt vmcnt(1)')
            a(f's_cmp_lt_i32 s{wA}, 2')
            a('s_cbranch_scc0 qa_fl')
            a('s_waitcnt vmcnt(0)')
            a.label('qa_fl')
            a(f'v_cmp_ge_i32 vcc, s{wA}, v{FL}')
            a('s_cbranch_vccnz qa_nokm')
            a(f's_mov_b32 s{wRDY}, 1')
            km_loads()
            a.label('qa_nokm')
    a(f's_lshl_b32 s{sT0}, s{wS}, 18')
    a(f's_lshl_b32 s{sT1}, s{sH}, 13')
    a(f's_add_u32 s{sT0}, s{sT0}, s{sT1}')
    a(f's_lshl_b32 s{sT1}, s{sW}, 10')
    a(f's_add_u32 s{sT2}, s{sT0}, s{sT1}')
    a(f's_add_u32 s{sT3}, s{sT2}, s{sT1}')
    a('s_barrier')
    for X,base in ((1,KF),(0,QF_)):
        for mu in range(2):
            a0=ACC+((X*2+0)*2+mu)*4; a1=ACC+((X*2+1)*2+mu)*4
            for r in range(4): a(f'v_cvt_pk_bf16_f32 v{a0+r}, v{a0+r}, v{a1+r}')
            a(f's_add_u32 s{sT0}, s{sT2}, {base+mu*4096}')
            a(f'buffer_store_dwordx4 v[{a0}:{a0+3}], v{vL}, {W}, s{sT0} offen'+(' sc1' if (X or int(os.environ.get('QS','0'))) else ''))
    a(f's_add_u32 s{sT0}, s{sT3}, {VF}')
    for tau in range(2):
        a0=ACC+((4+tau)*2+0)*4; a1=ACC+((4+tau)*2+1)*4
        a(f'v_cvt_pk_bf16_f32 v{a0}, v{a0}, v{a0+1}'); a(f'v_cvt_pk_bf16_f32 v{a0+1}, v{a0+2}, v{a0+3}')
        a(f'v_cvt_pk_bf16_f32 v{a0+2}, v{a1}, v{a1+1}'); a(f'v_cvt_pk_bf16_f32 v{a0+3}, v{a1+2}, v{a1+3}')
        a(f'buffer_store_dwordx4 v[{a0}:{a0+3}], v{vL}, {W}, s{sT0} offen offset:{tau*1024} sc1')
    a(f's_lshl_b32 s{wKFL}, s{sH}, 8')
    a(f's_lshl_b32 s{sT1}, s{wS}, 2')
    a(f's_add_u32 s{wKFL}, s{wKFL}, s{sT1}')
    a(f's_add_u32 s{wKFL}, s{wKFL}, s{sW}')
    a(f's_add_u32 s{wKFL}, s{wKFL}, {KVFLAG}')
    a(f's_mov_b32 s{sT0}, s{wBa}'); a(f's_mov_b32 s{wBa}, s{wBb}'); a(f's_mov_b32 s{wBb}, s{sT0}')
    a(f's_add_u32 s{wS}, s{wS}, 2')
    a(f's_cmp_lt_i32 s{wA}, 0')
    a('s_cbranch_scc0 qa_att2')
    a('s_waitcnt vmcnt(0)')
    bflag(wKFL)
    a(f's_add_u32 s{wA}, s{wA}, 2')
    a('s_branch qa_loop')
    a.label('qa_last')
    a('s_waitcnt vmcnt(0)')
    bflag(wOFL)
    a('s_branch qa_end')
    a.label('qa_noq')
    for g in attd:
        for o in g: a(o)
    a('s_waitcnt vmcnt(6)')
    bflag(wOFL)
    a('s_waitcnt vmcnt(1)')
    a('s_barrier')
    a.label('qa_att2')
    Q=64; K=16; V=80; SX=48; SM=56; LA=60; PX=120; PM=124; T=118
    OA=16; VMp=32; OUT=40
    for u in range(4): a(f'ds_read_b128 v[{Q+4*u}:{Q+4*u+3}], v4 offset:{u*1024}')
    for f in range(8): a(f'ds_read_b128 v[{K+4*f}:{K+4*f+3}], v5 offset:{f*1024}')
    a('s_waitcnt lgkmcnt(4)')
    for t in range(4): a(f'ds_read_b128 v[{V+4*t}:{V+4*t+3}], v6 offset:{t*1024}')
    for mu in range(2):
        if mu: a('s_waitcnt lgkmcnt(4)')
        for u in range(4):
            c='0' if u==0 else f'v[{SX+4*mu}:{SX+4*mu+3}]'
            a(f'v_mfma_f32_16x16x32_bf16 v[{SX+4*mu}:{SX+4*mu+3}], v[{K+16*mu+4*u}:{K+16*mu+4*u+3}], v[{Q+4*u}:{Q+4*u+3}], {c}')
    for i in range(8):
        a(f'v_cndmask_b32 v{SX+i}, v{NEG}, v{SX+i}, s[{wMASK+2*i}:{wMASK+2*i+1}]')
    a(f'v_max3_f32 v{T}, v{SX}, v{SX+1}, v{SX+2}')
    a(f'v_max3_f32 v{T+1}, v{SX+3}, v{SX+4}, v{SX+5}')
    a(f'v_max3_f32 v{T}, v{T}, v{SX+6}, v{SX+7}')
    a(f'v_max_f32 v{T}, v{T}, v{T+1}')
    a(f's_cmp_eq_u32 s{wRDY}, 1')
    a('s_cbranch_scc1 att_rdy')
    a.label('att_poll')
    a(f'buffer_load_dword v{FL}, v{FLO}, {W}, s{wRF} offen sc1')
    a(f's_add_u32 s{sSP}, s{sSP}, 1')
    a('s_waitcnt vmcnt(0)')
    a(f'v_cmp_ge_i32 vcc, s{wA}, v{FL}')
    a('s_cbranch_vccz att_go')
    a(f's_cmp_lt_i32 s{wKFL}, 0')
    a('s_cbranch_scc1 att_nk')
    bflag(wKFL)
    a(f's_mov_b32 s{wKFL}, -1')
    a.label('att_nk')
    a(f's_cmp_gt_u32 s{sSP}, {SPIN_MAX}')
    a('s_cbranch_scc1 att_go')
    a('s_sleep 1')
    a('s_branch att_poll')
    a.label('att_go')
    lstamp(a,0)
    km_loads()
    a('s_waitcnt vmcnt(0)')
    a('s_branch att_have')
    a.label('att_rdy')
    a('s_waitcnt vmcnt(6)')
    a.label('att_have')
    lstamp(a,1)
    for u in range(4):
        c='0' if u==0 else f'v[{SM}:{SM+3}]'
        a(f'v_mfma_f32_16x16x32_bf16 v[{SM}:{SM+3}], v[{KMr+4*u}:{KMr+4*u+3}], v[{Q+4*u}:{Q+4*u+3}], {c}')
    for t in range(4):
        a(f'v_mov_b32 v{VMp+2*t}, v{VMr+t}')
        a(f'v_mov_b32 v{VMp+2*t+1}, 0')
    a(f'v_max3_f32 v{T}, v{T}, v{SM}, v{SM+1}')
    xlane_reduce(a,'v_max_f32',T,T+1)
    a(f'v_mul_f32 v{T}, s{wC}, v{T}')
    scs=[SX+i for i in range(8)]+[SM,SM+1]
    for r in scs: a(f'v_fma_f32 v{r}, v{r}, s{wC}, -v{T}')
    for r in scs: a(f'v_exp_f32 v{r}, v{r}')
    for i in range(4): a(f'v_cvt_pk_bf16_f32 v{PX+i}, v{SX+2*i}, v{SX+2*i+1}')
    a(f'v_cvt_pk_bf16_f32 v{PM}, v{SM}, v{SM+1}')
    a(f'v_mov_b32 v{PM+1}, 0')
    a('s_waitcnt lgkmcnt(0)')
    a(f'v_mfma_f32_16x16x32_bf16 v[{LA}:{LA+3}], v[{ONES}:{ONES+3}], v[{PX}:{PX+3}], 0')
    for t in range(4):
        a(f'v_mfma_f32_16x16x32_bf16 v[{OA+4*t}:{OA+4*t+3}], v[{V+4*t}:{V+4*t+3}], v[{PX}:{PX+3}], 0')
    a(f'v_mfma_f32_16x16x16_bf16 v[{LA}:{LA+3}], v[{ONES}:{ONES+1}], v[{PM}:{PM+1}], v[{LA}:{LA+3}]')
    for t in range(4):
        a(f'v_mfma_f32_16x16x16_bf16 v[{OA+4*t}:{OA+4*t+3}], v[{VMp+2*t}:{VMp+2*t+1}], v[{PM}:{PM+1}], v[{OA+4*t}:{OA+4*t+3}]')
    a(f's_lshl_b32 s{sT0}, s{wA}, 18')
    a(f's_lshl_b32 s{sT1}, s{wNU}, 17')
    a(f's_add_u32 s{sT0}, s{sT0}, s{sT1}')
    a(f's_lshl_b32 s{sT1}, s{sH}, 12')
    a(f's_add_u32 s{sT0}, s{sT0}, s{sT1}')
    a(f's_lshl_b32 s{sT1}, s{wEH}, 11')
    a(f's_add_u32 s{sT0}, s{sT0}, s{sT1}')
    a(f's_add_u32 s{sT0}, s{sT0}, {OF}')
    a(f'v_rcp_f32 v{LA}, v{LA}')
    for i in range(16): a(f'v_mul_f32 v{OA+i}, v{OA+i}, v{LA}')
    for i in range(8): a(f'v_cvt_pk_bf16_f32 v{OUT+i}, v{OA+2*i}, v{OA+2*i+1}')
    for z in range(2):
        a(f'buffer_store_dwordx4 v[{OUT+4*z}:{OUT+4*z+3}], v{vL}, {W}, s{sT0} offen offset:{z*1024} sc1')
    lstamp(a,2)
    a(f's_cmp_lt_i32 s{wKFL}, 0')
    a('s_cbranch_scc1 att_nk2')
    a('s_waitcnt vmcnt(2)')
    bflag(wKFL)
    a.label('att_nk2')
    a(f's_lshl_b32 s{wOFL}, s{wA}, 1')
    a(f's_add_u32 s{wOFL}, s{wOFL}, s{wNU}')
    a(f's_add_u32 s{wOFL}, s{wOFL}, 1')
    a(f's_add_u32 s{wA}, s{wA}, 2')
    a('s_branch qa_loop')
    a.label('qa_end')
    lstamp(a,3)
    ldump(a,4)
    rtstamp(a,3)
    a('s_branch main_done')
```

```python
from asmlib import *

NAME='adaLN_cond__memory_aug_recurrent_mem_tr__glu_gated_bilinear__prompt'
KA=dict(x=0,mem0=8,Wq=16,Wk=24,Wv=32,Wo=40,seg=48,Bx=56,wg=64,wu=72,wd=80,c=88,wmod=96,out=104,dbg=112,ws=120)
WS_BYTES=268435456
FLAGS=0x700000; KVFLAG=FLAGS; RECFLAG=FLAGS+0x2000
MOD=0x10000
MRING=0x20000
PRING=0x40000
H1F=0x100000
X1=0x300000
H2F=0x500000
HH=0x800000
QF=0x1000000
KF=0x2000000
VF=0x3000000
OF=0x4000000
KM=0x5100000
VM=0x5800000

def srd(a, d, ptr, nbytes):
    a(f's_mov_b32 s{d}, s{ptr}')
    a(f's_and_b32 s{d+1}, s{ptr+1}, 0xffff')
    a(f's_mov_b32 s{d+2}, {nbytes}')
    a(f's_mov_b32 s{d+3}, 0x00020000')

def kernel_head(a, label):
    a('.p2align 8')
    a(f'.globl {label}')
    a(f'.type {label},@function')
    a.label(label)

def kernel_desc(label, vgpr, sgpr, accum):
    return f'''.p2align 6
.amdhsa_kernel {label}
  .amdhsa_next_free_vgpr {vgpr}
  .amdhsa_next_free_sgpr {sgpr}
  .amdhsa_accum_offset {accum}
  .amdhsa_group_segment_fixed_size 0
  .amdhsa_kernarg_size 128
  .amdhsa_user_sgpr_count 2
  .amdhsa_user_sgpr_kernarg_segment_ptr 1
  .amdhsa_system_sgpr_workgroup_id_x 1
  .amdhsa_float_denorm_mode_32 3
.end_amdhsa_kernel
'''

def round_bf16(a, r, tmp):
    a(f'v_cvt_pk_bf16_f32 v{tmp}, v{r}, v{r}')
    a(f'v_lshlrev_b32 v{r}, 16, v{tmp}')

def round_bf16_pair(a, r0, r1, tmp):
    a(f'v_cvt_pk_bf16_f32 v{tmp}, v{r0}, v{r1}')
    a(f'v_lshlrev_b32 v{r0}, 16, v{tmp}')
    a(f'v_and_b32 v{r1}, 0xffff0000, v{tmp}')

def xlane_reduce(a, op, r, t):
    a(f'v_mov_b32 v{t}, v{r}')
    a(f'v_permlane16_swap_b32 v{t}, v{r}')
    a(f'{op} v{r}, v{t}, v{r}')
    a(f'v_mov_b32 v{t}, v{r}')
    a(f'v_permlane32_swap_b32 v{t}, v{r}')
    a(f'{op} v{r}, v{t}, v{r}')

import os as _os
RT=int(_os.environ.get('RT','0'))
def rtstamp(a, idx, role_s=53, wave_s=54, ws=24, vt=127, idx_s=None):
    if not RT: return
    if RT==4:
        l=a.newlabel('rt')
        a(f's_cmp_lg_u32 s{wave_s}, 0'); a(f's_cbranch_scc1 {l}')
        a('s_memrealtime s[4:5]')
        a(f's_cmp_lt_u32 s{role_s}, 32'); a(f's_cselect_b32 s6, {16+idx*4}, {40+idx*4}')
        a('s_waitcnt lgkmcnt(0)')
        a(f'v_mov_b32 v{vt}, s4')
        a('s_mov_b64 exec, 1')
        a(f'buffer_atomic_umax v{vt}, off, s[28:31], s6')
        a('s_mov_b64 exec, -1')
        a('s_waitcnt vmcnt(0)')
        a.label(l)
        return
    l=a.newlabel('rt')
    a(f's_cmp_lg_u32 s{wave_s}, 0')
    a(f's_cbranch_scc1 {l}')
    a('s_memrealtime s[4:5]')
    a(f's_lshl_b32 s6, s{role_s}, 8')
    a(f's_add_u32 s6, s6, {0x6200000+idx*4}')
    if idx_s is not None:
        a(f's_lshl_b32 s7, s{idx_s}, 2'); a('s_add_u32 s6, s6, s7')
    a('s_waitcnt lgkmcnt(0)')
    a(f'v_mov_b32 v{vt}, s4')
    a('s_mov_b64 exec, 1')
    a(f'buffer_store_dword v{vt}, off, s[{ws}:{ws+3}], s6')
    a('s_mov_b64 exec, -1')
    a('s_waitcnt vmcnt(0)')
    a.label(l)

def lstamp(a, k):
    if RT==3: a(f's_memrealtime s[{14+2*k}:{15+2*k}]')
def ldump(a, n, role_s=53, wave_s=54, ws=24):
    if RT!=3: return
    l=a.newlabel('ld')
    a('s_waitcnt lgkmcnt(0)')
    a('s_mov_b64 exec, 1')
    a(f's_lshl_b32 s7, s{wave_s}, 5')
    for k in range(n):
        a(f's_lshl_b32 s6, s{role_s}, 8'); a(f's_add_u32 s6, s6, {0x6200000+(8+k)*4}'); a('s_add_u32 s6, s6, s7')
        a(f'v_mov_b32 v126, s{14+2*k}')
        a(f'buffer_store_dword v126, off, s[{ws}:{ws+3}], s6')
    a('s_mov_b64 exec, -1')
    a.label(l)
```

```python
from common import *
from k_main import *
import os
E=lambda k,d: int(os.environ.get(k,str(d)))

R_K=0x0
R_V=0x2000
R_M=0x4000
R_QK=0x6000
R_O=0x7200
vT=0; vIDX=1; vL16=2; vQKW=3; vQR=4; vKR=5; vOW=6; vWO=7; vPST=8; vMST=9; NEG1=10; PM=14
MF=16; QA=48; KA_=56; VA=64; VC=72; ONES=80; VM0=84; VM1=86; KX=88
QFR=[16,20,120,124]
sS=72; sMa=73; sMb=74; sMc=75; sPa=76; sPb=77; sPc=78; sMa2=79; sKVM=80; sODD=82; sSPIN=84; sKB=85; sC=86
sU0=88; sU1=89; sKO=90; sVO=91; sFV=93; sHW=94; sRO=95
sPUB=96; sPR=97; sRG=98; sRG2=99; sHA=92; sHI=70; sFLA=100; sH13=101; sPUB0=63; sPq=64
sPM=68
sTS=4; sACC=32
STSEL=[x for x in os.environ.get('STSEL','').split(',') if x]
SOLO=E('SOLO',0)
SNAP=E('SNAP',0)
ABL=[x for x in os.environ.get('ABL','').split(',') if x]
HINT=0x3000
def wo_reg(f):
    j,tau=f>>1,f&1
    return wreg(2,tau,j)[1]

def delay(a,cyc):
    n=cyc//4
    while n>0:
        c=min(n,16); a(f's_nop {c-1}'); n-=c

def wo_lds(f):
    c,tile,t2=f>>2,(f>>1)&1,f&1
    return ((c-2)*2+t2)*16384+tile*2048

def gen_rec(a, stamps=False):
    global SPIN_MAX
    if stamps: SPIN_MAX=1<<30
    W=srd4(sWS)
    a.label('rec_start')
    a(f's_mov_b32 s{sH}, s{sROLE}')
    rtstamp(a,0)
    D1,D2,A0,A2,H0,H2=96,100,112,114,116,118
    a(f's_lshl_b32 s{sLB}, s{sW}, 12')
    a(f's_add_u32 s{sLB}, s{sLB}, {L_WO}')
    a(f's_lshl_b32 s13, s{sH}, 8')
    a(f's_lshl_b32 s12, s{sH}, 17')
    coop_addrs(a,D1,A0,[8192,1024],[],col_s=13)
    q=[]
    def issue(u):
        X,j=u>>3,u&7
        if X<3: coop_issue(a,u,D1,srd4([sWQ,sWK,sWV][X]),[f's_mov_b32 s{sT0}, {j<<19}'])
        else: coop_issue(a,u,D2,srd4(sWO),[f's_add_u32 s{sT0}, s12, {(j&1)*65536+(j>>1)*256}'])
        q.extend([('u',u)]*4)
    def wait_for(tag):
        idx=max(i for i,t in enumerate(q) if t==tag)
        a(f's_waitcnt vmcnt({len(q)-1-idx})')
        del q[:idx+1]
    def vm(text,tag):
        a(text); q.append(tag)
    for u in range(8): issue(u)
    coop_addrs(a,D1,A0,[],['H','O'])
    for i in range(4): a(f'v_add_u32 v{H0+i}, 0x10000, v{A0+i}')
    a(f'v_lshlrev_b32 v{vL16}, 4, v0')
    a(f'v_add_u32 v{vWO}, s{sLB}, v{vL16}')
    a(f'v_add_u32 v{vWO}, 0x10000, v{vWO}')
    for r in range(NEG1,NEG1+4): a(f'v_mov_b32 v{r}, -1')
    a('v_and_b32 v19, 1, v0')
    a(f'v_mov_b32 v{vIDX}, 0x4444')
    a('v_mov_b32 v16, 0xeeee')
    a('v_cmp_eq_u32 vcc, 1, v19')
    a(f'v_cndmask_b32 v{vIDX}, v{vIDX}, v16, vcc')
    a(f's_mov_b32 s{sODD}, 0xaaaaaaaa'); a(f's_mov_b32 s{sODD+1}, 0xaaaaaaaa')
    a(f's_mov_b32 s{sPM}, 0x000f000f'); a(f's_mov_b32 s{sPM+1}, 0x000f000f')
    a('v_and_b32 v16, 15, v0')
    a('v_lshrrev_b32 v17, 4, v0')
    a(f'v_mul_u32_u24 v{vQKW}, {2*QK_RS}, v17')
    a(f'v_lshl_add_u32 v{vQKW}, v16, 2, v{vQKW}')
    a(f's_lshl_b32 s{sT1}, s{sW}, 6')
    a(f's_add_u32 s{sT1}, s{sT1}, {R_QK}')
    a(f'v_add_u32 v{vQKW}, s{sT1}, v{vQKW}')
    a('v_lshrrev_b32 v18, 1, v16')
    a(f'v_mul_u32_u24 v{vQR}, {QK_RS}, v18')
    a(f'v_lshl_add_u32 v{vQR}, v17, 4, v{vQR}')
    a(f'v_add_u32 v{vQR}, {R_QK}, v{vQR}')
    a('v_lshrrev_b32 v18, 2, v16')
    a('v_lshlrev_b32 v18, 1, v18')
    a('v_add_u32 v18, v18, v19')
    a(f'v_mul_u32_u24 v{vKR}, {QK_RS}, v18')
    a(f'v_lshl_add_u32 v{vKR}, v17, 4, v{vKR}')
    a(f'v_add_u32 v{vKR}, {R_QK+256}, v{vKR}')
    a('v_lshrrev_b32 v18, 1, v17')
    a(f'v_lshlrev_b32 v{vOW}, 8, v18')
    a('v_lshrrev_b32 v18, 1, v16')
    a(f'v_lshl_add_u32 v{vOW}, v18, 5, v{vOW}')
    a('v_and_b32 v18, 1, v17')
    a(f'v_lshl_add_u32 v{vOW}, v18, 4, v{vOW}')
    a(f'v_lshl_add_u32 v{vOW}, v19, 3, v{vOW}')
    a(f's_lshl_b32 s{sT1}, s{sW}, 9')
    a(f's_add_u32 s{sT1}, s{sT1}, {R_O}')
    a(f'v_add_u32 v{vOW}, s{sT1}, v{vOW}')
    a('v_lshrrev_b32 v18, 3, v0')
    a(f'v_lshlrev_b32 v{vPST}, 11, v18')
    a('v_and_b32 v18, 7, v0')
    a(f'v_lshl_add_u32 v{vPST}, v18, 3, v{vPST}')
    a(f's_lshl_b32 s{sT1}, s{sW}, 14')
    a(f's_lshl_b32 s{sT2}, s{sH}, 6')
    a(f's_add_u32 s{sT1}, s{sT1}, s{sT2}')
    a(f'v_add_u32 v{vPST}, s{sT1}, v{vPST}')
    a('v_lshrrev_b32 v18, 1, v17')
    a(f'v_lshlrev_b32 v{vMST}, 5, v18'); a('v_lshlrev_b32 v24, 10, v18')
    a('v_and_b32 v18, 3, v0')
    a(f'v_lshl_add_u32 v{vMST}, v18, 2, v{vMST}'); a('v_lshl_add_u32 v24, v18, 2, v24')
    a('v_and_b32 v18, 1, v17')
    a(f'v_lshl_add_u32 v{vMST}, v18, 8, v{vMST}'); a('v_lshl_add_u32 v24, v18, 5, v24')
    a(f's_lshr_b32 s{sT1}, s{sH}, 3'); a(f's_lshl_b32 s{sT3}, s{sT1}, 6'); a(f's_lshl_b32 s{sT1}, s{sT1}, 9')
    a(f's_and_b32 s{sT2}, s{sH}, 1'); a(f's_lshl_b32 s{sT2}, s{sT2}, 4')
    a(f's_add_u32 s{sT1}, s{sT1}, s{sT2}'); a(f's_add_u32 s{sT3}, s{sT3}, s{sT2}')
    a(f's_bfe_u32 s{sT2}, s{sH}, 0x20001'); a(f's_lshl_b32 s{sT0}, s{sT2}, 11'); a(f's_lshl_b32 s{sT2}, s{sT2}, 6')
    a(f's_add_u32 s{sT1}, s{sT1}, s{sT2}'); a(f's_add_u32 s{sT3}, s{sT3}, s{sT0}')
    a(f's_lshl_b32 s{sT2}, s{sW}, 11'); a(f's_add_u32 s{sT1}, s{sT1}, s{sT2}')
    a(f's_lshl_b32 s{sT2}, s{sW}, 8'); a(f's_add_u32 s{sT3}, s{sT3}, s{sT2}')
    a(f'v_add_u32 v{vMST}, s{sT1}, v{vMST}')
    vm(f'buffer_load_dword v106, v24, {srd4(sM0)}, s{sT3} offen','m0')
    a('v_mov_b32 v24, 0x3f80'); a('v_mov_b32 v25, 0x3f800000'); a('v_mov_b32 v26, 0x3f803f80')
    a('v_and_b32 v18, 3, v16')
    for d in range(4):
        lo=4*(d&1)+2+(d>>1)
        a(f'v_cmp_eq_u32 vcc, {lo}, v16')
        a(f'v_cndmask_b32 v{ONES+d}, 0, v24, vcc')
        a(f'v_cmp_eq_u32 vcc, {lo+8}, v16')
        a(f'v_cndmask_b32 v{ONES+d}, v{ONES+d}, v25, vcc')
        a('v_cmp_eq_u32 vcc, 0, v18')
        a(f'v_cndmask_b32 v{ONES+d}, v{ONES+d}, v26, vcc')
    for r in (VM0,VM0+1,VM1,VM1+1,PM+1): a(f'v_mov_b32 v{r}, 0')
    a(f's_mov_b32 s{sC}, 0x3e0293ee'); a(f's_mov_b32 s{sC+1}, 0x3e0293ee')
    a(f's_mov_b32 s{sS}, 0')
    a(f's_mov_b32 s{sMa}, {MRING}'); a(f's_mov_b32 s{sMb}, {MRING+8192}'); a(f's_mov_b32 s{sMc}, {MRING+16384}')
    a(f's_mov_b32 s{sPa}, {PRING}'); a(f's_mov_b32 s{sPb}, {PRING+0x40000}'); a(f's_mov_b32 s{sPc}, {PRING+0x80000}')
    a(f's_mov_b32 s{sSPIN}, 0')
    a(f's_lshl_b32 s{sH13}, s{sH}, 13')
    a(f's_lshl_b32 s{sT1}, s{sW}, 11')
    a(f's_add_u32 s{sHW}, s{sH13}, s{sT1}')
    a(f's_add_u32 s{sKO}, s{sHW}, {KF}')
    a(f's_add_u32 s{sVO}, s{sHW}, {VF}')
    a(f's_lshl_b32 s{sRO}, s{sW}, 16')
    a(f's_lshl_b32 s{sT2}, s{sH}, 11')
    a(f's_add_u32 s{sRO}, s{sRO}, s{sT2}')
    a(f's_lshl_b32 s{sFLA}, s{sH}, 7')
    a(f's_add_u32 s{sFLA}, s{sFLA}, {RECFLAG}')
    a(f's_lshl_b32 s{sT2}, s{sW}, 2'); a(f's_add_u32 s{sFLA}, s{sFLA}, s{sT2}')
    a(f's_lshr_b32 s{sPUB}, s{sHW}, 1')
    a(f's_add_u32 s{sPUB}, s{sPUB}, {KM-(1<<17)}')
    a(f's_mov_b32 s{sFV}, 0')
    a(f's_mov_b32 s{sKB}, 0')
    a(f's_mov_b32 s{sHI}, 0x01010101')
    a(f's_lshl_b32 s{sHA}, s{sH}, 8'); a(f's_add_u32 s{sHA}, s{sHA}, {KVFLAG}')
    for sl in range(3):
        a(f's_add_u32 s{sT1}, s{sHW}, {PRING+sl*0x40000}')
        vm(f'buffer_store_dwordx4 v[{NEG1}:{NEG1+3}], v{vL16}, {W}, s{sT1} offen sc1','i')
        vm(f'buffer_store_dwordx4 v[{NEG1}:{NEG1+3}], v{vL16}, {W}, s{sT1} offen offset:1024 sc1','i')
    vm(f'buffer_store_dword v{NEG1}, v{vMST}, {W}, s{sMb} offen sc1','i')
    vm(f'buffer_store_dword v{NEG1}, v{vMST}, {W}, s{sMc} offen sc1','i')
    a(f'v_lshrrev_b32 v107, 2, v{vL16}')
    def kvdma(f):
        a(f's_lshl_b32 s{sT1}, s{sW}, 11')
        a(f's_add_u32 m0, s{sT1}, {R_K}')
        f(f'buffer_load_dwordx4 v{vL16}, {W}, s{sKO} offen sc1 lds')
        f(f'buffer_load_dwordx4 v{vL16}, {W}, s{sKO} offen offset:1024 sc1 lds')
        a(f's_add_u32 m0, s{sT1}, {R_V}')
        f(f'buffer_load_dwordx4 v{vL16}, {W}, s{sVO} offen sc1 lds')
        f(f'buffer_load_dwordx4 v{vL16}, {W}, s{sVO} offen offset:1024 sc1 lds')
    def poll1(f):
        a(f's_mov_b32 s{sT1}, 192'); f(f'buffer_load_dword v108, off, {srd4(sDBG)}, s{sT1} sc1')
        a(f's_mov_b32 s{sT1}, 64'); f(f'buffer_load_dword v109, off, {srd4(sDBG)}, s{sT1} sc1')
    def poll2(f):
        f(f'buffer_load_dword v110, v107, {W}, s{sHA} offen sc1')
    TMPX=16; TMPW=88
    for u in range(32):
        X,j=u>>3,u&7
        wait_for(('u',u))
        a('s_barrier')
        if u>=1 and u+7<32: issue(u+7)
        if u>=29:
            for tau,b in enumerate((88,120)):
                for hh in range(2): a(f'ds_write_b128 v{vWO}, v[{b+4*hh}:{b+4*hh+3}] offset:{(u-29)*16384+tau*2048+hh*1024}')
            a('s_waitcnt lgkmcnt(0)')
        if u==28:
            for l in xbase(): a(l)
            for x in range(8):
                for hh in range(2): a(f'ds_write_b128 v{vT}, v[{TMPX+8*x+4*hh}:{TMPX+8*x+4*hh+3}] offset:{(x>>1)*16384+(x&1)*2048+hh*1024}')
                if x==3: a('s_waitcnt lgkmcnt(0)')
        if X<2: coop_reads(a,u,A0,H0,lambda tau: wreg(X,tau,j))
        elif X==2:
            done=a.newlabel('wv')
            for w in range(4):
                nx=a.newlabel('wv')
                if w<3:
                    a(f's_cmp_lg_u32 s{sW}, {w}'); a(f's_cbranch_scc1 {nx}')
                sj=2*QORD[w].index(j>>1)+(j&1)
                coop_reads(a,u,A0,H0,lambda tau: ('v',TMPX+8*(2*sj+tau)) if sj<4 else wreg(2,tau,sj))
                if w<3:
                    a(f's_branch {done}'); a.label(nx)
            a.label(done)
        elif u<28: coop_reads(a,u,A2,H2,lambda tau: ('v',wo_reg(((j>>1)*2+tau)*2+(j&1))))
        else: coop_reads(a,u,A2,H2,lambda tau: ('v',(88,120)[tau]))
        a('s_waitcnt lgkmcnt(0)')
        if u==8:
            vm(f'buffer_store_dword v106, v{vMST}, {W}, s{sMa} offen sc1','i')
        if u==17:
            a(f's_cmp_eq_u32 s{sXCC}, 0')
            a(f's_cselect_b32 s{sT0}, 1, 0x10001')
            a(f'v_mov_b32 v106, s{sT0}')
            a(f's_cmp_eq_u32 s{sW}, 0')
            a('s_cselect_b32 exec_lo, 1, 0')
            a('s_mov_b32 exec_hi, 0')
            a(f's_mov_b32 s{sT1}, 64')
            a(f'buffer_atomic_add v106, off, {srd4(sDBG)}, s{sT1}')
            a('s_mov_b64 exec, -1')
        if u==E('PU',27): poll1(lambda t: vm(t,'p'))
    a('s_barrier')
    for tau,b in enumerate((88,120)):
        for hh in range(2): a(f'ds_write_b128 v{vWO}, v[{b+4*hh}:{b+4*hh+3}] offset:{3*16384+tau*2048+hh*1024}')
    rtstamp(a,1)
    a.label('rec_chk')
    a('s_waitcnt vmcnt(0)')
    a(f'v_readfirstlane_b32 s{sT2}, v108')
    a(f'v_readfirstlane_b32 s{sT0}, v109')
    a(f's_add_u32 s{sSPIN}, s{sSPIN}, 1')
    a(f's_cmp_gt_u32 s{sSPIN}, {SPIN_MAX}')
    a('s_cbranch_scc1 rec_chk2')
    a(f's_cmp_lt_u32 s{sT2}, 160')
    a('s_cbranch_scc1 rec_again')
    a(f's_and_b32 s{sT2}, s{sT0}, 0xffff')
    a(f's_cmp_ge_u32 s{sT2}, 32')
    a('s_cbranch_scc1 rec_chk2')
    a.label('rec_again')
    a('s_sleep 8')
    poll1(a)
    a('s_branch rec_chk')
    a.label('rec_chk2')
    poll2(a)
    a(f's_add_u32 s{sSPIN}, s{sSPIN}, 1')
    a('s_waitcnt vmcnt(0)')
    a(f'v_cmp_eq_u32 s[{sKVM}:{sKVM+1}], s{sHI}, v110')
    a(f's_cmp_gt_u32 s{sSPIN}, {SPIN_MAX}')
    a('s_cbranch_scc1 rec_go')
    a(f's_bitcmp1_b64 s[{sKVM}:{sKVM+1}], 0')
    a('s_cbranch_scc0 rec_chk2')
    a.label('rec_go')
    kvdma(a)
    rtstamp(a,3)
    a('s_waitcnt lgkmcnt(0)')
    for t in house_salu(first=True): a(t)
    a(f's_cmp_eq_u32 s{sT0}, 32')
    a('s_cbranch_scc0 rec_slow')
    for w in range(4):
        a(f's_cmp_eq_u32 s{sW}, {w}')
        a(f's_cbranch_scc1 rec_redo_f{w}')
    a.label('rec_slow')
    for w in range(3):
        a(f's_cmp_eq_u32 s{sW}, {w}')
        a(f's_cbranch_scc1 rec_redo_s{w}')
    a('s_branch rec_redo_s3')
    for fast in (True,False):
        for w in range(4):
            gen_loop(a, fast, w, stamps)
    a.label('rec_fin')
    a(f'v_mov_b32 v{KA_+2}, v{VM0}')
    a(f'v_add_f32 v{VA+4}, v{VA+4}, v{VA+5}'); a(f'v_add_f32 v{VA+6}, v{VA+6}, v{VA+7}')
    a(f'v_cvt_pk_bf16_f32 v{KA_+3}, v{VA+4}, v{VA+6}')
    a(f's_add_u32 s{sU0}, s{sPUB}, {1<<17}')
    a(f'buffer_store_dwordx4 v[{KA_}:{KA_+3}], v{vL16}, {W}, s{sU0} offen sc1')
    if stamps:
        a('s_waitcnt lgkmcnt(0)')
        a(f's_sub_u32 s{sACC+14}, s{sSPIN}, s{sACC+14}')
        for k in range(16): a(f'v_writelane_b32 v126, s{sACC+k}, {k}')
        a(f's_lshl_b32 s{sU0}, s{sH}, 8')
        a(f's_lshl_b32 s{sU1}, s{sW}, 6')
        a(f's_add_u32 s{sU0}, s{sU0}, s{sU1}')
        a(f's_add_u32 s{sU0}, s{sU0}, 0x6000000')
        a(f'v_lshrrev_b32 v127, 2, v{vL16}')
        a('s_mov_b64 exec, 0xffff')
        a(f'buffer_store_dword v126, v127, {W}, s{sU0} offen')
        a('s_mov_b64 exec, -1')
    a('s_waitcnt vmcnt(0)')
    a(f'v_mov_b32 v124, 64')
    a('s_mov_b64 exec, 1')
    a(f'buffer_store_dword v124, off, {W}, s{sFLA} sc1')
    a('s_mov_b64 exec, -1')
    rtstamp(a,4)
    if E('WB',0):
        a(f's_cmp_lg_u32 s{sH}, 0')
        a('s_cbranch_scc1 main_done')
        a('s_waitcnt vmcnt(0)')
        a('buffer_wbl2 sc1')
    a('s_branch main_done')

def xreg(x): return [88,96,104,112,120,16,104,112][x]
def xbase(): return [f'v_add_u32 v{vT}, 0xffff0000, v{vWO}']
def x_reads(lo,hi):
    r=[]
    for x in range(lo,hi):
        b=xreg(x)
        r+=[f'ds_read_b128 v[{b}:{b+3}], v{vT} offset:{(x>>1)*16384+(x&1)*2048}', f'ds_read_b128 v[{b+4}:{b+7}], v{vT} offset:{(x>>1)*16384+(x&1)*2048+1024}']
    return r
def zero_acc():
    return [f'v_mov_b64 v[{r}:{r+1}], 0' for r in range(VA+6,QA-2,-2)]
def v_reads(w):
    return [f'ds_read_b128 v[{VC+4*t}:{VC+4*t+3}], v{vL16} offset:{R_V+w*2048+t*1024}' for t in range(2)]
def rot_m():
    return [f's_mov_b32 s{sU0}, s{sMa}', f's_mov_b32 s{sMa}, s{sMb}', f's_mov_b32 s{sMb}, s{sMc}', f's_mov_b32 s{sMc}, s{sU0}', f's_add_u32 s{sMa2}, s{sMa}, 4096']
def house_salu(first=False):
    r=[]
    if not first:
        r+=[f's_mov_b32 s{sU0}, s{sPa}', f's_mov_b32 s{sPa}, s{sPb}', f's_mov_b32 s{sPb}, s{sPc}', f's_mov_b32 s{sPc}, s{sU0}',
            f's_add_u32 s{sPUB}, s{sPUB}, {1<<17}', f's_mov_b32 s{sFV}, s{sS}',
            f's_add_u32 s{sS}, s{sS}, 1']
    if first: r+=[f's_add_u32 s{sMa2}, s{sMa}, 4096']
    r+=[
        f's_add_u32 s{sU1}, s{sS}, 1', f's_min_u32 s{sU1}, s{sU1}, 63',
        f's_lshl_b32 s{sU0}, s{sU1}, 18', f's_add_u32 s{sU0}, s{sU0}, s{sHW}',
        f's_add_u32 s{sKO}, s{sU0}, {KF}', f's_add_u32 s{sVO}, s{sU0}, {VF}',
        f's_add_u32 s{sPR}, s{sPc}, s{sRO}', f's_add_u32 s{sRG}, s{sPa}, s{sRO}']
    r+=[f's_add_u32 s{sPq+c}, s{sPa}, {c*65536}' for c in range(1,4)]
    return r

def gen_loop(a, fast, w, stamps):
    tag=('f' if fast else 's')+str(w)
    sc='' if fast else ' sc1'
    W=srd4(sWS)
    nst=[0]; nall=[0]
    def stamp():
        nall[0]+=1
        if stamps and (not STSEL or str(nall[0]-1) in STSEL):
            k=nst[0]; nst[0]+=1
            return [f'{"s_memrealtime" if SNAP else "s_memtime"} s[{sTS+2*k}:{sTS+2*k+1}]']
        return []
    def emit(lst):
        for t in lst: a(t)
    def sm(X,tau,j):
        k,b=wreg(X,tau,j if X==2 else 2*QORD[w][j>>1]+(j&1))
        if X==2 and j<4: b=xreg(2*j+tau)
        acc=[QA,KA_,VA][X]+4*tau
        return f'v_smfmac_f32_16x16x64_bf16 v[{acc}:{acc+3}], v[{MF+4*j}:{MF+4*j+3}], {k}[{b}:{b+7}], v{vIDX}'
    def moff(j): return R_M+(2*QORD[w][j>>1]+(j&1))*1024
    def gl(b,c):
        return [f'buffer_load_dwordx4 v[{b+4*L}:{b+4*L+3}], v{vL16}, {W}, s{sMa if c<2 else sMa2} offen offset:{(c&1)*2048+L*1024} sc1' for L in range(2)]
    def spin(inc):
        return [f's_add_u32 s{sSPIN}, s{sSPIN}, {inc if stamps else 1}', f's_cmp_gt_u32 s{sSPIN}, {SPIN_MAX}']
    T=vT; C2=PM
    def chk(b):
        return [f'v_max3_u32 v{T}, v{b}, v{b+1}, v{b+2}', f'v_max3_u32 v{C2}, v{b+3}, v{b+4}, v{b+5}',
                f'v_max3_u32 v{T}, v{T}, v{b+6}, v{b+7}', f'v_max_u32 v{T}, v{T}, v{C2}', f'v_cmp_eq_u32 vcc, -1, v{T}']
    a.label(f'rec_redo_{tag}')
    emit(gl(MF,w))
    emit(xbase()+x_reads(0,4)+zero_acc())
    a('s_waitcnt vmcnt(0)')
    emit(v_reads(w))
    a('s_waitcnt lgkmcnt(0)')
    a(f's_branch rec_enter_{tag}')
    a.label(f'rec_g0_{tag}')
    a('s_mov_b64 exec, vcc')
    emit(gl(MF,w))
    a('s_mov_b64 exec, -1')
    emit(spin(1))
    a(f's_cbranch_scc0 rec_enter_{tag}')
    a(f's_branch rec_ok0_{tag}')
    a.label(f'rec_lf_{tag}')
    a(f'v_mov_b32 v{PM}, s{sS}')
    a('s_waitcnt vmcnt(8)')
    a('s_mov_b64 exec, 1')
    a(f'buffer_store_dword v{PM}, off, {W}, s{sFLA} sc1')
    a('s_mov_b64 exec, -1')
    if E('FLM',2)==2: a(f's_branch rec_lfx_{tag}')
    a.label(f'rec_kvw_{tag}')
    a(f's_add_u32 s{sT2}, s{sT2}, 1')
    a(f'v_lshrrev_b32 v{PM}, 2, v{vL16}')
    a(f'buffer_load_dword v{PM}, v{PM}, {W}, s{sHA} offen sc1')
    a('s_waitcnt vmcnt(0)')
    a(f'v_cmp_eq_u32 s[{sKVM}:{sKVM+1}], s{sHI}, v{PM}')
    a(f's_cmp_gt_u32 s{sT2}, {1<<22}')
    a(f's_cbranch_scc1 rec_kvok_{tag}')
    a(f's_bitcmp1_b64 s[{sKVM}:{sKVM+1}], s{sU1}')
    a(f's_cbranch_scc0 rec_kvw_{tag}')
    a(f's_branch rec_kvok_{tag}')
    a('.p2align 6')
    a.label(f'rec_enter_{tag}')
    if SOLO: a('s_waitcnt vmcnt(0)')
    for _ in range(E('SPG',1)):
        emit(chk(MF)); a(f's_branch rec_ok0_{tag}' if SOLO else f's_cbranch_vccz rec_ok0_{tag}')
    emit(chk(MF))
    a(f's_cbranch_vccnz rec_g0_{tag}')
    a.label(f'rec_ok0_{tag}')
    emit(stamp())
    seq=[]; ex={}
    def put(i,*ops): ex.setdefault(i,[]).extend(ops)
    def grp(X,c): return [sm(X,tau,j) for j in (2*c,2*c+1) for tau in range(2)]
    seq+=grp(2,0)+grp(0,0)+grp(1,0)
    seq+=grp(0,1)+grp(0,2)+grp(0,3)
    seq+=grp(1,1)+grp(1,2)+grp(1,3)
    seq+=grp(2,1)
    vv=[sm(2,0,4),sm(2,0,5),sm(2,0,6),sm(2,0,7),sm(2,1,4),sm(2,1,5),sm(2,1,6),sm(2,1,7)]
    seq+=vv[0:6]
    SX=QA; SM=KA_+4; KMF=KX; T2=KA_+2
    def sx(mu,u):
        c = '0' if u==0 else f'v[{SX+4*mu}:{SX+4*mu+3}]'
        f=KX+4*(mu*4+u)
        return f'v_mfma_f32_16x16x32_bf16 v[{SX+4*mu}:{SX+4*mu+3}], v[{f}:{f+3}], v[{QFR[u]}:{QFR[u]+3}], {c}'
    seq+=[sx(0,u) for u in range(4)]+[sx(1,u) for u in range(4)]
    seq+=[vv[6]]
    for u in range(4):
        c='0' if u==0 else f'v[{SM}:{SM+3}]'
        seq.append(f'v_mfma_f32_16x16x32_bf16 v[{SM}:{SM+3}], v[{KMF+4*u}:{KMF+4*u+3}], v[{QFR[u]}:{QFR[u]+3}], {c}')
    seq+=[vv[7]]
    mw=[f'ds_write_b128 v{vL16}, v[{MF}:{MF+3}] offset:{moff(0)}', f'ds_write_b128 v{vL16}, v[{MF+4}:{MF+7}] offset:{moff(1)}']
    put(0,mw[0]); put(1,mw[1])
    B1=E('B1',6)
    mr=[f'ds_read_b128 v[{MF+4*j}:{MF+4*j+3}], v{vL16} offset:{moff(j)}' for j in range(2,8)]
    put(B1,'s_waitcnt lgkmcnt(0)','s_barrier')
    put(B1,mr[0]); put(B1+1,*mr[1:3]); put(B1+2,*mr[3:5]); put(B1+3,mr[5])
    put(11,'s_waitcnt lgkmcnt(5)'); put(13,'s_waitcnt lgkmcnt(4)'); put(15,'s_waitcnt lgkmcnt(0)')
    kx=[f'ds_read_b128 v[{KX+4*f}:{KX+4*f+3}], v{vL16} offset:{R_K+f*1024}' for f in range(8)]
    for f in range(4): put(16+f, kx[f])
    put(10, f's_bitcmp1_b64 s[{sKVM}:{sKVM+1}], s{sU1}', f's_cbranch_scc0 rec_kvw_{tag}', f'rec_kvok_{tag}:')
    put(11, f's_mov_b32 m0, {R_V+w*2048}')
    put(12, f'buffer_load_dwordx4 v{vL16}, {W}, s{sVO} offen sc1 lds')
    put(13, f'buffer_load_dwordx4 v{vL16}, {W}, s{sVO} offen offset:1024 sc1 lds')
    R_F=0x7A00+w*256
    put(8, f'v_lshrrev_b32 v{T}, 2, v{vL16}')
    put(14, f's_mov_b32 m0, {R_F}')
    put(15, f'buffer_load_dword v{T}, {W}, s{sHA} offen sc1 lds')
    put(16,*xbase())
    put(19,'s_waitcnt vmcnt(4)')
    xr=x_reads(4,8)
    for i in range(8): put(20+i, xr[i])
    rs=[f'buffer_store_dwordx4 v[{NEG1}:{NEG1+3}], v{vL16}, {W}, s{sPR} offen{sc}',
        f'buffer_store_dwordx4 v[{NEG1}:{NEG1+3}], v{vL16}, {W}, s{sPR} offen offset:1024{sc}',
        f's_mov_b64 exec, s[{sPM}:{sPM+1}]', f'buffer_store_dword v{NEG1}, v{vMST}, {W}, s{sMc} offen{sc}', 's_mov_b64 exec, -1']
    if E('RSA',1):
        put(E('RS0',20)+(w&1), rs[0]); put(E('RS1',32)+(w&1), rs[1]); put(E('RS2',28),*rs[2:])
    put(9, f'buffer_store_dwordx4 v[120:123], v{vL16}, {W}, s{sPUB} offen sc1')
    FLM=E('FLM',2)
    if FLM==0:
        put(17, f'v_mov_b32 v{PM}, s{sS}')
        put(57, 's_waitcnt vmcnt(8)', 's_mov_b64 exec, 1', f'buffer_store_dword v{PM}, off, {W}, s{sFLA} sc1', 's_mov_b64 exec, -1')
    else:
        if w==0:
            put(17, f'v_mov_b32 v{PM}, s{sFV}')
            put(31, f'v_lshrrev_b32 v{T}, 2, v{vL16}')
            put(33, f's_cmp_lt_u32 s{sS}, {E("LF",56)+1}')
            put(34, 's_cselect_b64 exec, 15, 0' if FLM==2 else 's_mov_b64 exec, 15', f'buffer_store_dword v{PM}, v{T}, {W}, s{sFLA} offen sc1', 's_mov_b64 exec, -1')
        if FLM==2:
            put(55, f's_cmp_ge_u32 s{sS}, {E("LF",56)}')
            put(56, f's_cbranch_scc1 rec_lf_{tag}', f'rec_lfx_{tag}:')
            put(57, f's_cmp_eq_u32 s{sS}, 63')
    def pp(acc,d0,d1):
        return [f'v_add_f32 v{acc}, v{acc}, v{acc+1}', f'v_add_f32 v{acc+2}, v{acc+2}, v{acc+3}',
                f'v_add_f32 v{acc+4}, v{acc+4}, v{acc+5}', f'v_add_f32 v{acc+6}, v{acc+6}, v{acc+7}',
                f'v_cvt_pk_bf16_f32 v{d0}, v{acc}, v{acc+4}', f'v_cvt_pk_bf16_f32 v{d1}, v{acc+2}, v{acc+6}']
    q=pp(QA,QA,QA+1)
    for i in range(6): put(24+i,q[i])
    put(30, f'ds_write2_b32 v{vQKW}, v{QA}, v{QA+1} offset0:0 offset1:{QK_RS//4}')
    qf=[f'ds_read_b128 v[{QFR[u]}:{QFR[u]+3}], v{vQR} offset:{u*64}' for u in range(4)]
    put(35,'s_waitcnt lgkmcnt(1)')
    put(37,'s_waitcnt lgkmcnt(0)','s_barrier'); put(38,*qf[0:2]); put(39,*qf[2:4])
    put(40,*kx[4:6]); put(41,*kx[6:8])
    k=pp(KA_,KA_,KA_+1)
    for i in range(6): put(36+i,k[i])
    put(42, f'ds_write2_b32 v{vQKW}, v{KA_}, v{KA_+1} offset0:64 offset1:{QK_RS//4+64}')
    put(45, 's_waitcnt lgkmcnt(5)')
    WA=[24,28,32,36,72,76,48,52]
    z0=[f'v_mov_b64 v[{r}:{r+1}], 0' for r in range(24,40,2)]
    kmf=[f'ds_read_b128 v[{KMF+4*u}:{KMF+4*u+3}], v{vKR} offset:{u*64}' for u in range(4)]
    put(44,z0[0]); put(45,z0[1]); put(46,*z0[2:4]); put(47,*z0[4:6]); put(53,*z0[6:8])
    put(47, f's_mov_b32 m0, {R_K+w*2048}')
    put(48,'s_waitcnt lgkmcnt(0)','s_barrier',kmf[0]); put(49,*kmf[1:4])
    put(50, f'buffer_load_dwordx4 v{vL16}, {W}, s{sKO} offen sc1 lds')
    put(51, f'buffer_load_dwordx4 v{vL16}, {W}, s{sKO} offen offset:1024 sc1 lds')
    put(50, f'v_add_f32 v{VA}, v{VA}, v{VA+1}', f'v_add_f32 v{VA+2}, v{VA+2}, v{VA+3}')
    put(52, f'v_cvt_pk_bf16_f32 v{VM0}, v{VA}, v{VA+2}', f'v_max3_f32 v{T}, v{SX}, v{SX+1}, v{SX+2}')
    put(54, 's_waitcnt lgkmcnt(0)')
    WIN=[104,112,88,96,16,120,40,64]
    def wrd(f):
        b=WIN[f]
        return [f'ds_read_b128 v[{b}:{b+3}], v{vWO} offset:{wo_lds(f+8)}', f'ds_read_b128 v[{b+4}:{b+7}], v{vWO} offset:{wo_lds(f+8)+1024}']
    put(55,*wrd(0)); put(56,*wrd(1))
    put(57, f'v_max3_f32 v{T2}, v{SX+3}, v{SX+4}, v{SX+5}', f'v_max3_f32 v{T}, v{T}, v{SX+6}, v{SX+7}')
    put(58, f'v_max_f32 v{T}, v{T}, v{T2}')
    put(53, f's_cmp_eq_u32 s{sS}, 63')
    put(59,'s_cbranch_scc1 rec_fin',*wrd(2))
    put(58,*wrd(3))
    sta=[int(x) for x in os.environ.get('STA','17,37,58').split(',')]
    for i,m in enumerate(seq):
        a(m)
        ops=ex.get(i,[])
        if ABL:
            ops=[o for o in ops if not any(p in o for p in ABL)]
        if i in sta: emit(stamp())
        emit([o for o in ops if not o.startswith('v_')]); emit([o for o in ops if o.startswith('v_')])
    assert max(ex)<len(seq)
    B=[]
    B+=[f'v_max3_f32 v{T}, v{T}, v{SM}, v{SM+1}', f'v_mov_b32 v{T2}, v{T}']+wrd(4)
    B+=[f'v_permlane16_swap_b32 v{T2}, v{T}', f'v_max_f32 v{T}, v{T2}, v{T}', f'v_mov_b32 v{T2}, v{T}',
        f'v_add_f32 v{VA+4}, v{VA+4}, v{VA+5}', f'v_add_f32 v{VA+6}, v{VA+6}, v{VA+7}',
        f'v_permlane32_swap_b32 v{T2}, v{T}', f'v_max_f32 v{T}, v{T2}, v{T}', f'v_mul_f32 v{T2}, s{sC}, v{T}']
    for r in (SM,SX,SX+2,SX+4,SX+6):
        B.append(f'v_pk_fma_f32 v[{r}:{r+1}], v[{r}:{r+1}], s[{sC}:{sC+1}], v[{T2}:{T2+1}] op_sel_hi:[1,1,0] neg_lo:[0,0,1] neg_hi:[0,0,1]')
    B+=[f'v_exp_f32 v{SM}, v{SM}', f'v_exp_f32 v{SM+1}, v{SM+1}', f'v_cvt_pk_bf16_f32 v{VM1}, v{VA+4}, v{VA+6}', f'v_cvt_pk_bf16_f32 v{PM}, v{SM}, v{SM+1}']
    OA=VA; LA=SM; PX=SX
    exs=[f'v_exp_f32 v{r}, v{r}' for r in range(SX,SX+8)]
    B+=exs[0:2]+[f'v_mfma_f32_16x16x16_bf16 v[{LA}:{LA+3}], v[{ONES}:{ONES+1}], v[{PM}:{PM+1}], 0']
    B+=exs[2:4]+[f'v_mfma_f32_16x16x16_bf16 v[{OA}:{OA+3}], v[{VM0}:{VM0+1}], v[{PM}:{PM+1}], 0']
    B+=exs[4:6]+[f'v_mfma_f32_16x16x16_bf16 v[{OA+4}:{OA+7}], v[{VM1}:{VM1+1}], v[{PM}:{PM+1}], 0']
    B+=exs[6:8]+[f'v_cvt_pk_bf16_f32 v{PX+i}, v{SX+2*i}, v{SX+2*i+1}' for i in range(4)]
    B+=wrd(5)
    B+=[f'v_mfma_f32_16x16x32_bf16 v[{LA}:{LA+3}], v[{ONES}:{ONES+3}], v[{PX}:{PX+3}], v[{LA}:{LA+3}]']
    B+=wrd(6)
    B+=[f'v_mfma_f32_16x16x32_bf16 v[{OA}:{OA+3}], v[{VC}:{VC+3}], v[{PX}:{PX+3}], v[{OA}:{OA+3}]']
    B+=[f'v_mfma_f32_16x16x32_bf16 v[{OA+4}:{OA+7}], v[{VC+4}:{VC+7}], v[{PX}:{PX+3}], v[{OA+4}:{OA+7}]',
        f'v_rcp_f32 v{LA}, v{LA}']
    z1=[f'v_mov_b64 v[{r}:{r+1}], 0' for r in list(range(72,80,2))+list(range(48,56,2))]
    B+=z1[0:7]
    B+=[f'v_cndmask_b32 v{OA+i}, v{OA+i}, v{OA+4+i}, s[{sODD}:{sODD+1}]' for i in range(4)]
    B+=[f'v_pk_mul_f32 v[{OA+i}:{OA+i+1}], v[{OA+i}:{OA+i+1}], v[{LA}:{LA+1}] op_sel_hi:[1,0]' for i in (0,2)]
    B+=[f'v_cvt_pk_bf16_f32 v{OA+4}, v{OA}, v{OA+1}', f'v_cvt_pk_bf16_f32 v{OA+5}, v{OA+2}, v{OA+3}', f'ds_write_b64 v{vOW}, v[{OA+4}:{OA+5}]']
    emit(B)
    if not E('RSA',1): emit(rs[:1]+rs[2:])
    emit(z1[7:8])
    emit(rot_m())
    a('s_waitcnt lgkmcnt(0)')
    a('s_barrier')
    OFR=56
    a(f'ds_read_b128 v[{OFR}:{OFR+3}], v{vL16} offset:{R_O}')
    a(f'ds_read_b128 v[{OFR+4}:{OFR+7}], v{vL16} offset:{R_O+1024}')
    emit(wrd(7))
    if not E('RSA',1): emit(rs[1:2])
    RA=124; RB=24
    vq=[]
    def rl():
        vq.extend(['r','r'])
        return [f'buffer_load_dwordx4 v[{RB+4*L}:{RB+4*L+3}], v{vL16}, {W}, s{sRG2} offen offset:{L*1024} sc1' for L in range(2)]
    def epi(T_):
        r=WA[T_]; d=WA[T_&6]+(T_&1)
        return [f'v_add_f32 v{r}, v{r}, v{r+1}', f'v_add_f32 v{r+2}, v{r+2}, v{r+3}', f'v_cvt_pk_bf16_f32 v{d}, v{r}, v{r+2}']
    def pst(c):
        vq.append('s')
        return f'buffer_store_dwordx2 v[{WA[2*c]}:{WA[2*c]+1}], v{vPST}, {W}, s{sPa if c==0 else sPq+c} offen{sc}'
    pend=[]
    RL=[E('RL0',99),E('RL1',99),99,99][w]
    a(f's_mov_b32 s{sRG2}, s{sRG}')
    a('s_waitcnt lgkmcnt(3)')
    for i in range(16):
        T_,t2=i>>1,i&1
        b = wo_reg(i) if i<8 else WIN[i-8]
        a(f'v_smfmac_f32_16x16x64_bf16 v[{WA[T_]}:{WA[T_]+3}], v[{OFR+4*t2}:{OFR+4*t2+3}], v[{b}:{b+7}], v{vIDX}')
        if i==1: emit(stamp())
        if i==RL: emit(rl())
        if i in (7,11,15): a(pst((i-7)//4))
        if i==0: a('s_waitcnt lgkmcnt(2)')
        if i==12: a('s_waitcnt lgkmcnt(0)')
        if i>=3 and (i&1)==1: pend+=epi((i-3)//2)
        for _ in range(2 if i&1 else 1):
            if pend: a(pend.pop(0))
    emit(pend)
    if RL==16: emit(rl())
    emit(epi(7))
    a(pst(3))
    emit(stamp())
    neg=lambda b: [f'v_mov_b64 v[{r}:{r+1}], -1' for r in range(b,b+8,2)]
    hsv=house_salu(); nh=E('NH',[0,0,6,10][w])
    hk=neg(RB)+zero_acc()+neg(MF)+xbase()+x_reads(0,4)+[f'ds_read2_b32 v[120:121], v{vQKW} offset0:64 offset1:{QK_RS//4+64}', f'v_mov_b32 v122, v{VM0}', f'v_mov_b32 v123, v{VM1}']+hsv[:nh]; hsv=hsv[nh:]
    n=E(f'A{w}',[4,8,20,28][w])
    emit(hk[:n]); emit(rl()); emit(hk[n:])
    a('s_waitcnt vmcnt(6)')
    mm=[f'v_mfma_f32_16x16x32_bf16 v[{RA}:{RA+3}], v[{ONES}:{ONES+3}], v[{RB}:{RB+3}], 0',
        f'v_mfma_f32_16x16x32_bf16 v[{RA}:{RA+3}], v[{ONES}:{ONES+3}], v[{RB+4}:{RB+7}], v[{RA}:{RA+3}]']
    c=chk(RB)
    if SOLO: a('s_waitcnt vmcnt(0)')
    a.label(f'rec_rs_{tag}')
    for _ in range(E('SPR',1)):
        emit(c[:3]); a(mm[0]); emit(c[3:]); a(mm[1]); a(f's_branch rec_go_{tag}' if SOLO else f's_cbranch_vccz rec_go_{tag}')
    emit(c[:3]); a(mm[0]); emit(c[3:]); a(mm[1])
    a(f's_cbranch_vccnz rec_f0_{tag}')
    a.label(f'rec_go_{tag}')
    a(f'v_lshrrev_b32 v{T}, 2, v{vL16}')
    a(f'ds_read_b32 v{PM}, v{T} offset:{R_F}')
    emit(v_reads(w))
    for sh in (4,8):
        for r in (2,3): a(f'v_add_f32 v{RA+r}, v{RA+r}, v{RA+r} row_ror:{sh} row_mask:0xf bank_mask:0xf')
    a(f's_mov_b64 exec, s[{sPM}:{sPM+1}]')
    a(f'v_cvt_pk_bf16_f32 v{RA}, v{RA+2}, v{RA+3}')
    a(f'buffer_store_dword v{RA}, v{vMST}, {W}, s{sMa} offen{sc}')
    a('s_mov_b64 exec, -1')
    emit(stamp())
    emit(hsv)
    a('s_waitcnt lgkmcnt(0)')
    a(f'v_cmp_eq_u32 s[{sKVM}:{sKVM+1}], s{sHI}, v{PM}')
    emit(gl(MF,w))
    emit(stamp())
    if stamps:
        a('s_waitcnt lgkmcnt(0)')
        n=nst[0]
        if SNAP:
            for j in range(3):
                a(f's_cmp_eq_u32 s{sS}, {SNAP+j}')
                for k in range(n): a(f's_cselect_b32 s{sACC+4*j+k}, s{sTS+2*k}, s{sACC+4*j+k}')
            n=0
        for k in range(n):
            prev = f's{sACC+15}' if k==0 else f's{sTS+2*(k-1)}'
            a(f's_sub_u32 s{sU0}, s{sTS+2*k}, {prev}')
            a(f's_add_u32 s{sACC+k}, s{sACC+k}, s{sU0}')
        if n: a(f's_mov_b32 s{sACC+15}, s{sTS+2*(n-1)}')
        a(f's_cmp_eq_u32 s{sS}, 9')
        for k in range(n): a(f's_cselect_b32 s{sACC+k}, 0, s{sACC+k}')
        a(f's_cselect_b32 s{sACC+14}, s{sSPIN}, s{sACC+14}')
    if RT==1 and w==0:
        l=a.newlabel('rs')
        a(f's_and_b32 s8, s{sS}, 7'); a('s_cmp_lg_u32 s8, 0'); a(f's_cbranch_scc1 {l}')
        a(f's_lshr_b32 s8, s{sS}, 3')
        rtstamp(a,8,idx_s=8)
        a.label(l)
    a(f's_branch rec_enter_{tag}')
    a.label(f'rec_f0_{tag}')
    a('s_mov_b64 exec, vcc')
    emit(rl())
    a('s_mov_b64 exec, -1')
    emit(spin(0x10000))
    a(f's_cbranch_scc0 rec_rs_{tag}')
    a(f's_branch rec_go_{tag}')
```

```python
from common import *
from k_main import *
import common
QF_=common.QF
OFLAG=FLAGS+0x10000; X1FLAG=FLAGS+0x20000; HHFLAG=FLAGS+0x30000
D_MODA=96; D_READY=192
sIDX=63; sSP=52
W=srd4(sWS)

def dbg_add(a):
    pass

def wait_mbox(a, level, tag):
    a(f's_cmp_lg_u32 s{sW}, 0')
    a(f's_cbranch_scc1 {tag}_ok')
    a.label(f'{tag}_w')
    a(f'buffer_load_dword v127, off, {W}, s{sMB} sc1')
    a(f's_add_u32 s{sSP}, s{sSP}, 1')
    a('s_waitcnt vmcnt(0)')
    a(f'v_readfirstlane_b32 s{sT0}, v127')
    a(f's_cmp_ge_u32 s{sT0}, {level}')
    a(f's_cbranch_scc1 {tag}_ok')
    a(f's_cmp_gt_u32 s{sSP}, {SPIN_MAX}')
    a(f's_cbranch_scc1 {tag}_ok')
    a('s_sleep 1')
    a(f's_branch {tag}_w')
    a.label(f'{tag}_ok')
    a('s_barrier')

def arrive_notify(a, off, target, level, tag):
    a('v_mov_b32 v127, 1')
    a(f's_mov_b32 s{sT1}, {off}')
    a('s_mov_b64 exec, 1')
    a(f'buffer_atomic_add v127, off, {srd4(sDBG)}, s{sT1} sc0')
    a('s_mov_b64 exec, -1')
    a('s_waitcnt vmcnt(0)')
    a(f'v_readfirstlane_b32 s{sT0}, v127')
    a(f's_cmp_lg_u32 s{sT0}, {target-1}')
    a(f's_cbranch_scc1 {tag}_na')
    a('v_min_u32 v126, 7, v0')
    a('v_lshlrev_b32 v126, 2, v126')
    a('v_add_u32 v125, 144, v126')
    a('v_cmp_eq_u32 vcc, 0, v126')
    a('v_cndmask_b32 v126, v125, v126, vcc')
    a.label(f'{tag}_tk')
    a(f'buffer_load_dword v127, v126, {srd4(sDBG)}, 0 offen sc1')
    a(f's_add_u32 s{sSP}, s{sSP}, 1')
    a(f's_cmp_gt_u32 s{sSP}, {SPIN_MAX}')
    a('s_waitcnt vmcnt(0)')
    a('v_cmp_gt_u32 vcc, 32, v127')
    a(f's_cbranch_scc1 {tag}_tg')
    a(f's_cbranch_vccnz {tag}_tk')
    a.label(f'{tag}_tg')
    a('v_lshlrev_b32 v126, 7, v0')
    a(f'v_mov_b32 v127, {level}')
    for i in range(4):
        a(f's_mov_b32 s{sT1}, {MBOX+i*8192}')
        a(f'buffer_store_dword v127, v126, {W}, s{sT1} offen sc1')
    a.label(f'{tag}_na')

def arrive_dbg(a, off, tag):
    a('s_waitcnt vmcnt(0)')
    a('s_barrier')
    a(f's_cmp_lg_u32 s{sW}, 0')
    a(f's_cbranch_scc1 {tag}_na')
    arrive_notify(a,off,160,2,tag)

def set_flag(a, addr_s, tag, wave=0):
    a(f's_cmp_lg_u32 s{sW}, {wave}')
    a(f's_cbranch_scc1 {tag}_nf')
    a('v_mov_b32 v127, 1')
    a('s_mov_b64 exec, 1')
    a(f'buffer_store_dword v127, off, {W}, s{addr_s} sc1')
    a('s_mov_b64 exec, -1')
    a.label(f'{tag}_nf')

def wait_flags(a, addr_s, want, voff, tag, sleep=int(os.environ.get('SL','1'))):
    a.label(f'{tag}_pw')
    a(f'buffer_load_dword v127, v{voff}, {W}, s{addr_s} offen sc1')
    a(f's_add_u32 s{sSP}, s{sSP}, 1')
    a(f's_cmp_gt_u32 s{sSP}, {SPIN_MAX}')
    a('s_waitcnt vmcnt(0)')
    a(f'v_cmp_gt_u32 vcc, s{want}, v127')
    a(f's_cbranch_scc1 {tag}_pk')
    a(f's_cbranch_vccz {tag}_pk')
    a(f's_sleep {sleep}')
    a(f's_branch {tag}_pw')
    a.label(f'{tag}_pk')

def mod_body(a):
    a(f's_load_dwordx4 s[4:7], s[0:1], {KA["c"]}')
    a(f's_lshl_b32 s{sT0}, s{sW}, 6')
    a(f'v_add_u32 v64, s{sT0}, v0')
    a('v_and_b32 v1, 3, v64')
    a('v_lshrrev_b32 v2, 2, v64')
    a('v_lshlrev_b32 v3, 4, v2')
    a(f's_mov_b32 s{sT0}, 49152')
    a(f'v_mul_lo_u32 v8, v2, s{sT0}')
    a(f's_lshl_b32 s{sT0}, s{sIDX}, 6')
    a('v_lshl_add_u32 v8, v1, 4, v8')
    a(f'v_add_u32 v8, s{sT0}, v8')
    a('s_waitcnt lgkmcnt(0)')
    srd(a,32,4,1024); srd(a,36,6,512*3072*2)
    a('buffer_load_dwordx4 v[4:7], v3, s[32:35], 0 offen')
    for i in range(8):
        a(f's_mov_b32 s{sT0}, {i*6144}')
        a(f'buffer_load_dwordx4 v[{16+4*i}:{19+4*i}], v8, s[36:39], s{sT0} offen')
    a('s_waitcnt vmcnt(8)')
    for i in range(4):
        a(f'v_lshlrev_b32 v{48+2*i}, 16, v{4+i}')
        a(f'v_and_b32 v{49+2*i}, 0xffff0000, v{4+i}')
    for i in range(8): a(f'v_mul_f32 v{56+i}, 0xbfb8aa3b, v{48+i}')
    for i in range(8): a(f'v_exp_f32 v{56+i}, v{56+i}')
    for i in range(8): a(f'v_add_f32 v{56+i}, 1.0, v{56+i}')
    for i in range(8): a(f'v_rcp_f32 v{56+i}, v{56+i}')
    for i in range(8): a(f'v_mul_f32 v{48+i}, v{48+i}, v{56+i}')
    for i in range(4): round_bf16_pair(a,48+2*i,49+2*i,56)
    a('s_waitcnt vmcnt(0)')
    for i in range(8):
        for j in range(4):
            a(f'v_lshlrev_b32 v10, 16, v{16+4*i+j}')
            a(f'v_and_b32 v11, 0xffff0000, v{16+4*i+j}')
            if i==0:
                a(f'v_mul_f32 v{56+2*j}, v48, v10'); a(f'v_mul_f32 v{57+2*j}, v48, v11')
            else:
                a(f'v_fmac_f32 v{56+2*j}, v{48+i}, v10'); a(f'v_fmac_f32 v{57+2*j}, v{48+i}, v11')
    a('v_lshlrev_b32 v9, 5, v64')
    a('ds_write_b128 v9, v[56:59]')
    a('ds_write_b128 v9, v[60:63] offset:16')
    a('s_waitcnt lgkmcnt(0)')
    a('s_barrier')
    a('v_and_b32 v1, 31, v64')
    a('v_lshrrev_b32 v2, 5, v64')
    a('v_lshlrev_b32 v9, 10, v2')
    a('v_lshl_add_u32 v9, v1, 2, v9')
    for i in range(8): a(f'ds_read_b32 v{16+i}, v9 offset:{i*128}')
    a('s_waitcnt lgkmcnt(0)')
    for i in range(1,8): a(f'v_add_f32 v16, v16, v{16+i}')
    a('v_lshlrev_b32 v9, 2, v64')
    a('ds_write_b32 v9, v16 offset:8192')
    a('s_waitcnt lgkmcnt(0)')
    a('s_barrier')
    a('v_lshlrev_b32 v9, 2, v1')
    for i in range(8): a(f'ds_read_b32 v{16+i}, v9 offset:{8192+i*128}')
    a('s_waitcnt lgkmcnt(0)')
    for i in range(1,8): a(f'v_add_f32 v16, v16, v{16+i}')
    round_bf16(a,16,17)
    a(f's_lshr_b32 s{sT0}, s{sIDX}, 4')
    a(f's_cmp_eq_u32 s{sT0}, 1')
    a('s_cbranch_scc1 mod_p1')
    a(f's_cmp_eq_u32 s{sT0}, 4')
    a('s_cbranch_scc0 mod_st')
    a.label('mod_p1')
    a('v_add_f32 v16, 1.0, v16')
    round_bf16(a,16,17)
    a.label('mod_st')
    a(f's_lshl_b32 s{sT0}, s{sIDX}, 7')
    a(f's_add_u32 s{sT0}, s{sT0}, {MOD}')
    a(f's_cmp_lg_u32 s{sW}, 0')
    a('s_cbranch_scc1 mod_ns')
    a(f'buffer_store_dword v16, v9, {W}, s{sT0} offen sc1')
    a(f's_cmp_ge_u32 s{sIDX}, 32')
    a('s_cbranch_scc1 mod_ns')
    a('s_waitcnt vmcnt(0)')
    arrive_notify(a,D_MODA,32,1,'moda')
    a.label('mod_ns')

LX=16; LF=32; LSC=64; LSH=96
LRED=0x27C00
def ln_setup(a):
    a('v_and_b32 v1, 15, v0')
    a('v_lshrrev_b32 v2, 4, v0')
    a('v_lshlrev_b32 v4, 10, v1')
    a('v_lshl_add_u32 v4, v2, 4, v4')
    a(f's_lshl_b32 s{sT0}, s{sW}, 8')
    a(f'v_add_u32 v4, s{sT0}, v4')
    a('v_lshlrev_b32 v5, 5, v2')
    a(f's_lshl_b32 s{sT0}, s{sW}, 9')
    a(f'v_add_u32 v5, s{sT0}, v5')
    a('v_lshlrev_b32 v8, 2, v1')
    a(f'v_add_u32 v8, {LRED}, v8')
    a(f's_lshl_b32 s{sT0}, s{sW}, 6')
    a(f'v_add_u32 v9, s{sT0}, v8')
    a('v_lshlrev_b32 v3, 4, v0')
def ln_load_mod(a, sec_shift, sec_scale):
    a(f's_mov_b32 s{sT0}, {MOD+sec_scale*2048}')
    a(f's_mov_b32 s{sT1}, {MOD+sec_shift*2048}')
    for k in range(4):
        for hf in range(2):
            a(f'buffer_load_dwordx4 v[{LSC+8*k+4*hf}:{LSC+3+8*k+4*hf}], v5, {W}, s{sT0} offen offset:{k*128+hf*16} sc1')
            a(f'buffer_load_dwordx4 v[{LSH+8*k+4*hf}:{LSH+3+8*k+4*hf}], v5, {W}, s{sT1} offen offset:{k*128+hf*16} sc1')
def ln_load_x(a, srdname, soff, sc=''):
    for k in range(4):
        a(f'buffer_load_dwordx4 v[{LX+4*k}:{LX+3+4*k}], v4, {srdname}, s{soff} offen offset:{k*64}{sc}')
def ln_stats(a):
    for j in range(16):
        a(f'v_lshlrev_b32 v{LF+2*j}, 16, v{LX+j}')
        a(f'v_and_b32 v{LF+1+2*j}, 0xffff0000, v{LX+j}')
    a(f'v_add_f32 v6, v{LF}, v{LF+1}'); a(f'v_add_f32 v7, v{LF+2}, v{LF+3}')
    for j in range(4,32,2):
        a(f'v_add_f32 v6, v6, v{LF+j}'); a(f'v_add_f32 v7, v7, v{LF+1+j}')
    a('v_add_f32 v6, v6, v7')
    xlane_reduce(a,'v_add_f32',6,7)
    a('ds_write_b32 v9, v6')
    a('s_waitcnt lgkmcnt(0)'); a('s_barrier')
    for k in range(4): a(f'ds_read_b32 v{10+k}, v8 offset:{k*64}')
    a('s_waitcnt lgkmcnt(0)')
    a('v_add_f32 v10, v10, v11'); a('v_add_f32 v12, v12, v13'); a('v_add_f32 v10, v10, v12')
    a('v_mul_f32 v10, 0x3b000000, v10')
    a(f'v_sub_f32 v11, v{LF}, v10'); a('v_mul_f32 v6, v11, v11')
    a(f'v_sub_f32 v12, v{LF+1}, v10'); a('v_mul_f32 v7, v12, v12')
    for j in range(2,32,2):
        a(f'v_sub_f32 v11, v{LF+j}, v10'); a(f'v_sub_f32 v12, v{LF+1+j}, v10')
        a('v_fmac_f32 v6, v11, v11'); a('v_fmac_f32 v7, v12, v12')
    a('v_add_f32 v6, v6, v7')
    xlane_reduce(a,'v_add_f32',6,7)
    a('ds_write_b32 v9, v6 offset:256')
    a('s_waitcnt lgkmcnt(0)'); a('s_barrier')
    for k in range(4): a(f'ds_read_b32 v{11+k}, v8 offset:{256+k*64}')
    a('s_waitcnt lgkmcnt(0)')
    a('v_add_f32 v11, v11, v12'); a('v_add_f32 v13, v13, v14'); a('v_add_f32 v11, v11, v13')
    a('v_mul_f32 v11, 0x3b000000, v11')
    round_bf16_pair(a,10,11,12)
    a('v_add_f32 v11, 0x3727c5ac, v11')
    round_bf16(a,11,12)
    a('v_sqrt_f32 v11, v11')
    round_bf16(a,11,12)
    a('v_rcp_f32 v11, v11')
def ln_apply(a):
    perm=[0,2,1,3]
    for k in range(4):
        for j in range(4):
            e0=LF+8*k+2*j; e1=e0+1
            a(f'v_sub_f32 v{e0}, v{e0}, v10'); a(f'v_sub_f32 v{e1}, v{e1}, v10')
            round_bf16_pair(a,e0,e1,12)
            a(f'v_mul_f32 v{e0}, v{e0}, v11'); a(f'v_mul_f32 v{e1}, v{e1}, v11')
            round_bf16_pair(a,e0,e1,12)
            a(f'v_mul_f32 v{e0}, v{e0}, v{e0+32}'); a(f'v_mul_f32 v{e1}, v{e1}, v{e1+32}')
            round_bf16_pair(a,e0,e1,12)
            a(f'v_add_f32 v{e0}, v{e0}, v{e0+64}'); a(f'v_add_f32 v{e1}, v{e1}, v{e1+64}')
            a(f'v_cvt_pk_bf16_f32 v{LX+4*k+perm[j]}, v{e0}, v{e1}')
    for k in range(4):
        a(f'v_permlane16_swap_b32 v{LX+4*k}, v{LX+1+4*k}')
        a(f'v_permlane16_swap_b32 v{LX+2+4*k}, v{LX+3+4*k}')

def ln_fast(a):
    for j in range(16):
        a(f'v_lshlrev_b32 v{LF+2*j}, 16, v{LX+j}')
        a(f'v_and_b32 v{LF+1+2*j}, 0xffff0000, v{LX+j}')
    a(f'v_pk_add_f32 v[6:7], v[{LF}:{LF+1}], v[{LF+2}:{LF+3}]')
    a(f'v_pk_add_f32 v[10:11], v[{LF+4}:{LF+5}], v[{LF+6}:{LF+7}]')
    for j in range(8,32,4):
        a(f'v_pk_add_f32 v[6:7], v[6:7], v[{LF+j}:{LF+j+1}]')
        a(f'v_pk_add_f32 v[10:11], v[10:11], v[{LF+j+2}:{LF+j+3}]')
    a('v_pk_add_f32 v[6:7], v[6:7], v[10:11]')
    a('v_add_f32 v6, v6, v7')
    xlane_reduce(a,'v_add_f32',6,7)
    a('v_mul_f32 v6, 0x3c000000, v6')
    a(f'v_pk_add_f32 v[12:13], v[{LF}:{LF+1}], v[6:7] op_sel_hi:[1,0] neg_lo:[0,1] neg_hi:[0,1]')
    a('v_pk_mul_f32 v[10:11], v[12:13], v[12:13]')
    for j in range(2,32,2):
        a(f'v_pk_add_f32 v[12:13], v[{LF+j}:{LF+j+1}], v[6:7] op_sel_hi:[1,0] neg_lo:[0,1] neg_hi:[0,1]')
        a('v_pk_fma_f32 v[10:11], v[12:13], v[12:13], v[10:11]')
    a('v_add_f32 v7, v10, v11')
    xlane_reduce(a,'v_add_f32',7,10)
    a('ds_write2_b32 v9, v6, v7 offset0:0 offset1:64')
    a('s_waitcnt lgkmcnt(0)'); a('s_barrier')
    a(f'ds_read2_b32 v[{LX}:{LX+1}], v8 offset0:0 offset1:16')
    a(f'ds_read2_b32 v[{LX+2}:{LX+3}], v8 offset0:32 offset1:48')
    a(f'ds_read2_b32 v[{LX+4}:{LX+5}], v8 offset0:64 offset1:80')
    a(f'ds_read2_b32 v[{LX+6}:{LX+7}], v8 offset0:96 offset1:112')
    a('s_waitcnt lgkmcnt(0)')
    a(f'v_add_f32 v10, v{LX}, v{LX+1}'); a(f'v_add_f32 v11, v{LX+2}, v{LX+3}'); a('v_add_f32 v10, v10, v11')
    a('v_mul_f32 v10, 0x3e800000, v10')
    a(f'v_add_f32 v11, v{LX+4}, v{LX+5}'); a(f'v_add_f32 v12, v{LX+6}, v{LX+7}'); a('v_add_f32 v11, v11, v12')
    a('v_mul_f32 v11, 0x3c000000, v11')
    for k in range(4):
        a(f'v_sub_f32 v12, v{LX+k}, v10'); a('v_fmac_f32 v11, v12, v12')
    a('v_mul_f32 v11, 0x3e800000, v11')
    round_bf16_pair(a,10,11,12)
    a('v_add_f32 v11, 0x3727c5ac, v11')
    round_bf16(a,11,12)
    a('v_sqrt_f32 v11, v11')
    round_bf16(a,11,12)
    a('v_rcp_f32 v12, v11')
    a('v_mul_f32 v10, v10, v12')
    perm=[0,2,1,3]
    for k in range(4):
        for j in range(4):
            e=LF+8*k+2*j
            a(f'v_pk_fma_f32 v[{e}:{e+1}], v[{e}:{e+1}], v[12:13], v[10:11] op_sel_hi:[1,0,0] neg_lo:[0,0,1] neg_hi:[0,0,1]')
        for j in range(4):
            e=LF+8*k+2*j
            a(f'v_pk_fma_f32 v[{e}:{e+1}], v[{e}:{e+1}], v[{e+32}:{e+33}], v[{e+64}:{e+65}]')
        for j in range(4):
            e=LF+8*k+2*j
            a(f'v_cvt_pk_bf16_f32 v{LX+4*k+perm[j]}, v{e}, v{e+1}')
    for k in range(4):
        a(f'v_permlane16_swap_b32 v{LX+4*k}, v{LX+1+4*k}')
        a(f'v_permlane16_swap_b32 v{LX+2+4*k}, v{LX+3+4*k}')

NWO=4; NUP=4; NDN=4
tB=32; tRES=36; tOUT=40; tCS=64; tU=65; tUS=66; tFA=67; tFB=68; tT2=69
def gen_workers(a):
    a.label('work_start')
    a(f's_mov_b32 s{sSP}, 0')
    a(f's_cmp_lt_u32 s{sROLE}, 96')
    a('s_cbranch_scc1 qkv_start')
    a(f's_sub_u32 s{sIDX}, s{sROLE}, 96')
    rtstamp(a,0)
    a(f's_cmp_ge_u32 s{sIDX}, 128')
    a('s_cbranch_scc1 pre_init')
    a(f's_cmp_ge_u32 s{sIDX}, 96')
    a('s_cbranch_scc1 pre_ln')
    mod_body(a)
    a.label('pre_ln')
    a(f's_load_dwordx2 s[4:5], s[0:1], {KA["x"]}')
    ln_setup(a)
    a('s_waitcnt lgkmcnt(0)')
    srd(a,32,4,2<<20)
    a(f's_lshl_b32 s{sT2}, s{sIDX}, 14')
    ln_load_x(a,'s[32:35]',sT2)
    a('s_waitcnt vmcnt(0)')
    ln_stats(a)
    wait_mbox(a,1,'ln1m')
    ln_load_mod(a,0,1)
    a('s_waitcnt vmcnt(0)')
    ln_apply(a)
    a(f's_lshl_b32 s{sT0}, s{sW}, 12')
    a(f's_add_u32 s{sT2}, s{sT2}, s{sT0}')
    a(f's_add_u32 s{sT2}, s{sT2}, {H1F}')
    for k in range(4):
        a(f'buffer_store_dwordx4 v[{LX+4*k}:{LX+3+4*k}], v3, {W}, s{sT2} offen offset:{k*1024} sc1')
    arrive_dbg(a,D_READY,'ln1a')
    a('s_branch pre_done')
    a.label('pre_init')
    a('v_mov_b64 v[4:5], 0'); a('v_mov_b64 v[6:7], 0')
    a('v_lshlrev_b32 v3, 4, v0')
    a(f's_sub_u32 s{sT0}, s{sIDX}, 128')
    a(f's_lshl_b32 s{sT0}, s{sT0}, 13')
    a(f's_lshl_b32 s{sT1}, s{sW}, 11')
    a(f's_add_u32 s{sT0}, s{sT0}, s{sT1}')
    a(f's_add_u32 s{sT0}, s{sT0}, {FLAGS}')
    a(f'buffer_store_dwordx4 v[4:7], v3, {W}, s{sT0} offen sc1')
    a(f'buffer_store_dwordx4 v[4:7], v3, {W}, s{sT0} offen offset:1024 sc1')
    arrive_dbg(a,D_READY,'inia')
    if int(os.environ.get('PFO','0')):
        a(f's_sub_u32 s{sT0}, s{sIDX}, 128')
        a(f's_lshl_b32 s{sT0}, s{sT0}, 17')
        a(f's_lshl_b32 s{sT1}, s{sW}, 15')
        a(f's_add_u32 s{sT0}, s{sT0}, s{sT1}')
        for i in range(32):
            if i and i%4==0: a(f's_add_u32 s{sT0}, s{sT0}, 4096')
            a(f'buffer_load_dwordx4 v[{128+4*i}:{131+4*i}], v3, {srd4(sWO)}, s{sT0} offen offset:{(i%4)*1024}')
    a.label('pre_done')
    rtstamp(a,1)
    a(f's_cmp_ge_u32 s{sIDX}, 128')
    a('s_cbranch_scc1 dn_start')
    a(f's_bitcmp1_b32 s{sIDX}, 4')
    a('s_cbranch_scc0 wo_start')
    a('s_branch up_start')
    gen_ksplit(a,'wo'); gen_ksplit(a,'dn'); gen_up(a); gen_qkv(a)
    a.label('main_done')
    a('s_endpgm')
    a.label('code_end')

def gen_ksplit(a, which):
    L=which
    a.label(f'{L}_start')
    if which=='wo':
        NK=32; NT=2; a_base=OF; a_rt=131072; gate=2; nset=NWO
        a(f's_load_dwordx2 s[4:5], s[0:1], {KA["Wo"]}')
        a(f's_load_dwordx2 s[6:7], s[0:1], {KA["x"]}')
        a(f's_lshr_b32 s{tU}, s{sIDX}, 5')
        a(f's_and_b32 s{tCS}, s{sIDX}, 15')
        a('s_waitcnt lgkmcnt(0)')
        srd(a,tB,4,4<<20); srd(a,tRES,6,2<<20)
        res=srd4(tRES); res_off=0; res_sc=''; out=W; out_off=X1; out_sc=' sc1'
    else:
        NK=14; NT=4; a_base=HH; a_rt=56*1024; gate=5; nset=NDN
        a(f's_load_dwordx2 s[4:5], s[0:1], {KA["wd"]}')
        a(f's_load_dwordx2 s[6:7], s[0:1], {KA["out"]}')
        a(f's_bfe_u32 s{tU}, s{sIDX}, 0x20003')
        a(f's_and_b32 s{tCS}, s{sIDX}, 7')
        a('s_waitcnt lgkmcnt(0)')
        srd(a,tB,4,1792*1024); srd(a,tOUT,6,2<<20)
        res=W; res_off=X1; res_sc=' sc1'; out=srd4(tOUT); out_off=0; out_sc=''
    RB=NT*32
    LPR=RB//16
    lg=LPR.bit_length()-1
    KB=32*RB
    RING=32768//KB
    NI=KB//1024
    a('s_barrier')
    a('v_lshlrev_b32 v2, 4, v0')
    a(f'v_lshrrev_b32 v3, {lg}, v0')
    a('v_lshlrev_b32 v1, 10, v3')
    a(f'v_and_b32 v3, {LPR-1}, v0')
    a('v_lshl_add_u32 v1, v3, 4, v1')
    a(f's_mul_i32 s{sT0}, s{tCS}, {RB}')
    a(f'v_add_u32 v1, s{sT0}, v1')
    a(f's_lshl_b32 s{sLB}, s{sW}, 15')
    a('v_lshrrev_b32 v3, 2, v0')
    a(f'v_mul_u32_u24 v4, {RB}, v3')
    a('v_and_b32 v3, 3, v0')
    a('v_lshl_add_u32 v4, v3, 3, v4')
    a(f'v_add_u32 v4, s{sLB}, v4')
    GS=2; G=NK//GS; tG=72
    for g in range(G):
        a(f's_add_u32 s{sT0}, s{tCS}, {g}')
        if G==16: a(f's_and_b32 s{sT0}, s{sT0}, 15')
        else:
            for _ in range(2):
                a(f's_sub_u32 s{sT1}, s{sT0}, {G}'); a(f's_cmp_ge_u32 s{sT0}, {G}'); a(f's_cselect_b32 s{sT0}, s{sT1}, s{sT0}')
        a(f's_mul_i32 s{sT1}, s{sW}, {NK}')
        a(f's_lshl_b32 s{sT0}, s{sT0}, 1')
        a(f's_add_u32 s{sT0}, s{sT0}, s{sT1}')
        a(f's_lshl_b32 s{tG+g}, s{sT0}, 10')
    def issue(kk):
        a(f's_lshl_b32 s{tT2}, s{tG+kk//GS}, 5')
        for i in range(NI):
            a(f's_add_u32 m0, s{sLB}, {(kk%RING)*KB+i*1024}')
            a(f's_add_u32 s{sT0}, s{tT2}, {((kk%GS)*32+i*(64//LPR))*1024}')
            a(f'buffer_load_dwordx4 v1, {srd4(tB)}, s{sT0} offen lds')
    a('s_waitcnt vmcnt(0)')
    n0=min(RING,NK)
    for kk in range(n0): issue(kk)
    o=NI*n0
    for kk in range(NK):
        a(f's_waitcnt vmcnt({o-NI})'); o-=NI
        for tau in range(NT):
            for i in range(2):
                r=(kk*NT+tau)*4+2*i
                a(f'ds_read_b64_tr_b16 a[{r}:{r+1}], v4 offset:{(kk%RING)*KB+i*16*RB+tau*32}')
        if kk+RING<NK:
            a('s_waitcnt lgkmcnt(0)')
            issue(kk+RING); o+=NI
    wait_mbox(a,2,f'{L}rd')
    a('v_and_b32 v5, 15, v0')
    a('v_lshrrev_b32 v6, 4, v0')
    a('v_lshlrev_b32 v7, 10, v5')
    a('v_lshl_add_u32 v7, v6, 3, v7')
    a(f's_mul_i32 s{sT0}, s{tCS}, {RB}')
    a(f's_and_b32 s{sT1}, s{sW}, {NT-1}')
    a(f's_lshl_b32 s{sT1}, s{sT1}, 5')
    a(f's_add_u32 s{sT0}, s{sT0}, s{sT1}')
    a(f'v_add_u32 v7, s{sT0}, v7')
    a('v_lshlrev_b32 v8, 4, v6')
    a(f's_lshl_b32 s{sT0}, s{sT0}, 1')
    a(f's_add_u32 s{sT0}, s{sT0}, {MOD+gate*2048}')
    a(f'buffer_load_dwordx4 v[12:15], v8, {W}, s{sT0} offen sc1')
    RED=0x20000
    a(f's_mul_i32 s{sT0}, s{sW}, {NT*1024}')
    a(f's_add_u32 s{sT0}, s{sT0}, {RED}')
    a(f'v_add_u32 v9, s{sT0}, v2')
    a(f's_lshl_b32 s{sT0}, s{sT1}, 5')
    a(f's_add_u32 s{sT0}, s{sT0}, {RED}')
    a(f'v_add_u32 v10, s{sT0}, v2')
    if which=='wo':
        a('v_and_b32 v11, 15, v0'); a(f's_lshl_b32 s{sT0}, s{sW}, 4')
    else:
        a('v_min_u32 v11, 13, v0'); a(f's_mul_i32 s{sT0}, s{sW}, 14')
    a(f'v_add_u32 v11, s{sT0}, v11'); a('v_lshlrev_b32 v11, 7, v11')
    a(f's_lshl_b32 s{tFA}, s{tU}, 13'); a(f's_add_u32 s{tFA}, s{tFA}, {OFLAG if which=="wo" else HHFLAG}')
    if which=='wo':
        a(f's_lshl_b32 s{tFB}, s{tU}, 13'); a(f's_lshl_b32 s{sT0}, s{tCS}, 8'); a(f's_add_u32 s{tFB}, s{tFB}, s{sT0}')
        a(f's_lshl_b32 s{sT0}, s{sW}, 7'); a(f's_add_u32 s{tFB}, s{tFB}, s{sT0}'); a(f's_add_u32 s{tFB}, s{tFB}, {X1FLAG}')
    a('s_waitcnt vmcnt(0) lgkmcnt(0)')
    rtstamp(a,2)
    AF=128; ACC=64
    a.label(f'{L}_loop')
    a(f's_add_u32 s{tUS}, s{tU}, 1')
    a(f's_mul_i32 s{sT2}, s{tU}, {a_rt}')
    a(f's_add_u32 s{sT2}, s{sT2}, {a_base}')
    a(f's_lshl_b32 s{tT2}, s{tU}, 14')
    a(f's_add_u32 s{sT1}, s{tT2}, {res_off}')
    wait_flags(a,tFA,tUS,11,L)
    lstamp(a,0)
    for kk in range(NK):
        if kk%GS==0: a(f's_add_u32 s{sT0}, s{sT2}, s{tG+kk//GS}')
        a(f'buffer_load_dwordx4 v[{AF+4*kk}:{AF+4*kk+3}], v2, {W}, s{sT0} offen offset:{(kk%GS)*1024} sc1')
    a(f'buffer_load_dwordx2 v[24:25], v7, {res}, s{sT1} offen{res_sc}')
    for kk in range(NK):
        a(f's_waitcnt vmcnt({NK-kk})')
        for tau in range(NT):
            r=(kk*NT+tau)*4; acc=ACC+4*tau
            c='0' if kk==0 else f'v[{acc}:{acc+3}]'
            a(f'v_mfma_f32_16x16x32_bf16 v[{acc}:{acc+3}], a[{r}:{r+3}], v[{AF+4*kk}:{AF+4*kk+3}], {c}')
    lstamp(a,1)
    for tau in range(NT): a(f'ds_write_b128 v9, v[{ACC+4*tau}:{ACC+4*tau+3}] offset:{tau*1024}')
    a('s_waitcnt lgkmcnt(0)')
    a('s_barrier')
    R=32
    for w in range(4): a(f'ds_read_b128 v[{R+4*w}:{R+4*w+3}], v10 offset:{w*NT*1024}')
    a('s_waitcnt lgkmcnt(0) vmcnt(0)')
    a('s_barrier')
    if NT<4:
        a(f's_cmp_ge_u32 s{sW}, {NT}')
        a(f's_cbranch_scc1 {L}_next')
    for r in range(4):
        a(f'v_add_f32 v{R+r}, v{R+r}, v{R+4+r}')
        a(f'v_add_f32 v{R+8+r}, v{R+8+r}, v{R+12+r}')
    for r in range(4): a(f'v_add_f32 v{R+r}, v{R+r}, v{R+8+r}')
    round_bf16_pair(a,R,R+1,26); round_bf16_pair(a,R+2,R+3,26)
    for r in range(4): a(f'v_mul_f32 v{R+r}, v{R+r}, v{12+r}')
    round_bf16_pair(a,R,R+1,26); round_bf16_pair(a,R+2,R+3,26)
    a('v_lshlrev_b32 v26, 16, v24'); a('v_and_b32 v27, 0xffff0000, v24')
    a('v_lshlrev_b32 v28, 16, v25'); a('v_and_b32 v29, 0xffff0000, v25')
    for r in range(4): a(f'v_add_f32 v{R+r}, v{R+r}, v{26+r}')
    a(f'v_cvt_pk_bf16_f32 v24, v{R}, v{R+1}')
    a(f'v_cvt_pk_bf16_f32 v25, v{R+2}, v{R+3}')
    a(f's_add_u32 s{sT1}, s{tT2}, {out_off}')
    a(f'buffer_store_dwordx2 v[24:25], v7, {out}, s{sT1} offen{out_sc}')
    lstamp(a,2)
    if which=='wo':
        a(f'v_mov_b32 v127, s{tUS}')
        a('s_waitcnt vmcnt(0)')
        a('s_mov_b64 exec, 1')
        a(f'buffer_store_dword v127, off, {W}, s{tFB} sc1')
        a('s_mov_b64 exec, -1')
        lstamp(a,3)
    a.label(f'{L}_next')
    a(f's_add_u32 s{tU}, s{tU}, {nset}')
    a(f's_cmp_lt_u32 s{tU}, 128')
    a(f's_cbranch_scc1 {L}_loop')
    ldump(a,4)
    rtstamp(a,3)
    a('s_branch main_done')

def gen_up(a):
    L='up'
    a.label('up_start')
    a(f's_and_b32 s{tCS}, s{sIDX}, 15'); a(f's_lshr_b32 s{tU}, s{sIDX}, 5')
    a(f's_cmp_lt_u32 s{tCS}, 14'); a('s_cbranch_scc0 main_done')
    a(f's_load_dwordx4 s[4:7], s[0:1], {KA["wg"]}')
    a('s_waitcnt lgkmcnt(0)')
    srd(a,tB,4,512*3584); srd(a,tRES,6,512*3584)
    RS=3584
    a('s_barrier')
    a(f's_lshl_b32 s{sLB}, s{sW}, 15')
    a('v_bfe_u32 v2, v0, 2, 1'); a('v_bfe_u32 v3, v0, 4, 1'); a('v_lshl_add_u32 v2, v3, 1, v2')
    a('v_bfe_u32 v3, v0, 3, 1'); a('v_lshl_add_u32 v2, v3, 2, v2')
    a('v_bfe_u32 v3, v0, 5, 1'); a('v_lshl_add_u32 v2, v3, 3, v2')
    a(f'v_mul_u32_u24 v1, {RS}, v2')
    a('v_lshlrev_b32 v3, 1, v3'); a('v_xor_b32 v3, v3, v0'); a('v_and_b32 v3, 3, v3')
    a('v_lshl_add_u32 v1, v3, 4, v1')
    a(f's_lshl_b32 s{sT0}, s{tCS}, 8'); a(f's_lshl_b32 s{sT1}, s{sW}, 6'); a(f's_add_u32 s{sT0}, s{sT0}, s{sT1}')
    a(f'v_add_u32 v1, s{sT0}, v1')
    a('v_bfe_u32 v2, v0, 5, 1'); a('v_lshlrev_b32 v4, 10, v2')
    a('v_bfe_u32 v2, v0, 3, 1'); a('v_mul_u32_u24 v2, 544, v2'); a('v_add_u32 v4, v4, v2')
    a('v_bfe_u32 v2, v0, 4, 1'); a('v_lshl_add_u32 v4, v2, 7, v4')
    a('v_bfe_u32 v2, v0, 2, 1'); a('v_lshl_add_u32 v4, v2, 6, v4')
    a('v_and_b32 v2, 3, v0'); a('v_lshl_add_u32 v4, v2, 3, v4')
    a(f'v_add_u32 v4, s{sLB}, v4'); a('v_xor_b32 v5, 32, v4')
    def issue(u):
        X,j=u>>3,u&7
        for i in range(4):
            a(f's_add_u32 m0, s{sLB}, {j*4096+i*1024}')
            a(f's_mov_b32 s{sT0}, {(j*64+i*16)*RS}')
            a(f'buffer_load_dwordx4 v1, {srd4([tB,tRES][X])}, s{sT0} offen lds')
    a('s_waitcnt vmcnt(0)')
    for u in range(8): issue(u)
    o=32
    for u in range(16):
        X,j=u>>3,u&7
        a(f's_waitcnt vmcnt({o-4})'); o-=4
        for tau in range(2):
            b=X*128+(tau*8+j)*8
            for hh in range(2):
                for y in range(2):
                    a(f'ds_read_b64_tr_b16 a[{b+4*hh+2*y}:{b+4*hh+2*y+1}], v{4+tau} offset:{j*4096+hh*2048+y*256}')
        a('s_waitcnt lgkmcnt(0)')
        if u+8<16: issue(u+8); o+=4
    wait_mbox(a,2,'uprd')
    ln_setup(a)
    ln_load_mod(a,3,4)
    a('v_and_b32 v15, 7, v0'); a(f's_lshl_b32 s{sT0}, s{sW}, 3'); a(f'v_add_u32 v15, s{sT0}, v15'); a('v_lshlrev_b32 v15, 7, v15')
    a(f's_lshl_b32 s{tFA}, s{tU}, 13'); a(f's_add_u32 s{tFB}, s{tFA}, {HHFLAG}'); a(f's_add_u32 s{tFA}, s{tFA}, {X1FLAG}')
    a(f's_lshl_b32 s{sT0}, s{tCS}, 9'); a(f's_add_u32 s{tFB}, s{tFB}, s{sT0}'); a(f's_lshl_b32 s{sT0}, s{sW}, 7'); a(f's_add_u32 s{tFB}, s{tFB}, s{sT0}')
    a(f's_lshl_b32 s{sT0}, s{sW}, 12'); a(f'v_add_u32 v2, s{sT0}, v3')
    a('s_waitcnt vmcnt(0)')
    a('v_mov_b32 v224, v127')
    rtstamp(a,2)
    AF=128; ACC=192
    a.label('up_loop')
    a(f's_add_u32 s{tUS}, s{tU}, 1')
    a(f's_lshl_b32 s{sT2}, s{tU}, 14'); a(f's_add_u32 s{sT2}, s{sT2}, {X1}')
    wait_flags(a,tFA,tUS,15,L)
    lstamp(a,0)
    ln_load_x(a,W,sT2,' sc1')
    a('v_mov_b32 v127, v224')
    a('s_waitcnt vmcnt(0)')
    lstamp(a,1)
    ln_fast(a)
    lstamp(a,2)
    for k in range(4): a(f'ds_write_b128 v2, v[{LX+4*k}:{LX+3+4*k}] offset:{k*1024}')
    a('s_waitcnt lgkmcnt(0)')
    a('s_barrier')
    for kap in range(12): a(f'ds_read_b128 v[{AF+4*kap}:{AF+4*kap+3}], v3 offset:{kap*1024}')
    for kap in range(16):
        issued=min(16,12+kap)
        a(f's_waitcnt lgkmcnt({issued-kap-1})')
        t,hh=kap>>1,kap&1
        for X in range(2):
            for tau in range(2):
                b=X*128+(tau*8+t)*8+4*hh; acc=ACC+(X*2+tau)*4
                c='0' if kap==0 else f'v[{acc}:{acc+3}]'
                a(f'v_mfma_f32_16x16x32_bf16 v[{acc}:{acc+3}], a[{b}:{b+3}], v[{AF+4*kap}:{AF+4*kap+3}], {c}')
        if kap+12<16: a(f'ds_read_b128 v[{AF+4*(kap+12)}:{AF+4*(kap+12)+3}], v3 offset:{(kap+12)*1024}')
    for r in range(0,16,2): round_bf16_pair(a,ACC+r,ACC+r+1,10)
    for r in range(8): a(f'v_mul_f32 v{ACC+r}, v{ACC+r}, v{ACC+8+r}')
    for r in range(4): a(f'v_cvt_pk_bf16_f32 v{208+r}, v{ACC+2*r}, v{ACC+2*r+1}')
    a(f's_mul_i32 s{sT0}, s{tU}, {56*1024}')
    a(f's_lshl_b32 s{sT1}, s{tCS}, 12'); a(f's_add_u32 s{sT0}, s{sT0}, s{sT1}')
    a(f's_lshl_b32 s{sT1}, s{sW}, 10'); a(f's_add_u32 s{sT0}, s{sT0}, s{sT1}')
    a(f's_add_u32 s{sT0}, s{sT0}, {HH}')
    a(f'buffer_store_dwordx4 v[208:211], v3, {W}, s{sT0} offen sc1')
    lstamp(a,3)
    a(f'v_mov_b32 v127, s{tUS}')
    a('s_barrier')
    a('s_waitcnt vmcnt(0)')
    a('s_mov_b64 exec, 1')
    a(f'buffer_store_dword v127, off, {W}, s{tFB} sc1')
    a('s_mov_b64 exec, -1')
    lstamp(a,4)
    a(f's_add_u32 s{tU}, s{tU}, {NUP}')
    a(f's_cmp_lt_u32 s{tU}, 128')
    a('s_cbranch_scc1 up_loop')
    ldump(a,5)
    rtstamp(a,3)
    a('s_branch main_done')

LEAD=int(os.environ.get('LEAD','4'))
wS=72; wBa=73; wBb=74; wA=75; wO=76; wPF=77; wOFL=78; wKFL=79; wC=80; wMASK=82; wNU=98; wEH=99
def gen_qkv(a):
    a.label('qkv_start')
    a(f's_sub_u32 s{sT0}, s{sROLE}, 32')
    a(f's_lshr_b32 s{sH}, s{sT0}, 1')
    a(f's_and_b32 s{sSLOT}, s{sT0}, 1')
    rtstamp(a,0)
    vL=8; vA=9
    a(f'v_lshlrev_b32 v{vL}, 4, v0')
    a(f's_lshl_b32 s{sLB}, s{sW}, 12')
    a(f's_add_u32 s{sLB}, s{sLB}, {L_WO}')
    a(f's_lshl_b32 s13, s{sH}, 8')
    coop_addrs(a,96,112,[8192],['H'],col_s=13)
    for i in range(2): a(f'v_add_u32 v{116+i}, 0x10000, v{112+i}')
    ordr=[int(x) for x in os.environ.get('QO','0,1,2').split(',')]
    def issue(u): coop_issue(a,u,96,srd4([sWQ,sWK,sWV][ordr[u>>3]]),[f's_mov_b32 s{sT0}, {(u&7)<<19}'])
    for u in range(8): issue(u)
    out=32
    for u in range(24):
        a(f's_waitcnt vmcnt({out-4})'); out-=4
        a('s_barrier')
        if u>=1 and u+7<24: issue(u+7); out+=4
        coop_reads(a,u,112,116,lambda tau: wreg(ordr[u>>3],tau,u&7))
        a('s_waitcnt lgkmcnt(0)')
    rtstamp(a,1)
    wait_mbox(a,2,'qkrd')
    rtstamp(a,2)
    def dma(seg_s, buf_s):
        a(f's_min_u32 s{sT0}, s{seg_s}, 63')
        a(f's_lshl_b32 s{sT0}, s{sT0}, 15')
        a(f's_lshl_b32 s{sT1}, s{sW}, 13')
        a(f's_add_u32 s{sT0}, s{sT0}, s{sT1}')
        a(f's_add_u32 s{sT0}, s{sT0}, {H1F}')
        a(f's_add_u32 s{sT1}, s{sT1}, s{buf_s}')
        for hf in range(2):
            a(f's_add_u32 m0, s{sT1}, {hf*4096}')
            if hf: a(f's_add_u32 s{sT0}, s{sT0}, 4096')
            for i in range(4):
                a(f'buffer_load_dwordx4 v{vL}, {W}, s{sT0} offen offset:{i*1024} sc1 lds')
    a(f's_mov_b32 s{wS}, s{sSLOT}')
    a(f's_sub_u32 s{wA}, s{sSLOT}, {2*LEAD}')
    a(f's_mov_b32 s{wBa}, 0'); a(f's_mov_b32 s{wBb}, 0x8000')
    dma(wS,wBa)
    a(f's_and_b32 s{wNU}, s{sW}, 1')
    a(f's_lshr_b32 s{wEH}, s{sW}, 1')
    a(f's_mov_b32 s{wC}, 0x3e0293ee')
    a('v_and_b32 v1, 15, v0')
    a('v_lshrrev_b32 v2, 4, v0')
    a('v_lshlrev_b32 v3, 2, v2')
    a('v_sub_u32 v3, v3, v1')
    a(f's_lshl_b32 s{sT0}, s{wNU}, 4')
    a(f'v_subrev_u32 v3, s{sT0}, v3')
    for mu in range(2):
        for r in range(4):
            a(f'v_cmp_ge_i32 vcc, {-(r+16*mu)}, v3')
            a(f's_mov_b64 s[{wMASK+2*(4*mu+r)}:{wMASK+2*(4*mu+r)+1}], vcc')
    vKMo=10; ONES=12; NEG=11
    a('v_lshrrev_b32 v3, 2, v1')
    a(f'v_lshlrev_b32 v{vKMo}, 8, v3')
    a(f'v_lshl_add_u32 v{vKMo}, v2, 6, v{vKMo}')
    a('v_and_b32 v3, 1, v1')
    a(f'v_lshl_add_u32 v{vKMo}, v3, 2, v{vKMo}')
    for i in range(4): a(f'v_mov_b32 v{ONES+i}, 0x3f803f80')
    a(f'v_mov_b32 v{NEG}, 0xf149f2ca')
    a(f's_mov_b32 s{wOFL}, 0')
    ACC=16; HW=64
    LA_=0x10000
    KMr=96; VMr=112; FL=116; wRDY=81; FLO=117
    a(f's_lshl_b32 s{sT0}, s{wNU}, 12')
    a(f's_add_u32 s{sT0}, s{sT0}, {LA_}')
    a(f'v_add_u32 v4, s{sT0}, v{vL}')
    a(f'v_add_u32 v5, {LA_+8192}, v{vL}')
    a(f's_lshl_b32 s{sT0}, s{wEH}, 12')
    a(f's_add_u32 s{sT0}, s{sT0}, {LA_+16384}')
    a(f'v_add_u32 v6, s{sT0}, v{vL}')
    a(f's_lshl_b32 s{wPF+24}, s{sH}, 7')
    a(f's_add_u32 s{wPF+24}, s{wPF+24}, {RECFLAG}')
    wRF=wPF+24
    def km_loads():
        a(f's_lshr_b32 s{sT0}, s{wO}, 1')
        a(f's_add_u32 s{sT0}, s{sT0}, {KM}')
        for u in range(4):
            for d in range(4):
                a(f'buffer_load_dword v{KMr+4*u+d}, v{vKMo}, {W}, s{sT0} offen offset:{u*1024+d*16} sc1')
        a(f's_lshl_b32 s{sT1}, s{wEH}, 11')
        a(f's_add_u32 s{sT0}, s{sT0}, s{sT1}')
        for z in range(2):
            a(f'buffer_load_dwordx2 v[{VMr+2*z}:{VMr+2*z+1}], v{vL}, {W}, s{sT0} offen offset:{z*1024+8} sc1')
    def bflag(addr_s):
        if addr_s==wOFL: a(f'v_mov_b32 v3, s{wOFL}')
        a('s_mov_b64 exec, 1')
        if addr_s==wKFL: a(f'buffer_store_byte v7, off, {W}, s{addr_s} sc1')
        else: a(f'buffer_store_dword v3, off, {W}, s100 sc1')
        a('s_mov_b64 exec, -1')
    a('v_mov_b32 v7, 1')
    a(f'v_and_b32 v{FLO}, 3, v0'); a(f'v_lshlrev_b32 v{FLO}, 2, v{FLO}')
    a(f's_lshl_b32 s100, s{sSLOT}, 14'); a(f's_lshl_b32 s{sT0}, s{wNU}, 13'); a(f's_add_u32 s100, s100, s{sT0}')
    a(f's_lshl_b32 s{sT0}, s{sH}, 8'); a(f's_add_u32 s100, s100, s{sT0}')
    a(f's_lshl_b32 s{sT0}, s{wEH}, 7'); a(f's_add_u32 s100, s100, s{sT0}'); a(f's_add_u32 s100, s100, {OFLAG}')
    a('s_waitcnt vmcnt(0)')
    a.label('qa_loop')
    a('s_barrier')
    a(f's_mov_b32 s{wRDY}, 0')
    a(f's_mov_b32 s{wKFL}, -1')
    a(f's_cmp_ge_i32 s{wA}, 64')
    a('s_cbranch_scc1 qa_last')
    a(f's_max_i32 s{sT2}, s{wA}, 0')
    a(f's_and_b32 s{sT2}, s{sT2}, {RM}')
    a(f's_lshl_b32 s{wO}, s{sT2}, 18')
    a(f's_lshl_b32 s{sT1}, s{sH}, 13')
    a(f's_add_u32 s{wO}, s{wO}, s{sT1}')
    a(f's_lshl_b32 s{sT1}, s{sW}, 11')
    a(f's_add_u32 s{sT2}, s{wO}, s{sT1}')
    attd=[]
    for X,base in enumerate((QF_,KF,VF)):
        attd.append([f's_add_u32 m0, s{sT1}, {LA_+X*8192}', f's_add_u32 s{sT0}, s{sT2}, {base}', f'buffer_load_dwordx4 v{vL}, {W}, s{sT0} offen sc1 lds'])
        attd.append([f'buffer_load_dwordx4 v{vL}, {W}, s{sT0} offen offset:1024 sc1 lds'])
    a(f's_cmp_ge_u32 s{wS}, 64')
    a('s_cbranch_scc1 qa_noq')
    a(f'v_add_u32 v{vA}, s{wBa}, v{vL}')
    frs=[(kap,mu) for kap in range(16) for mu in range(2)]
    def rd(i):
        kap,mu=frs[i]; b=HW+4*(i%8)
        return f'ds_read_b128 v[{b}:{b+3}], v{vA} offset:{mu*16384+kap*1024}'
    for i in range(6): a(rd(i))
    a(f's_add_u32 s4, s{wS}, 2')
    a('s_min_u32 s4, s4, 63')
    a('s_lshl_b32 s4, s4, 15')
    a(f's_lshl_b32 s5, s{sW}, 13')
    a('s_add_u32 s4, s4, s5')
    a(f's_add_u32 s4, s4, {H1F}')
    a(f's_add_u32 s5, s5, s{wBb}')
    h1d=[]
    for hf in range(2):
        for i in range(4):
            pre=[f's_add_u32 m0, s5, {hf*4096}']+(['s_add_u32 s4, s4, 4096'] if hf else ['s_nop 0']) if i==0 else []
            h1d.append(pre+[f'buffer_load_dwordx4 v{vL}, {W}, s4 offen offset:{i*1024} sc1 lds'])
    bg=attd+h1d+[[f'buffer_load_dword v{FL}, v{FLO}, {W}, s{wRF} offen sc1']]
    for i,(kap,mu) in enumerate(frs):
        issued=min(6+i,32)
        a(f's_waitcnt lgkmcnt({issued-i-1})')
        hb=HW+4*(i%8); t,hh=kap>>1,kap&1
        for X in range(3):
            for tau in range(2):
                k,b=wreg(X,tau,t); b+=4*hh
                acc=ACC+((X*2+tau)*2+mu)*4
                c='0' if kap==0 else f'v[{acc}:{acc+3}]'
                wf=f'{k}[{b}:{b+3}]'; hf=f'v[{hb}:{hb+3}]'
                if X<2: a(f'v_mfma_f32_16x16x32_bf16 v[{acc}:{acc+3}], {wf}, {hf}, {c}')
                else:   a(f'v_mfma_f32_16x16x32_bf16 v[{acc}:{acc+3}], {hf}, {wf}, {c}')
                if X==0 and tau==1 and 6+i<32: a(rd(6+i))
                if X>=1 and tau==0 and bg:
                    for o in bg.pop(0): a(o)
        if i==10:
            assert not bg
            a(f's_cmp_eq_u32 s{wOFL}, 0')
            a('s_cbranch_scc1 qaof_nf')
            a('s_waitcnt vmcnt(15)')
            bflag(wOFL)
            a(f's_mov_b32 s{wOFL}, 0')
            a.label('qaof_nf')
        if i==20:
            a('s_waitcnt vmcnt(1)')
            a(f's_cmp_lt_i32 s{wA}, 2')
            a('s_cbranch_scc0 qa_fl')
            a('s_waitcnt vmcnt(0)')
            a.label('qa_fl')
            a(f'v_cmp_ge_i32 vcc, s{wA}, v{FL}')
            a('s_cbranch_vccnz qa_nokm')
            a(f's_mov_b32 s{wRDY}, 1')
            km_loads()
            a.label('qa_nokm')
    a(f's_and_b32 s{sT0}, s{wS}, {RM}')
    a(f's_lshl_b32 s{sT0}, s{sT0}, 18')
    a(f's_lshl_b32 s{sT1}, s{sH}, 13')
    a(f's_add_u32 s{sT0}, s{sT0}, s{sT1}')
    a(f's_lshl_b32 s{sT1}, s{sW}, 10')
    a(f's_add_u32 s{sT2}, s{sT0}, s{sT1}')
    a(f's_add_u32 s{sT3}, s{sT2}, s{sT1}')
    a('s_barrier')
    for X,base in ((1,KF),(0,QF_)):
        for mu in range(2):
            a0=ACC+((X*2+0)*2+mu)*4; a1=ACC+((X*2+1)*2+mu)*4
            for r in range(4): a(f'v_cvt_pk_bf16_f32 v{a0+r}, v{a0+r}, v{a1+r}')
            a(f's_add_u32 s{sT0}, s{sT2}, {base+mu*4096}')
            a(f'buffer_store_dwordx4 v[{a0}:{a0+3}], v{vL}, {W}, s{sT0} offen'+(' sc1' if (X or int(os.environ.get('QS','0'))) else ''))
    a(f's_add_u32 s{sT0}, s{sT3}, {VF}')
    for tau in range(2):
        a0=ACC+((4+tau)*2+0)*4; a1=ACC+((4+tau)*2+1)*4
        a(f'v_cvt_pk_bf16_f32 v{a0}, v{a0}, v{a0+1}'); a(f'v_cvt_pk_bf16_f32 v{a0+1}, v{a0+2}, v{a0+3}')
        a(f'v_cvt_pk_bf16_f32 v{a0+2}, v{a1}, v{a1+1}'); a(f'v_cvt_pk_bf16_f32 v{a0+3}, v{a1+2}, v{a1+3}')
        a(f'buffer_store_dwordx4 v[{a0}:{a0+3}], v{vL}, {W}, s{sT0} offen offset:{tau*1024} sc1')
    a(f's_lshl_b32 s{wKFL}, s{sH}, 8')
    a(f's_lshl_b32 s{sT1}, s{wS}, 2')
    a(f's_add_u32 s{wKFL}, s{wKFL}, s{sT1}')
    a(f's_add_u32 s{wKFL}, s{wKFL}, s{sW}')
    a(f's_add_u32 s{wKFL}, s{wKFL}, {KVFLAG}')
    a(f's_mov_b32 s{sT0}, s{wBa}'); a(f's_mov_b32 s{wBa}, s{wBb}'); a(f's_mov_b32 s{wBb}, s{sT0}')
    a(f's_add_u32 s{wS}, s{wS}, 2')
    a(f's_cmp_lt_i32 s{wA}, 0')
    a('s_cbranch_scc0 qa_att2')
    a('s_waitcnt vmcnt(0)')
    bflag(wKFL)
    a(f's_add_u32 s{wA}, s{wA}, 2')
    a('s_branch qa_loop')
    a.label('qa_last')
    a('s_waitcnt vmcnt(0)')
    bflag(wOFL)
    a('s_branch qa_end')
    a.label('qa_noq')
    for g in attd:
        for o in g: a(o)
    a('s_waitcnt vmcnt(6)')
    bflag(wOFL)
    a('s_waitcnt vmcnt(1)')
    a('s_barrier')
    a.label('qa_att2')
    Q=64; K=16; V=80; SX=48; SM=56; LA=60; PX=120; PM=124; T=118
    OA=16; VMp=32; OUT=40
    for u in range(4): a(f'ds_read_b128 v[{Q+4*u}:{Q+4*u+3}], v4 offset:{u*1024}')
    for f in range(8): a(f'ds_read_b128 v[{K+4*f}:{K+4*f+3}], v5 offset:{f*1024}')
    a('s_waitcnt lgkmcnt(4)')
    for t in range(4): a(f'ds_read_b128 v[{V+4*t}:{V+4*t+3}], v6 offset:{t*1024}')
    for mu in range(2):
        if mu: a('s_waitcnt lgkmcnt(4)')
        for u in range(4):
            c='0' if u==0 else f'v[{SX+4*mu}:{SX+4*mu+3}]'
            a(f'v_mfma_f32_16x16x32_bf16 v[{SX+4*mu}:{SX+4*mu+3}], v[{K+16*mu+4*u}:{K+16*mu+4*u+3}], v[{Q+4*u}:{Q+4*u+3}], {c}')
    for i in range(8):
        a(f'v_cndmask_b32 v{SX+i}, v{NEG}, v{SX+i}, s[{wMASK+2*i}:{wMASK+2*i+1}]')
    a(f'v_max3_f32 v{T}, v{SX}, v{SX+1}, v{SX+2}')
    a(f'v_max3_f32 v{T+1}, v{SX+3}, v{SX+4}, v{SX+5}')
    a(f'v_max3_f32 v{T}, v{T}, v{SX+6}, v{SX+7}')
    a(f'v_max_f32 v{T}, v{T}, v{T+1}')
    a(f's_cmp_eq_u32 s{wRDY}, 1')
    a('s_cbranch_scc1 att_rdy')
    a.label('att_poll')
    a(f'buffer_load_dword v{FL}, v{FLO}, {W}, s{wRF} offen sc1')
    a(f's_add_u32 s{sSP}, s{sSP}, 1')
    a('s_waitcnt vmcnt(0)')
    a(f'v_cmp_ge_i32 vcc, s{wA}, v{FL}')
    a('s_cbranch_vccz att_go')
    a(f's_cmp_lt_i32 s{wKFL}, 0')
    a('s_cbranch_scc1 att_nk')
    bflag(wKFL)
    a(f's_mov_b32 s{wKFL}, -1')
    a.label('att_nk')
    a(f's_cmp_gt_u32 s{sSP}, {SPIN_MAX}')
    a('s_cbranch_scc1 att_go')
    a('s_sleep 1')
    a('s_branch att_poll')
    a.label('att_go')
    lstamp(a,0)
    km_loads()
    a('s_waitcnt vmcnt(0)')
    a('s_branch att_have')
    a.label('att_rdy')
    a('s_waitcnt vmcnt(6)')
    a.label('att_have')
    lstamp(a,1)
    for u in range(4):
        c='0' if u==0 else f'v[{SM}:{SM+3}]'
        a(f'v_mfma_f32_16x16x32_bf16 v[{SM}:{SM+3}], v[{KMr+4*u}:{KMr+4*u+3}], v[{Q+4*u}:{Q+4*u+3}], {c}')
    for t in range(4):
        a(f'v_mov_b32 v{VMp+2*t}, v{VMr+t}')
        a(f'v_mov_b32 v{VMp+2*t+1}, 0')
    a(f'v_max3_f32 v{T}, v{T}, v{SM}, v{SM+1}')
    xlane_reduce(a,'v_max_f32',T,T+1)
    a(f'v_mul_f32 v{T}, s{wC}, v{T}')
    scs=[SX+i for i in range(8)]+[SM,SM+1]
    for r in scs: a(f'v_fma_f32 v{r}, v{r}, s{wC}, -v{T}')
    for r in scs: a(f'v_exp_f32 v{r}, v{r}')
    for i in range(4): a(f'v_cvt_pk_bf16_f32 v{PX+i}, v{SX+2*i}, v{SX+2*i+1}')
    a(f'v_cvt_pk_bf16_f32 v{PM}, v{SM}, v{SM+1}')
    a(f'v_mov_b32 v{PM+1}, 0')
    a('s_waitcnt lgkmcnt(0)')
    a(f'v_mfma_f32_16x16x32_bf16 v[{LA}:{LA+3}], v[{ONES}:{ONES+3}], v[{PX}:{PX+3}], 0')
    for t in range(4):
        a(f'v_mfma_f32_16x16x32_bf16 v[{OA+4*t}:{OA+4*t+3}], v[{V+4*t}:{V+4*t+3}], v[{PX}:{PX+3}], 0')
    a(f'v_mfma_f32_16x16x16_bf16 v[{LA}:{LA+3}], v[{ONES}:{ONES+1}], v[{PM}:{PM+1}], v[{LA}:{LA+3}]')
    for t in range(4):
        a(f'v_mfma_f32_16x16x16_bf16 v[{OA+4*t}:{OA+4*t+3}], v[{VMp+2*t}:{VMp+2*t+1}], v[{PM}:{PM+1}], v[{OA+4*t}:{OA+4*t+3}]')
    a(f's_lshl_b32 s{sT0}, s{wA}, 18')
    a(f's_lshl_b32 s{sT1}, s{wNU}, 17')
    a(f's_add_u32 s{sT0}, s{sT0}, s{sT1}')
    a(f's_lshl_b32 s{sT1}, s{sH}, 12')
    a(f's_add_u32 s{sT0}, s{sT0}, s{sT1}')
    a(f's_lshl_b32 s{sT1}, s{wEH}, 11')
    a(f's_add_u32 s{sT0}, s{sT0}, s{sT1}')
    a(f's_add_u32 s{sT0}, s{sT0}, {OF}')
    a(f'v_rcp_f32 v{LA}, v{LA}')
    for i in range(16): a(f'v_mul_f32 v{OA+i}, v{OA+i}, v{LA}')
    for i in range(8): a(f'v_cvt_pk_bf16_f32 v{OUT+i}, v{OA+2*i}, v{OA+2*i+1}')
    for z in range(2):
        a(f'buffer_store_dwordx4 v[{OUT+4*z}:{OUT+4*z+3}], v{vL}, {W}, s{sT0} offen offset:{z*1024} sc1')
    lstamp(a,2)
    a(f's_cmp_lt_i32 s{wKFL}, 0')
    a('s_cbranch_scc1 att_nk2')
    a('s_waitcnt vmcnt(2)')
    bflag(wKFL)
    a.label('att_nk2')
    a(f's_lshl_b32 s{wOFL}, s{wA}, 1')
    a(f's_add_u32 s{wOFL}, s{wOFL}, s{wNU}')
    a(f's_add_u32 s{wOFL}, s{wOFL}, 1')
    a(f's_add_u32 s{wA}, s{wA}, 2')
    a('s_branch qa_loop')
    a.label('qa_end')
    lstamp(a,3)
    ldump(a,4)
    rtstamp(a,3)
    a('s_branch main_done')
```

```python
from common import *
import os

sWS=24; sDBG=28; sWQ=32; sWK=36; sWV=40; sWO=44; sM0=48
sMODE=52; sROLE=53; sW=54; sH=55; sSLOT=56; sXCC=57; sLB=58; sT0=59; sT1=60; sT2=61; sT3=62
sMB=3; MBOX=0x18000
sKT=64
L_M=0x0; L_K=0x2000; L_V=0x4000; L_QK=0x6000; L_SEL=0x7400; L_WO=0x8000
QK_RS=544
SPIN_MAX=1<<22
QORD=[[0,1,2,3],[1,0,2,3],[2,0,1,3],[3,0,1,2]]

def srd4(b): return f's[{b}:{b+3}]'

def interleave(a, main, side, start=0, per=1):
    side=list(side)
    for k,m in enumerate(main):
        a(m)
        if k>=start:
            for _ in range(per):
                if side: a(side.pop(0))
    for s_ in side: a(s_)


def wreg(X, tau, j):
    off=(tau*8+j)*8
    return ('a',X*128+off) if X<2 else ('v',128+off)

def gen_common(a, label):
    kernel_head(a,label)
    a('s_cmp_ge_u32 s2, 0' if os.environ.get('EMPTY')=='1' else 's_cmp_ge_u32 s2, 256')
    a('s_cbranch_scc1 main_done')
    a(f's_load_dwordx8 s[8:15], s[0:1], {KA["mem0"]}')
    a(f's_load_dwordx2 s[16:17], s[0:1], {KA["Wo"]}')
    a(f's_load_dwordx4 s[20:23], s[0:1], {KA["dbg"]}')
    a(f's_getreg_b32 s{sXCC}, hwreg(HW_REG_XCC_ID)')
    a(f's_and_b32 s{sXCC}, s{sXCC}, 7')
    a('v_lshrrev_b32 v1, 6, v0')
    a(f'v_readfirstlane_b32 s{sW}, v1')
    if int(os.environ.get('IPF','1')):
        a('s_getpc_b64 s[4:5]')
        a.label('ipf_base')
        a('s_lshr_b32 s6, s2, 3')
        a('s_lshl_b32 s6, s6, 12')
        a('v_lshl_add_u32 v2, v0, 4, s6')
        a('v_min_u32 v2, code_end-ipf_base-16, v2')
        a('v_mov_b32 v3, s5')
        a('v_add_co_u32 v2, vcc, s4, v2')
        a('v_addc_co_u32 v3, vcc, 0, v3, vcc')
        a('global_load_dwordx4 v[252:255], v[2:3], off')
    a('v_and_b32 v0, 63, v0')
    a('s_waitcnt lgkmcnt(0)')
    srd(a,sWS,22,WS_BYTES); srd(a,sDBG,20,256)
    srd(a,sWQ,10,4<<20); srd(a,sWK,12,4<<20); srd(a,sWV,14,4<<20); srd(a,sWO,16,4<<20); srd(a,sM0,8,8192)
    a(f's_lshl_b32 s{sMB}, s2, 7')
    a(f's_add_u32 s{sMB}, s{sMB}, {MBOX}')
    a(f's_cmp_lg_u32 s{sW}, 0')
    a('s_cbranch_scc1 role_wait')
    a(f's_mov_b32 s{sT0}, s{sXCC}')
    if os.environ.get('SCATTER'): a(f's_lshr_b32 s{sT0}, s2, 5')
    if os.environ.get('SCATTER2'): a(f's_mov_b32 s{sT0}, 3')
    a(f's_mov_b32 s{sT2}, 0')
    a('s_mov_b64 exec, 1')
    a.label('role_loop')
    a(f's_cmp_eq_u32 s{sT0}, 0')
    a('s_cbranch_scc1 role_tk')
    a('v_mov_b32 v1, 0')
    a(f'buffer_store_dword v1, off, {srd4(sWS)}, s{sMB} sc1')
    a('s_waitcnt vmcnt(0)')
    a.label('role_tk')
    a('v_mov_b32 v1, 1')
    a(f's_lshl_b32 s{sT1}, s{sT0}, 2')
    a(f's_add_u32 s{sT1}, s{sT1}, 144')
    a(f's_cmp_eq_u32 s{sT0}, 0')
    a(f's_cselect_b32 s{sT1}, 0, s{sT1}')
    a(f'buffer_atomic_add v1, off, {srd4(sDBG)}, s{sT1} sc0')
    a('s_waitcnt vmcnt(0)')
    a(f'v_readfirstlane_b32 s{sT1}, v1')
    a(f's_cmp_lt_u32 s{sT1}, 32')
    a('s_cbranch_scc1 role_got')
    a(f's_add_u32 s{sT0}, s{sT0}, 1')
    a(f's_and_b32 s{sT0}, s{sT0}, 7')
    a(f's_add_u32 s{sT2}, s{sT2}, 1')
    a(f's_cmp_lt_u32 s{sT2}, 8')
    a('s_cbranch_scc1 role_loop')
    a(f's_mov_b32 s{sT0}, 8')
    a(f's_mov_b32 s{sT1}, 0')
    a.label('role_got')
    a(f's_lshl_b32 s{sT0}, s{sT0}, 5')
    a(f's_add_u32 s{sT0}, s{sT0}, s{sT1}')
    a(f'v_mov_b32 v1, s{sT0}')
    a('v_mov_b32 v2, 0')
    a('ds_write_b32 v2, v1')
    a('s_mov_b64 exec, -1')
    a('s_waitcnt lgkmcnt(0)')
    a.label('role_wait')
    a('s_barrier')
    a('v_mov_b32 v2, 0')
    a('ds_read_b32 v1, v2')
    a('s_waitcnt lgkmcnt(0)')
    a(f'v_readfirstlane_b32 s{sROLE}, v1')
    a('s_barrier')
    a(f's_cmp_ge_u32 s{sROLE}, 0' if os.environ.get('EMPTY')=='2' else f's_cmp_ge_u32 s{sROLE}, 256')
    a('s_cbranch_scc1 main_done')
    a(f's_lshl_b32 s{sLB}, s{sW}, 15')
    a(f's_add_u32 s{sLB}, s{sLB}, {L_WO}')
    a(f's_cmp_lt_u32 s{sROLE}, 32')
    a('s_cbranch_scc1 rec_start')
    a('s_branch work_start')

def gen_loader(a, tag, rot_is_wave):
    for j in range(8):
        if rot_is_wave:
            tab=sum((2*QORD[w][j>>1]+(j&1))<<(4*w) for w in range(4))
            a(f's_lshl_b32 s{sT0}, s{sW}, 2')
            a(f's_lshr_b32 s{sT0}, {tab}, s{sT0}')
            a(f's_and_b32 s{sT0}, s{sT0}, 7')
            a(f's_lshl_b32 s{sKT+j}, s{sT0}, 19')
        else:
            a(f's_mov_b32 s{sKT+j}, {j<<19}')
    a('v_bfe_u32 v2, v0, 2, 1')
    a('v_bfe_u32 v3, v0, 4, 1')
    a('v_lshl_add_u32 v2, v3, 1, v2')
    a('v_bfe_u32 v3, v0, 3, 1')
    a('v_lshl_add_u32 v2, v3, 2, v2')
    a('v_bfe_u32 v3, v0, 5, 1')
    a('v_lshl_add_u32 v2, v3, 3, v2')
    a('v_lshlrev_b32 v1, 13, v2')
    a('v_lshlrev_b32 v3, 1, v3')
    a('v_xor_b32 v3, v3, v0')
    a('v_and_b32 v3, 3, v3')
    a('v_lshl_add_u32 v1, v3, 4, v1')
    a(f's_lshl_b32 s{sT0}, s{sH}, 8')
    a(f's_lshl_b32 s{sT1}, s{sW}, 6')
    a(f's_add_u32 s{sT0}, s{sT0}, s{sT1}')
    a(f'v_add_u32 v1, s{sT0}, v1')
    a('v_bfe_u32 v2, v0, 5, 1')
    a('v_lshlrev_b32 v4, 10, v2')
    a('v_bfe_u32 v2, v0, 3, 1')
    a('v_mul_u32_u24 v2, 544, v2')
    a('v_add_u32 v4, v4, v2')
    a('v_bfe_u32 v2, v0, 4, 1')
    a('v_lshl_add_u32 v4, v2, 7, v4')
    a('v_bfe_u32 v2, v0, 2, 1')
    a('v_lshl_add_u32 v4, v2, 6, v4')
    a('v_and_b32 v2, 3, v0')
    a('v_lshl_add_u32 v4, v2, 3, v4')
    a(f'v_add_u32 v4, s{sLB}, v4')
    a('v_xor_b32 v5, 32, v4')
    srds=[sWQ,sWK,sWV]
    def issue(u):
        X,j=u>>3,u&7
        for i in range(4):
            a(f's_add_u32 m0, s{sLB}, {j*4096+i*1024}')
            a(f's_add_u32 s{sT0}, s{sKT+j}, {i*131072}')
            a(f'buffer_load_dwordx4 v1, {srd4(srds[X])}, s{sT0} offen lds')
    def consume(u):
        X,j=u>>3,u&7
        for tau in range(2):
            k,b=wreg(X,tau,j)
            for hh in range(2):
                for y in range(2):
                    a(f'ds_read_b64_tr_b16 {k}[{b+4*hh+2*y}:{b+4*hh+2*y+1}], v{4+tau} offset:{j*4096+hh*2048+y*256}')
    return issue, consume


def coop_addrs(a, D, A, strides, pats, col_s=None):
    a('v_lshrrev_b32 v16, 4, v0')
    a('v_and_b32 v17, 15, v0')
    a('v_and_b32 v18, 1, v16'); a('v_lshlrev_b32 v18, 1, v18')
    a('v_xor_b32 v17, v17, v18')
    a(f's_lshl_b32 s{sT0}, s{sW}, 4')
    a(f'v_add_u32 v16, s{sT0}, v16')
    for k,st in enumerate(strides):
        a(f's_mov_b32 s{sT0}, {st}')
        a(f'v_mul_lo_u32 v18, v16, s{sT0}')
        if k==0 and col_s is not None: a(f'v_add_u32 v18, s{col_s}, v18')
        for i in range(4):
            a(f'v_xor_b32 v19, {i<<2}, v17')
            a(f'v_lshl_add_u32 v{D+4*k+i}, v19, 4, v18')
            if i: a(f'v_add_u32 v{D+4*k+i}, {4*i*st}, v{D+4*k+i}')
    for k,pat in enumerate(pats):
        if pat=='R': b16,rb3,rb2=3,5,4
        elif pat=='H': b16,rb3,rb2=5,3,4
        else:        b16,rb3,rb2=4,5,3
        r=A+2*k
        a(f'v_bfe_u32 v2, v0, {b16}, 1'); a(f'v_lshlrev_b32 v{r}, 12, v2')
        a(f'v_bfe_u32 v2, v0, {rb3}, 1'); a(f'v_lshl_add_u32 v{r}, v2, 11, v{r}'); a('v_lshlrev_b32 v3, 3, v2')
        a(f'v_bfe_u32 v2, v0, {rb2}, 1'); a(f'v_lshl_add_u32 v{r}, v2, 10, v{r}'); a('v_lshl_add_u32 v3, v2, 2, v3')
        a('v_bfe_u32 v2, v0, 2, 1'); a(f'v_lshl_add_u32 v{r}, v2, 8, v{r}'); a('v_lshl_add_u32 v3, v2, 1, v3')
        a('v_bfe_u32 v2, v0, 1, 1')
        a(f's_lshl_b32 s{sT0}, s{sW}, 2')
        a(f'v_add_u32 v2, s{sT0}, v2')
        a('v_xor_b32 v2, v2, v3')
        a(f'v_lshl_add_u32 v{r}, v2, 4, v{r}')
        a('v_and_b32 v2, 1, v0')
        a(f'v_lshl_add_u32 v{r}, v2, 3, v{r}')
        a(f'v_add_u32 v{r}, {L_WO}, v{r}')
        a(f'v_xor_b32 v{r+1}, 32, v{r}')

def coop_issue(a, u, dreg, srd_, soff_expr):
    for l in soff_expr: a(l)
    for i in range(4):
        a(f's_add_u32 m0, s{sLB}, {(u&7)*16384+i*1024}')
        a(f'buffer_load_dwordx4 v{dreg+i}, {srd_}, s{sT0} offen lds')

def coop_reads(a, u, areg, hi, dst):
    sl=u&7
    for tau in range(2):
        k,b=dst(tau)
        ad=(areg if sl<4 else hi)+tau
        for hh in range(2):
            for y in range(2):
                a(f'ds_read_b64_tr_b16 {k}[{b+4*hh+2*y}:{b+4*hh+2*y+1}], v{ad} offset:{(sl&3)*16384+hh*8192+y*512}')
```

```python
from asmlib import *

NAME='adaLN_cond__memory_aug_recurrent_mem_tr__glu_gated_bilinear__prompt'
KA=dict(x=0,mem0=8,Wq=16,Wk=24,Wv=32,Wo=40,seg=48,Bx=56,wg=64,wu=72,wd=80,c=88,wmod=96,out=104,dbg=112,ws=120)
WS_BYTES=268435456
FLAGS=0x700000; KVFLAG=FLAGS; RECFLAG=FLAGS+0x2000
MOD=0x10000
MRING=0x20000
PRING=0x40000
H1F=0x100000
X1=0x300000
H2F=0x500000
HH=0x800000
QF=0x1000000
KF=0x2000000
VF=0x3000000
OF=0x4000000
KM=0x5100000
VM=0x5800000

def srd(a, d, ptr, nbytes):
    a(f's_mov_b32 s{d}, s{ptr}')
    a(f's_and_b32 s{d+1}, s{ptr+1}, 0xffff')
    a(f's_mov_b32 s{d+2}, {nbytes}')
    a(f's_mov_b32 s{d+3}, 0x00020000')

def kernel_head(a, label):
    a('.p2align 8')
    a(f'.globl {label}')
    a(f'.type {label},@function')
    a.label(label)

def kernel_desc(label, vgpr, sgpr, accum):
    return f'''.p2align 6
.amdhsa_kernel {label}
  .amdhsa_next_free_vgpr {vgpr}
  .amdhsa_next_free_sgpr {sgpr}
  .amdhsa_accum_offset {accum}
  .amdhsa_group_segment_fixed_size 0
  .amdhsa_kernarg_size 128
  .amdhsa_user_sgpr_count 2
  .amdhsa_user_sgpr_kernarg_segment_ptr 1
  .amdhsa_system_sgpr_workgroup_id_x 1
  .amdhsa_float_denorm_mode_32 3
.end_amdhsa_kernel
'''

def round_bf16(a, r, tmp):
    a(f'v_cvt_pk_bf16_f32 v{tmp}, v{r}, v{r}')
    a(f'v_lshlrev_b32 v{r}, 16, v{tmp}')

def round_bf16_pair(a, r0, r1, tmp):
    a(f'v_cvt_pk_bf16_f32 v{tmp}, v{r0}, v{r1}')
    a(f'v_lshlrev_b32 v{r0}, 16, v{tmp}')
    a(f'v_and_b32 v{r1}, 0xffff0000, v{tmp}')

def xlane_reduce(a, op, r, t):
    a(f'v_mov_b32 v{t}, v{r}')
    a(f'v_permlane16_swap_b32 v{t}, v{r}')
    a(f'{op} v{r}, v{t}, v{r}')
    a(f'v_mov_b32 v{t}, v{r}')
    a(f'v_permlane32_swap_b32 v{t}, v{r}')
    a(f'{op} v{r}, v{t}, v{r}')

import os as _os
RT=int(_os.environ.get('RT','0'))
def rtstamp(a, idx, role_s=53, wave_s=54, ws=24, vt=127, idx_s=None):
    if not RT: return
    if RT==4:
        l=a.newlabel('rt')
        a(f's_cmp_lg_u32 s{wave_s}, 0'); a(f's_cbranch_scc1 {l}')
        a('s_memrealtime s[4:5]')
        a(f's_cmp_lt_u32 s{role_s}, 32'); a(f's_cselect_b32 s6, {16+idx*4}, {40+idx*4}')
        a('s_waitcnt lgkmcnt(0)')
        a(f'v_mov_b32 v{vt}, s4')
        a('s_mov_b64 exec, 1')
        a(f'buffer_atomic_umax v{vt}, off, s[28:31], s6')
        a('s_mov_b64 exec, -1')
        a('s_waitcnt vmcnt(0)')
        a.label(l)
        return
    l=a.newlabel('rt')
    a(f's_cmp_lg_u32 s{wave_s}, 0')
    a(f's_cbranch_scc1 {l}')
    a('s_memrealtime s[4:5]')
    a(f's_lshl_b32 s6, s{role_s}, 8')
    a(f's_add_u32 s6, s6, {0x6200000+idx*4}')
    if idx_s is not None:
        a(f's_lshl_b32 s7, s{idx_s}, 2'); a('s_add_u32 s6, s6, s7')
    a('s_waitcnt lgkmcnt(0)')
    a(f'v_mov_b32 v{vt}, s4')
    a('s_mov_b64 exec, 1')
    a(f'buffer_store_dword v{vt}, off, s[{ws}:{ws+3}], s6')
    a('s_mov_b64 exec, -1')
    a('s_waitcnt vmcnt(0)')
    a.label(l)

def lstamp(a, k):
    if RT==3: a(f's_memrealtime s[{14+2*k}:{15+2*k}]')
def ldump(a, n, role_s=53, wave_s=54, ws=24):
    if RT!=3: return
    l=a.newlabel('ld')
    a('s_waitcnt lgkmcnt(0)')
    a('s_mov_b64 exec, 1')
    a(f's_lshl_b32 s7, s{wave_s}, 5')
    for k in range(n):
        a(f's_lshl_b32 s6, s{role_s}, 8'); a(f's_add_u32 s6, s6, {0x6200000+(8+k)*4}'); a('s_add_u32 s6, s6, s7')
        a(f'v_mov_b32 v126, s{14+2*k}')
        a(f'buffer_store_dword v126, off, s[{ws}:{ws+3}], s6')
    a('s_mov_b64 exec, -1')
    a.label(l)

RM=int(_os.environ.get('RM','63'))
if RM==15:
    QF=0x1000000; KF=0x1400000; VF=0x1800000; KM=0x1C20000; OF=0x2000000
```

```python
from common import *
from k_main import *
import os
E=lambda k,d: int(os.environ.get(k,str(d)))

R_K=0x0
R_V=0x2000
R_M=0x4000
R_QK=0x6000
R_O=0x7200
vT=0; vIDX=1; vL16=2; vQKW=3; vQR=4; vKR=5; vOW=6; vWO=7; vPST=8; vMST=9; NEG1=10; PM=14
MF=16; QA=48; KA_=56; VA=64; VC=72; ONES=80; VM0=84; VM1=86; KX=88
QFR=[16,20,120,124]
sS=72; sMa=73; sMb=74; sMc=75; sPa=76; sPb=77; sPc=78; sMa2=79; sKVM=80; sODD=82; sSPIN=84; sKB=85; sC=86
sU0=88; sU1=89; sKO=90; sVO=91; sFV=93; sHW=94; sRO=95
sPUB=96; sPR=97; sRG=98; sRG2=99; sHA=92; sHI=70; sFLA=100; sH13=101; sPUB0=63; sPq=64
sPM=68
sTS=4; sACC=32
STSEL=[x for x in os.environ.get('STSEL','').split(',') if x]
SOLO=E('SOLO',0)
SNAP=E('SNAP',0)
ABL=[x for x in os.environ.get('ABL','').split(',') if x]
HINT=0x3000
def wo_reg(f):
    j,tau=f>>1,f&1
    return wreg(2,tau,j)[1]

def delay(a,cyc):
    n=cyc//4
    while n>0:
        c=min(n,16); a(f's_nop {c-1}'); n-=c

def wo_lds(f):
    c,tile,t2=f>>2,(f>>1)&1,f&1
    return ((c-2)*2+t2)*16384+tile*2048

def gen_rec(a, stamps=False):
    global SPIN_MAX
    if stamps: SPIN_MAX=1<<30
    W=srd4(sWS)
    a.label('rec_start')
    a(f's_mov_b32 s{sH}, s{sROLE}')
    rtstamp(a,0)
    D1,D2,A0,A2,H0,H2=96,100,112,114,116,118
    a(f's_lshl_b32 s{sLB}, s{sW}, 12')
    a(f's_add_u32 s{sLB}, s{sLB}, {L_WO}')
    a(f's_lshl_b32 s13, s{sH}, 8')
    a(f's_lshl_b32 s12, s{sH}, 17')
    coop_addrs(a,D1,A0,[8192,1024],[],col_s=13)
    q=[]
    def issue(u):
        X,j=u>>3,u&7
        if X<3: coop_issue(a,u,D1,srd4([sWQ,sWK,sWV][X]),[f's_mov_b32 s{sT0}, {j<<19}'])
        else: coop_issue(a,u,D2,srd4(sWO),[f's_add_u32 s{sT0}, s12, {(j&1)*65536+(j>>1)*256}'])
        q.extend([('u',u)]*4)
    def wait_for(tag):
        idx=max(i for i,t in enumerate(q) if t==tag)
        a(f's_waitcnt vmcnt({len(q)-1-idx})')
        del q[:idx+1]
    def vm(text,tag):
        a(text); q.append(tag)
    for u in range(8): issue(u)
    coop_addrs(a,D1,A0,[],['H','O'])
    for i in range(4): a(f'v_add_u32 v{H0+i}, 0x10000, v{A0+i}')
    a(f'v_lshlrev_b32 v{vL16}, 4, v0')
    a(f'v_add_u32 v{vWO}, s{sLB}, v{vL16}')
    a(f'v_add_u32 v{vWO}, 0x10000, v{vWO}')
    for r in range(NEG1,NEG1+4): a(f'v_mov_b32 v{r}, -1')
    a('v_and_b32 v19, 1, v0')
    a(f'v_mov_b32 v{vIDX}, 0x4444')
    a('v_mov_b32 v16, 0xeeee')
    a('v_cmp_eq_u32 vcc, 1, v19')
    a(f'v_cndmask_b32 v{vIDX}, v{vIDX}, v16, vcc')
    a(f's_mov_b32 s{sODD}, 0xaaaaaaaa'); a(f's_mov_b32 s{sODD+1}, 0xaaaaaaaa')
    a(f's_mov_b32 s{sPM}, 0x000f000f'); a(f's_mov_b32 s{sPM+1}, 0x000f000f')
    a('v_and_b32 v16, 15, v0')
    a('v_lshrrev_b32 v17, 4, v0')
    a(f'v_mul_u32_u24 v{vQKW}, {2*QK_RS}, v17')
    a(f'v_lshl_add_u32 v{vQKW}, v16, 2, v{vQKW}')
    a(f's_lshl_b32 s{sT1}, s{sW}, 6')
    a(f's_add_u32 s{sT1}, s{sT1}, {R_QK}')
    a(f'v_add_u32 v{vQKW}, s{sT1}, v{vQKW}')
    a('v_lshrrev_b32 v18, 1, v16')
    a(f'v_mul_u32_u24 v{vQR}, {QK_RS}, v18')
    a(f'v_lshl_add_u32 v{vQR}, v17, 4, v{vQR}')
    a(f'v_add_u32 v{vQR}, {R_QK}, v{vQR}')
    a('v_lshrrev_b32 v18, 2, v16')
    a('v_lshlrev_b32 v18, 1, v18')
    a('v_add_u32 v18, v18, v19')
    a(f'v_mul_u32_u24 v{vKR}, {QK_RS}, v18')
    a(f'v_lshl_add_u32 v{vKR}, v17, 4, v{vKR}')
    a(f'v_add_u32 v{vKR}, {R_QK+256}, v{vKR}')
    a('v_lshrrev_b32 v18, 1, v17')
    a(f'v_lshlrev_b32 v{vOW}, 8, v18')
    a('v_lshrrev_b32 v18, 1, v16')
    a(f'v_lshl_add_u32 v{vOW}, v18, 5, v{vOW}')
    a('v_and_b32 v18, 1, v17')
    a(f'v_lshl_add_u32 v{vOW}, v18, 4, v{vOW}')
    a(f'v_lshl_add_u32 v{vOW}, v19, 3, v{vOW}')
    a(f's_lshl_b32 s{sT1}, s{sW}, 9')
    a(f's_add_u32 s{sT1}, s{sT1}, {R_O}')
    a(f'v_add_u32 v{vOW}, s{sT1}, v{vOW}')
    a('v_lshrrev_b32 v18, 3, v0')
    a(f'v_lshlrev_b32 v{vPST}, 11, v18')
    a('v_and_b32 v18, 7, v0')
    a(f'v_lshl_add_u32 v{vPST}, v18, 3, v{vPST}')
    a(f's_lshl_b32 s{sT1}, s{sW}, 14')
    a(f's_lshl_b32 s{sT2}, s{sH}, 6')
    a(f's_add_u32 s{sT1}, s{sT1}, s{sT2}')
    a(f'v_add_u32 v{vPST}, s{sT1}, v{vPST}')
    a('v_lshrrev_b32 v18, 1, v17')
    a(f'v_lshlrev_b32 v{vMST}, 5, v18'); a('v_lshlrev_b32 v24, 10, v18')
    a('v_and_b32 v18, 3, v0')
    a(f'v_lshl_add_u32 v{vMST}, v18, 2, v{vMST}'); a('v_lshl_add_u32 v24, v18, 2, v24')
    a('v_and_b32 v18, 1, v17')
    a(f'v_lshl_add_u32 v{vMST}, v18, 8, v{vMST}'); a('v_lshl_add_u32 v24, v18, 5, v24')
    a(f's_lshr_b32 s{sT1}, s{sH}, 3'); a(f's_lshl_b32 s{sT3}, s{sT1}, 6'); a(f's_lshl_b32 s{sT1}, s{sT1}, 9')
    a(f's_and_b32 s{sT2}, s{sH}, 1'); a(f's_lshl_b32 s{sT2}, s{sT2}, 4')
    a(f's_add_u32 s{sT1}, s{sT1}, s{sT2}'); a(f's_add_u32 s{sT3}, s{sT3}, s{sT2}')
    a(f's_bfe_u32 s{sT2}, s{sH}, 0x20001'); a(f's_lshl_b32 s{sT0}, s{sT2}, 11'); a(f's_lshl_b32 s{sT2}, s{sT2}, 6')
    a(f's_add_u32 s{sT1}, s{sT1}, s{sT2}'); a(f's_add_u32 s{sT3}, s{sT3}, s{sT0}')
    a(f's_lshl_b32 s{sT2}, s{sW}, 11'); a(f's_add_u32 s{sT1}, s{sT1}, s{sT2}')
    a(f's_lshl_b32 s{sT2}, s{sW}, 8'); a(f's_add_u32 s{sT3}, s{sT3}, s{sT2}')
    a(f'v_add_u32 v{vMST}, s{sT1}, v{vMST}')
    vm(f'buffer_load_dword v106, v24, {srd4(sM0)}, s{sT3} offen','m0')
    a('v_mov_b32 v24, 0x3f80'); a('v_mov_b32 v25, 0x3f800000'); a('v_mov_b32 v26, 0x3f803f80')
    a('v_and_b32 v18, 3, v16')
    for d in range(4):
        lo=4*(d&1)+2+(d>>1)
        a(f'v_cmp_eq_u32 vcc, {lo}, v16')
        a(f'v_cndmask_b32 v{ONES+d}, 0, v24, vcc')
        a(f'v_cmp_eq_u32 vcc, {lo+8}, v16')
        a(f'v_cndmask_b32 v{ONES+d}, v{ONES+d}, v25, vcc')
        a('v_cmp_eq_u32 vcc, 0, v18')
        a(f'v_cndmask_b32 v{ONES+d}, v{ONES+d}, v26, vcc')
    for r in (VM0,VM0+1,VM1,VM1+1,PM+1): a(f'v_mov_b32 v{r}, 0')
    a(f's_mov_b32 s{sC}, 0x3e0293ee'); a(f's_mov_b32 s{sC+1}, 0x3e0293ee')
    a(f's_mov_b32 s{sS}, 0')
    a(f's_mov_b32 s{sMa}, {MRING}'); a(f's_mov_b32 s{sMb}, {MRING+8192}'); a(f's_mov_b32 s{sMc}, {MRING+16384}')
    a(f's_mov_b32 s{sPa}, {PRING}'); a(f's_mov_b32 s{sPb}, {PRING+0x40000}'); a(f's_mov_b32 s{sPc}, {PRING+0x80000}')
    a(f's_mov_b32 s{sSPIN}, 0')
    a(f's_lshl_b32 s{sH13}, s{sH}, 13')
    a(f's_lshl_b32 s{sT1}, s{sW}, 11')
    a(f's_add_u32 s{sHW}, s{sH13}, s{sT1}')
    a(f's_add_u32 s{sKO}, s{sHW}, {KF}')
    a(f's_add_u32 s{sVO}, s{sHW}, {VF}')
    a(f's_lshl_b32 s{sRO}, s{sW}, 16')
    a(f's_lshl_b32 s{sT2}, s{sH}, 11')
    a(f's_add_u32 s{sRO}, s{sRO}, s{sT2}')
    a(f's_lshl_b32 s{sFLA}, s{sH}, 7')
    a(f's_add_u32 s{sFLA}, s{sFLA}, {RECFLAG}')
    a(f's_lshl_b32 s{sT2}, s{sW}, 2'); a(f's_add_u32 s{sFLA}, s{sFLA}, s{sT2}')
    a(f's_lshr_b32 s{sPUB}, s{sHW}, 1')
    a(f's_add_u32 s{sPUB0}, s{sPUB}, {KM}')
    a(f's_add_u32 s{sPUB}, s{sPUB}, {KM-(1<<17)}')
    a(f's_mov_b32 s{sFV}, 0')
    a(f's_mov_b32 s{sKB}, 0')
    a(f's_mov_b32 s{sHI}, 0x01010101')
    a(f's_lshl_b32 s{sHA}, s{sH}, 8'); a(f's_add_u32 s{sHA}, s{sHA}, {KVFLAG}')
    for sl in range(3):
        a(f's_add_u32 s{sT1}, s{sHW}, {PRING+sl*0x40000}')
        vm(f'buffer_store_dwordx4 v[{NEG1}:{NEG1+3}], v{vL16}, {W}, s{sT1} offen sc1','i')
        vm(f'buffer_store_dwordx4 v[{NEG1}:{NEG1+3}], v{vL16}, {W}, s{sT1} offen offset:1024 sc1','i')
    vm(f'buffer_store_dword v{NEG1}, v{vMST}, {W}, s{sMb} offen sc1','i')
    vm(f'buffer_store_dword v{NEG1}, v{vMST}, {W}, s{sMc} offen sc1','i')
    a(f'v_lshrrev_b32 v107, 2, v{vL16}')
    def kvdma(f):
        a(f's_lshl_b32 s{sT1}, s{sW}, 11')
        a(f's_add_u32 m0, s{sT1}, {R_K}')
        f(f'buffer_load_dwordx4 v{vL16}, {W}, s{sKO} offen sc1 lds')
        f(f'buffer_load_dwordx4 v{vL16}, {W}, s{sKO} offen offset:1024 sc1 lds')
        a(f's_add_u32 m0, s{sT1}, {R_V}')
        f(f'buffer_load_dwordx4 v{vL16}, {W}, s{sVO} offen sc1 lds')
        f(f'buffer_load_dwordx4 v{vL16}, {W}, s{sVO} offen offset:1024 sc1 lds')
    def poll1(f):
        a(f's_mov_b32 s{sT1}, 192'); f(f'buffer_load_dword v108, off, {srd4(sDBG)}, s{sT1} sc1')
        a(f's_mov_b32 s{sT1}, 64'); f(f'buffer_load_dword v109, off, {srd4(sDBG)}, s{sT1} sc1')
    def poll2(f):
        f(f'buffer_load_dword v110, v107, {W}, s{sHA} offen sc1')
    TMPX=16; TMPW=88
    for u in range(32):
        X,j=u>>3,u&7
        wait_for(('u',u))
        a('s_barrier')
        if u>=1 and u+7<32: issue(u+7)
        if u>=29:
            for tau,b in enumerate((88,120)):
                for hh in range(2): a(f'ds_write_b128 v{vWO}, v[{b+4*hh}:{b+4*hh+3}] offset:{(u-29)*16384+tau*2048+hh*1024}')
            a('s_waitcnt lgkmcnt(0)')
        if u==28:
            for l in xbase(): a(l)
            for x in range(8):
                for hh in range(2): a(f'ds_write_b128 v{vT}, v[{TMPX+8*x+4*hh}:{TMPX+8*x+4*hh+3}] offset:{(x>>1)*16384+(x&1)*2048+hh*1024}')
                if x==3: a('s_waitcnt lgkmcnt(0)')
        if X<2: coop_reads(a,u,A0,H0,lambda tau: wreg(X,tau,j))
        elif X==2:
            done=a.newlabel('wv')
            for w in range(4):
                nx=a.newlabel('wv')
                if w<3:
                    a(f's_cmp_lg_u32 s{sW}, {w}'); a(f's_cbranch_scc1 {nx}')
                sj=2*QORD[w].index(j>>1)+(j&1)
                coop_reads(a,u,A0,H0,lambda tau: ('v',TMPX+8*(2*sj+tau)) if sj<4 else wreg(2,tau,sj))
                if w<3:
                    a(f's_branch {done}'); a.label(nx)
            a.label(done)
        elif u<28: coop_reads(a,u,A2,H2,lambda tau: ('v',wo_reg(((j>>1)*2+tau)*2+(j&1))))
        else: coop_reads(a,u,A2,H2,lambda tau: ('v',(88,120)[tau]))
        a('s_waitcnt lgkmcnt(0)')
        if u==8:
            vm(f'buffer_store_dword v106, v{vMST}, {W}, s{sMa} offen sc1','i')
        if u==17:
            a(f's_cmp_eq_u32 s{sXCC}, 0')
            a(f's_cselect_b32 s{sT0}, 1, 0x10001')
            a(f'v_mov_b32 v106, s{sT0}')
            a(f's_cmp_eq_u32 s{sW}, 0')
            a('s_cselect_b32 exec_lo, 1, 0')
            a('s_mov_b32 exec_hi, 0')
            a(f's_mov_b32 s{sT1}, 64')
            a(f'buffer_atomic_add v106, off, {srd4(sDBG)}, s{sT1}')
            a('s_mov_b64 exec, -1')
        if u==E('PU',27): poll1(lambda t: vm(t,'p'))
    a('s_barrier')
    for tau,b in enumerate((88,120)):
        for hh in range(2): a(f'ds_write_b128 v{vWO}, v[{b+4*hh}:{b+4*hh+3}] offset:{3*16384+tau*2048+hh*1024}')
    rtstamp(a,1)
    a.label('rec_chk')
    a('s_waitcnt vmcnt(0)')
    a(f'v_readfirstlane_b32 s{sT2}, v108')
    a(f'v_readfirstlane_b32 s{sT0}, v109')
    a(f's_add_u32 s{sSPIN}, s{sSPIN}, 1')
    a(f's_cmp_gt_u32 s{sSPIN}, {SPIN_MAX}')
    a('s_cbranch_scc1 rec_chk2')
    a(f's_cmp_lt_u32 s{sT2}, 160')
    a('s_cbranch_scc1 rec_again')
    a(f's_and_b32 s{sT2}, s{sT0}, 0xffff')
    a(f's_cmp_ge_u32 s{sT2}, 32')
    a('s_cbranch_scc1 rec_chk2')
    a.label('rec_again')
    a('s_sleep 8')
    poll1(a)
    a('s_branch rec_chk')
    a.label('rec_chk2')
    poll2(a)
    a(f's_add_u32 s{sSPIN}, s{sSPIN}, 1')
    a('s_waitcnt vmcnt(0)')
    a(f'v_cmp_eq_u32 s[{sKVM}:{sKVM+1}], s{sHI}, v110')
    a(f's_cmp_gt_u32 s{sSPIN}, {SPIN_MAX}')
    a('s_cbranch_scc1 rec_go')
    a(f's_bitcmp1_b64 s[{sKVM}:{sKVM+1}], 0')
    a('s_cbranch_scc0 rec_chk2')
    a.label('rec_go')
    kvdma(a)
    rtstamp(a,3)
    a('s_waitcnt lgkmcnt(0)')
    for t in house_salu(first=True): a(t)
    a(f's_cmp_eq_u32 s{sT0}, 32')
    a('s_cbranch_scc0 rec_slow')
    for w in range(4):
        a(f's_cmp_eq_u32 s{sW}, {w}')
        a(f's_cbranch_scc1 rec_redo_f{w}')
    a.label('rec_slow')
    for w in range(3):
        a(f's_cmp_eq_u32 s{sW}, {w}')
        a(f's_cbranch_scc1 rec_redo_s{w}')
    a('s_branch rec_redo_s3')
    for fast in (True,False):
        for w in range(4):
            gen_loop(a, fast, w, stamps)
    a.label('rec_fin')
    a(f'v_mov_b32 v{KA_+2}, v{VM0}')
    a(f'v_add_f32 v{VA+4}, v{VA+4}, v{VA+5}'); a(f'v_add_f32 v{VA+6}, v{VA+6}, v{VA+7}')
    a(f'v_cvt_pk_bf16_f32 v{KA_+3}, v{VA+4}, v{VA+6}')
    a(f's_add_u32 s{sU0}, s{sPUB0}, {(63&RM)<<17}')
    a(f'buffer_store_dwordx4 v[{KA_}:{KA_+3}], v{vL16}, {W}, s{sU0} offen sc1')
    if stamps:
        a('s_waitcnt lgkmcnt(0)')
        a(f's_sub_u32 s{sACC+14}, s{sSPIN}, s{sACC+14}')
        for k in range(16): a(f'v_writelane_b32 v126, s{sACC+k}, {k}')
        a(f's_lshl_b32 s{sU0}, s{sH}, 8')
        a(f's_lshl_b32 s{sU1}, s{sW}, 6')
        a(f's_add_u32 s{sU0}, s{sU0}, s{sU1}')
        a(f's_add_u32 s{sU0}, s{sU0}, 0x6000000')
        a(f'v_lshrrev_b32 v127, 2, v{vL16}')
        a('s_mov_b64 exec, 0xffff')
        a(f'buffer_store_dword v126, v127, {W}, s{sU0} offen')
        a('s_mov_b64 exec, -1')
    a('s_waitcnt vmcnt(0)')
    a(f'v_mov_b32 v124, 64')
    a('s_mov_b64 exec, 1')
    a(f'buffer_store_dword v124, off, {W}, s{sFLA} sc1')
    a('s_mov_b64 exec, -1')
    rtstamp(a,4)
    if E('WB',0):
        a(f's_cmp_lg_u32 s{sH}, 0')
        a('s_cbranch_scc1 main_done')
        a('s_waitcnt vmcnt(0)')
        a('buffer_wbl2 sc1')
    a('s_branch main_done')

def xreg(x): return [88,96,104,112,120,16,104,112][x]
def xbase(): return [f'v_add_u32 v{vT}, 0xffff0000, v{vWO}']
def x_reads(lo,hi):
    r=[]
    for x in range(lo,hi):
        b=xreg(x)
        r+=[f'ds_read_b128 v[{b}:{b+3}], v{vT} offset:{(x>>1)*16384+(x&1)*2048}', f'ds_read_b128 v[{b+4}:{b+7}], v{vT} offset:{(x>>1)*16384+(x&1)*2048+1024}']
    return r
def zero_acc():
    return [f'v_mov_b64 v[{r}:{r+1}], 0' for r in range(VA+6,QA-2,-2)]
def v_reads(w):
    return [f'ds_read_b128 v[{VC+4*t}:{VC+4*t+3}], v{vL16} offset:{R_V+w*2048+t*1024}' for t in range(2)]
def rot_m():
    return [f's_mov_b32 s{sU0}, s{sMa}', f's_mov_b32 s{sMa}, s{sMb}', f's_mov_b32 s{sMb}, s{sMc}', f's_mov_b32 s{sMc}, s{sU0}', f's_add_u32 s{sMa2}, s{sMa}, 4096']
def house_salu(first=False):
    r=[]
    if not first:
        r+=[f's_mov_b32 s{sU0}, s{sPa}', f's_mov_b32 s{sPa}, s{sPb}', f's_mov_b32 s{sPb}, s{sPc}', f's_mov_b32 s{sPc}, s{sU0}',
            f's_and_b32 s{sU0}, s{sS}, {RM}', f's_lshl_b32 s{sU0}, s{sU0}, 17', f's_add_u32 s{sPUB}, s{sPUB0}, s{sU0}', f's_mov_b32 s{sFV}, s{sS}',
            f's_add_u32 s{sS}, s{sS}, 1']
    if first: r+=[f's_add_u32 s{sMa2}, s{sMa}, 4096']
    r+=[
        f's_add_u32 s{sU1}, s{sS}, 1', f's_min_u32 s{sU1}, s{sU1}, 63',
        f's_and_b32 s{sU0}, s{sU1}, {RM}', f's_lshl_b32 s{sU0}, s{sU0}, 18', f's_add_u32 s{sU0}, s{sU0}, s{sHW}',
        f's_add_u32 s{sKO}, s{sU0}, {KF}', f's_add_u32 s{sVO}, s{sU0}, {VF}',
        f's_add_u32 s{sPR}, s{sPc}, s{sRO}', f's_add_u32 s{sRG}, s{sPa}, s{sRO}']
    r+=[f's_add_u32 s{sPq+c}, s{sPa}, {c*65536}' for c in range(1,4)]
    return r

def gen_loop(a, fast, w, stamps):
    tag=('f' if fast else 's')+str(w)
    sc='' if fast else ' sc1'
    W=srd4(sWS)
    nst=[0]; nall=[0]
    def stamp():
        nall[0]+=1
        if stamps and (not STSEL or str(nall[0]-1) in STSEL):
            k=nst[0]; nst[0]+=1
            return [f'{"s_memrealtime" if SNAP else "s_memtime"} s[{sTS+2*k}:{sTS+2*k+1}]']
        return []
    def emit(lst):
        for t in lst: a(t)
    def sm(X,tau,j):
        k,b=wreg(X,tau,j if X==2 else 2*QORD[w][j>>1]+(j&1))
        if X==2 and j<4: b=xreg(2*j+tau)
        acc=[QA,KA_,VA][X]+4*tau
        return f'v_smfmac_f32_16x16x64_bf16 v[{acc}:{acc+3}], v[{MF+4*j}:{MF+4*j+3}], {k}[{b}:{b+7}], v{vIDX}'
    def moff(j): return R_M+(2*QORD[w][j>>1]+(j&1))*1024
    def gl(b,c):
        return [f'buffer_load_dwordx4 v[{b+4*L}:{b+4*L+3}], v{vL16}, {W}, s{sMa if c<2 else sMa2} offen offset:{(c&1)*2048+L*1024} sc1' for L in range(2)]
    def spin(inc):
        return [f's_add_u32 s{sSPIN}, s{sSPIN}, {inc if stamps else 1}', f's_cmp_gt_u32 s{sSPIN}, {SPIN_MAX}']
    T=vT; C2=PM
    def chk(b):
        return [f'v_max3_u32 v{T}, v{b}, v{b+1}, v{b+2}', f'v_max3_u32 v{C2}, v{b+3}, v{b+4}, v{b+5}',
                f'v_max3_u32 v{T}, v{T}, v{b+6}, v{b+7}', f'v_max_u32 v{T}, v{T}, v{C2}', f'v_cmp_eq_u32 vcc, -1, v{T}']
    a.label(f'rec_redo_{tag}')
    emit(gl(MF,w))
    emit(xbase()+x_reads(0,4)+zero_acc())
    a('s_waitcnt vmcnt(0)')
    emit(v_reads(w))
    a('s_waitcnt lgkmcnt(0)')
    a(f's_branch rec_enter_{tag}')
    a.label(f'rec_g0_{tag}')
    a('s_mov_b64 exec, vcc')
    emit(gl(MF,w))
    a('s_mov_b64 exec, -1')
    emit(spin(1))
    a(f's_cbranch_scc0 rec_enter_{tag}')
    a(f's_branch rec_ok0_{tag}')
    a.label(f'rec_lf_{tag}')
    a(f'v_mov_b32 v{PM}, s{sS}')
    a('s_waitcnt vmcnt(8)')
    a('s_mov_b64 exec, 1')
    a(f'buffer_store_dword v{PM}, off, {W}, s{sFLA} sc1')
    a('s_mov_b64 exec, -1')
    if E('FLM',2)==2: a(f's_branch rec_lfx_{tag}')
    a.label(f'rec_kvw_{tag}')
    a(f's_add_u32 s{sT2}, s{sT2}, 1')
    a(f'v_lshrrev_b32 v{PM}, 2, v{vL16}')
    a(f'buffer_load_dword v{PM}, v{PM}, {W}, s{sHA} offen sc1')
    a('s_waitcnt vmcnt(0)')
    a(f'v_cmp_eq_u32 s[{sKVM}:{sKVM+1}], s{sHI}, v{PM}')
    a(f's_cmp_gt_u32 s{sT2}, {1<<22}')
    a(f's_cbranch_scc1 rec_kvok_{tag}')
    a(f's_bitcmp1_b64 s[{sKVM}:{sKVM+1}], s{sU1}')
    a(f's_cbranch_scc0 rec_kvw_{tag}')
    a(f's_branch rec_kvok_{tag}')
    a('.p2align 6')
    a.label(f'rec_enter_{tag}')
    if SOLO: a('s_waitcnt vmcnt(0)')
    for _ in range(E('SPG',1)):
        emit(chk(MF)); a(f's_branch rec_ok0_{tag}' if SOLO else f's_cbranch_vccz rec_ok0_{tag}')
    emit(chk(MF))
    a(f's_cbranch_vccnz rec_g0_{tag}')
    a.label(f'rec_ok0_{tag}')
    emit(stamp())
    seq=[]; ex={}
    def put(i,*ops): ex.setdefault(i,[]).extend(ops)
    def grp(X,c): return [sm(X,tau,j) for j in (2*c,2*c+1) for tau in range(2)]
    seq+=grp(2,0)+grp(0,0)+grp(1,0)
    seq+=grp(0,1)+grp(0,2)+grp(0,3)
    seq+=grp(1,1)+grp(1,2)+grp(1,3)
    seq+=grp(2,1)
    vv=[sm(2,0,4),sm(2,0,5),sm(2,0,6),sm(2,0,7),sm(2,1,4),sm(2,1,5),sm(2,1,6),sm(2,1,7)]
    seq+=vv[0:6]
    SX=QA; SM=KA_+4; KMF=KX; T2=KA_+2
    def sx(mu,u):
        c = '0' if u==0 else f'v[{SX+4*mu}:{SX+4*mu+3}]'
        f=KX+4*(mu*4+u)
        return f'v_mfma_f32_16x16x32_bf16 v[{SX+4*mu}:{SX+4*mu+3}], v[{f}:{f+3}], v[{QFR[u]}:{QFR[u]+3}], {c}'
    seq+=[sx(0,u) for u in range(4)]+[sx(1,u) for u in range(4)]
    seq+=[vv[6]]
    for u in range(4):
        c='0' if u==0 else f'v[{SM}:{SM+3}]'
        seq.append(f'v_mfma_f32_16x16x32_bf16 v[{SM}:{SM+3}], v[{KMF+4*u}:{KMF+4*u+3}], v[{QFR[u]}:{QFR[u]+3}], {c}')
    seq+=[vv[7]]
    mw=[f'ds_write_b128 v{vL16}, v[{MF}:{MF+3}] offset:{moff(0)}', f'ds_write_b128 v{vL16}, v[{MF+4}:{MF+7}] offset:{moff(1)}']
    put(0,mw[0]); put(1,mw[1])
    B1=E('B1',6)
    mr=[f'ds_read_b128 v[{MF+4*j}:{MF+4*j+3}], v{vL16} offset:{moff(j)}' for j in range(2,8)]
    put(B1,'s_waitcnt lgkmcnt(0)','s_barrier')
    put(B1,mr[0]); put(B1+1,*mr[1:3]); put(B1+2,*mr[3:5]); put(B1+3,mr[5])
    put(11,'s_waitcnt lgkmcnt(5)'); put(13,'s_waitcnt lgkmcnt(4)'); put(15,'s_waitcnt lgkmcnt(0)')
    kx=[f'ds_read_b128 v[{KX+4*f}:{KX+4*f+3}], v{vL16} offset:{R_K+f*1024}' for f in range(8)]
    for f in range(4): put(16+f, kx[f])
    put(10, f's_bitcmp1_b64 s[{sKVM}:{sKVM+1}], s{sU1}', f's_cbranch_scc0 rec_kvw_{tag}', f'rec_kvok_{tag}:')
    put(11, f's_mov_b32 m0, {R_V+w*2048}')
    put(12, f'buffer_load_dwordx4 v{vL16}, {W}, s{sVO} offen sc1 lds')
    put(13, f'buffer_load_dwordx4 v{vL16}, {W}, s{sVO} offen offset:1024 sc1 lds')
    R_F=0x7A00+w*256
    put(8, f'v_lshrrev_b32 v{T}, 2, v{vL16}')
    put(14, f's_mov_b32 m0, {R_F}')
    put(15, f'buffer_load_dword v{T}, {W}, s{sHA} offen sc1 lds')
    put(16,*xbase())
    put(19,'s_waitcnt vmcnt(4)')
    xr=x_reads(4,8)
    for i in range(8): put(20+i, xr[i])
    rs=[f'buffer_store_dwordx4 v[{NEG1}:{NEG1+3}], v{vL16}, {W}, s{sPR} offen{sc}',
        f'buffer_store_dwordx4 v[{NEG1}:{NEG1+3}], v{vL16}, {W}, s{sPR} offen offset:1024{sc}',
        f's_mov_b64 exec, s[{sPM}:{sPM+1}]', f'buffer_store_dword v{NEG1}, v{vMST}, {W}, s{sMc} offen{sc}', 's_mov_b64 exec, -1']
    if E('RSA',1):
        put(E('RS0',20)+(w&1), rs[0]); put(E('RS1',32)+(w&1), rs[1]); put(E('RS2',28),*rs[2:])
    put(9, f'buffer_store_dwordx4 v[120:123], v{vL16}, {W}, s{sPUB} offen sc1')
    FLM=E('FLM',2)
    if FLM==0:
        put(17, f'v_mov_b32 v{PM}, s{sS}')
        put(57, 's_waitcnt vmcnt(8)', 's_mov_b64 exec, 1', f'buffer_store_dword v{PM}, off, {W}, s{sFLA} sc1', 's_mov_b64 exec, -1')
    else:
        if w==0:
            put(17, f'v_mov_b32 v{PM}, s{sFV}')
            put(31, f'v_lshrrev_b32 v{T}, 2, v{vL16}')
            put(33, f's_cmp_lt_u32 s{sS}, {E("LF",56)+1}')
            put(34, 's_cselect_b64 exec, 15, 0' if FLM==2 else 's_mov_b64 exec, 15', f'buffer_store_dword v{PM}, v{T}, {W}, s{sFLA} offen sc1', 's_mov_b64 exec, -1')
        if FLM==2:
            put(55, f's_cmp_ge_u32 s{sS}, {E("LF",56)}')
            put(56, f's_cbranch_scc1 rec_lf_{tag}', f'rec_lfx_{tag}:')
            put(57, f's_cmp_eq_u32 s{sS}, 63')
    def pp(acc,d0,d1):
        return [f'v_add_f32 v{acc}, v{acc}, v{acc+1}', f'v_add_f32 v{acc+2}, v{acc+2}, v{acc+3}',
                f'v_add_f32 v{acc+4}, v{acc+4}, v{acc+5}', f'v_add_f32 v{acc+6}, v{acc+6}, v{acc+7}',
                f'v_cvt_pk_bf16_f32 v{d0}, v{acc}, v{acc+4}', f'v_cvt_pk_bf16_f32 v{d1}, v{acc+2}, v{acc+6}']
    q=pp(QA,QA,QA+1)
    for i in range(6): put(24+i,q[i])
    put(30, f'ds_write2_b32 v{vQKW}, v{QA}, v{QA+1} offset0:0 offset1:{QK_RS//4}')
    qf=[f'ds_read_b128 v[{QFR[u]}:{QFR[u]+3}], v{vQR} offset:{u*64}' for u in range(4)]
    put(35,'s_waitcnt lgkmcnt(1)')
    put(37,'s_waitcnt lgkmcnt(0)','s_barrier'); put(38,*qf[0:2]); put(39,*qf[2:4])
    put(40,*kx[4:6]); put(41,*kx[6:8])
    k=pp(KA_,KA_,KA_+1)
    for i in range(6): put(36+i,k[i])
    put(42, f'ds_write2_b32 v{vQKW}, v{KA_}, v{KA_+1} offset0:64 offset1:{QK_RS//4+64}')
    put(45, 's_waitcnt lgkmcnt(5)')
    WA=[24,28,32,36,72,76,48,52]
    z0=[f'v_mov_b64 v[{r}:{r+1}], 0' for r in range(24,40,2)]
    kmf=[f'ds_read_b128 v[{KMF+4*u}:{KMF+4*u+3}], v{vKR} offset:{u*64}' for u in range(4)]
    put(44,z0[0]); put(45,z0[1]); put(46,*z0[2:4]); put(47,*z0[4:6]); put(53,*z0[6:8])
    put(47, f's_mov_b32 m0, {R_K+w*2048}')
    put(48,'s_waitcnt lgkmcnt(0)','s_barrier',kmf[0]); put(49,*kmf[1:4])
    put(50, f'buffer_load_dwordx4 v{vL16}, {W}, s{sKO} offen sc1 lds')
    put(51, f'buffer_load_dwordx4 v{vL16}, {W}, s{sKO} offen offset:1024 sc1 lds')
    put(50, f'v_add_f32 v{VA}, v{VA}, v{VA+1}', f'v_add_f32 v{VA+2}, v{VA+2}, v{VA+3}')
    put(52, f'v_cvt_pk_bf16_f32 v{VM0}, v{VA}, v{VA+2}', f'v_max3_f32 v{T}, v{SX}, v{SX+1}, v{SX+2}')
    put(54, 's_waitcnt lgkmcnt(0)')
    WIN=[104,112,88,96,16,120,40,64]
    def wrd(f):
        b=WIN[f]
        return [f'ds_read_b128 v[{b}:{b+3}], v{vWO} offset:{wo_lds(f+8)}', f'ds_read_b128 v[{b+4}:{b+7}], v{vWO} offset:{wo_lds(f+8)+1024}']
    put(55,*wrd(0)); put(56,*wrd(1))
    put(57, f'v_max3_f32 v{T2}, v{SX+3}, v{SX+4}, v{SX+5}', f'v_max3_f32 v{T}, v{T}, v{SX+6}, v{SX+7}')
    put(58, f'v_max_f32 v{T}, v{T}, v{T2}')
    put(53, f's_cmp_eq_u32 s{sS}, 63')
    put(59,'s_cbranch_scc1 rec_fin',*wrd(2))
    put(58,*wrd(3))
    sta=[int(x) for x in os.environ.get('STA','17,37,58').split(',')]
    for i,m in enumerate(seq):
        a(m)
        ops=ex.get(i,[])
        if ABL:
            ops=[o for o in ops if not any(p in o for p in ABL)]
        if i in sta: emit(stamp())
        emit([o for o in ops if not o.startswith('v_')]); emit([o for o in ops if o.startswith('v_')])
    assert max(ex)<len(seq)
    B=[]
    B+=[f'v_max3_f32 v{T}, v{T}, v{SM}, v{SM+1}', f'v_mov_b32 v{T2}, v{T}']+wrd(4)
    B+=[f'v_permlane16_swap_b32 v{T2}, v{T}', f'v_max_f32 v{T}, v{T2}, v{T}', f'v_mov_b32 v{T2}, v{T}',
        f'v_add_f32 v{VA+4}, v{VA+4}, v{VA+5}', f'v_add_f32 v{VA+6}, v{VA+6}, v{VA+7}',
        f'v_permlane32_swap_b32 v{T2}, v{T}', f'v_max_f32 v{T}, v{T2}, v{T}', f'v_mul_f32 v{T2}, s{sC}, v{T}']
    for r in (SM,SX,SX+2,SX+4,SX+6):
        B.append(f'v_pk_fma_f32 v[{r}:{r+1}], v[{r}:{r+1}], s[{sC}:{sC+1}], v[{T2}:{T2+1}] op_sel_hi:[1,1,0] neg_lo:[0,0,1] neg_hi:[0,0,1]')
    B+=[f'v_exp_f32 v{SM}, v{SM}', f'v_exp_f32 v{SM+1}, v{SM+1}', f'v_cvt_pk_bf16_f32 v{VM1}, v{VA+4}, v{VA+6}', f'v_cvt_pk_bf16_f32 v{PM}, v{SM}, v{SM+1}']
    OA=VA; LA=SM; PX=SX
    exs=[f'v_exp_f32 v{r}, v{r}' for r in range(SX,SX+8)]
    B+=exs[0:2]+[f'v_mfma_f32_16x16x16_bf16 v[{LA}:{LA+3}], v[{ONES}:{ONES+1}], v[{PM}:{PM+1}], 0']
    B+=exs[2:4]+[f'v_mfma_f32_16x16x16_bf16 v[{OA}:{OA+3}], v[{VM0}:{VM0+1}], v[{PM}:{PM+1}], 0']
    B+=exs[4:6]+[f'v_mfma_f32_16x16x16_bf16 v[{OA+4}:{OA+7}], v[{VM1}:{VM1+1}], v[{PM}:{PM+1}], 0']
    B+=exs[6:8]+[f'v_cvt_pk_bf16_f32 v{PX+i}, v{SX+2*i}, v{SX+2*i+1}' for i in range(4)]
    B+=wrd(5)
    B+=[f'v_mfma_f32_16x16x32_bf16 v[{LA}:{LA+3}], v[{ONES}:{ONES+3}], v[{PX}:{PX+3}], v[{LA}:{LA+3}]']
    B+=wrd(6)
    B+=[f'v_mfma_f32_16x16x32_bf16 v[{OA}:{OA+3}], v[{VC}:{VC+3}], v[{PX}:{PX+3}], v[{OA}:{OA+3}]']
    B+=[f'v_mfma_f32_16x16x32_bf16 v[{OA+4}:{OA+7}], v[{VC+4}:{VC+7}], v[{PX}:{PX+3}], v[{OA+4}:{OA+7}]',
        f'v_rcp_f32 v{LA}, v{LA}']
    z1=[f'v_mov_b64 v[{r}:{r+1}], 0' for r in list(range(72,80,2))+list(range(48,56,2))]
    B+=z1[0:7]
    B+=[f'v_cndmask_b32 v{OA+i}, v{OA+i}, v{OA+4+i}, s[{sODD}:{sODD+1}]' for i in range(4)]
    B+=[f'v_pk_mul_f32 v[{OA+i}:{OA+i+1}], v[{OA+i}:{OA+i+1}], v[{LA}:{LA+1}] op_sel_hi:[1,0]' for i in (0,2)]
    B+=[f'v_cvt_pk_bf16_f32 v{OA+4}, v{OA}, v{OA+1}', f'v_cvt_pk_bf16_f32 v{OA+5}, v{OA+2}, v{OA+3}', f'ds_write_b64 v{vOW}, v[{OA+4}:{OA+5}]']
    emit(B)
    if not E('RSA',1): emit(rs[:1]+rs[2:])
    emit(z1[7:8])
    emit(rot_m())
    a('s_waitcnt lgkmcnt(0)')
    a('s_barrier')
    OFR=56
    a(f'ds_read_b128 v[{OFR}:{OFR+3}], v{vL16} offset:{R_O}')
    a(f'ds_read_b128 v[{OFR+4}:{OFR+7}], v{vL16} offset:{R_O+1024}')
    emit(wrd(7))
    if not E('RSA',1): emit(rs[1:2])
    RA=124; RB=24
    vq=[]
    def rl():
        vq.extend(['r','r'])
        return [f'buffer_load_dwordx4 v[{RB+4*L}:{RB+4*L+3}], v{vL16}, {W}, s{sRG2} offen offset:{L*1024} sc1' for L in range(2)]
    def epi(T_):
        r=WA[T_]; d=WA[T_&6]+(T_&1)
        return [f'v_add_f32 v{r}, v{r}, v{r+1}', f'v_add_f32 v{r+2}, v{r+2}, v{r+3}', f'v_cvt_pk_bf16_f32 v{d}, v{r}, v{r+2}']
    def pst(c):
        vq.append('s')
        return f'buffer_store_dwordx2 v[{WA[2*c]}:{WA[2*c]+1}], v{vPST}, {W}, s{sPa if c==0 else sPq+c} offen{sc}'
    pend=[]
    RL=[E('RL0',99),E('RL1',99),99,99][w]
    a(f's_mov_b32 s{sRG2}, s{sRG}')
    a('s_waitcnt lgkmcnt(3)')
    for i in range(16):
        T_,t2=i>>1,i&1
        b = wo_reg(i) if i<8 else WIN[i-8]
        a(f'v_smfmac_f32_16x16x64_bf16 v[{WA[T_]}:{WA[T_]+3}], v[{OFR+4*t2}:{OFR+4*t2+3}], v[{b}:{b+7}], v{vIDX}')
        if i==1: emit(stamp())
        if i==RL: emit(rl())
        if i in (7,11,15): a(pst((i-7)//4))
        if i==0: a('s_waitcnt lgkmcnt(2)')
        if i==12: a('s_waitcnt lgkmcnt(0)')
        if i>=3 and (i&1)==1: pend+=epi((i-3)//2)
        for _ in range(2 if i&1 else 1):
            if pend: a(pend.pop(0))
    emit(pend)
    if RL==16: emit(rl())
    emit(epi(7))
    a(pst(3))
    emit(stamp())
    neg=lambda b: [f'v_mov_b64 v[{r}:{r+1}], -1' for r in range(b,b+8,2)]
    hsv=house_salu(); nh=E('NH',[0,0,6,10][w])
    hk=neg(RB)+zero_acc()+neg(MF)+xbase()+x_reads(0,4)+[f'ds_read2_b32 v[120:121], v{vQKW} offset0:64 offset1:{QK_RS//4+64}', f'v_mov_b32 v122, v{VM0}', f'v_mov_b32 v123, v{VM1}']+hsv[:nh]; hsv=hsv[nh:]
    n=E(f'A{w}',[4,8,20,28][w])
    emit(hk[:n]); emit(rl()); emit(hk[n:])
    a('s_waitcnt vmcnt(6)')
    mm=[f'v_mfma_f32_16x16x32_bf16 v[{RA}:{RA+3}], v[{ONES}:{ONES+3}], v[{RB}:{RB+3}], 0',
        f'v_mfma_f32_16x16x32_bf16 v[{RA}:{RA+3}], v[{ONES}:{ONES+3}], v[{RB+4}:{RB+7}], v[{RA}:{RA+3}]']
    c=chk(RB)
    if SOLO: a('s_waitcnt vmcnt(0)')
    a.label(f'rec_rs_{tag}')
    for _ in range(E('SPR',1)):
        emit(c[:3]); a(mm[0]); emit(c[3:]); a(mm[1]); a(f's_branch rec_go_{tag}' if SOLO else f's_cbranch_vccz rec_go_{tag}')
    emit(c[:3]); a(mm[0]); emit(c[3:]); a(mm[1])
    a(f's_cbranch_vccnz rec_f0_{tag}')
    a.label(f'rec_go_{tag}')
    a(f'v_lshrrev_b32 v{T}, 2, v{vL16}')
    a(f'ds_read_b32 v{PM}, v{T} offset:{R_F}')
    emit(v_reads(w))
    for sh in (4,8):
        for r in (2,3): a(f'v_add_f32 v{RA+r}, v{RA+r}, v{RA+r} row_ror:{sh} row_mask:0xf bank_mask:0xf')
    a(f's_mov_b64 exec, s[{sPM}:{sPM+1}]')
    a(f'v_cvt_pk_bf16_f32 v{RA}, v{RA+2}, v{RA+3}')
    a(f'buffer_store_dword v{RA}, v{vMST}, {W}, s{sMa} offen{sc}')
    a('s_mov_b64 exec, -1')
    emit(stamp())
    emit(hsv)
    a('s_waitcnt lgkmcnt(0)')
    a(f'v_cmp_eq_u32 s[{sKVM}:{sKVM+1}], s{sHI}, v{PM}')
    emit(gl(MF,w))
    emit(stamp())
    if stamps:
        a('s_waitcnt lgkmcnt(0)')
        n=nst[0]
        if SNAP:
            for j in range(3):
                a(f's_cmp_eq_u32 s{sS}, {SNAP+j}')
                for k in range(n): a(f's_cselect_b32 s{sACC+4*j+k}, s{sTS+2*k}, s{sACC+4*j+k}')
            n=0
        for k in range(n):
            prev = f's{sACC+15}' if k==0 else f's{sTS+2*(k-1)}'
            a(f's_sub_u32 s{sU0}, s{sTS+2*k}, {prev}')
            a(f's_add_u32 s{sACC+k}, s{sACC+k}, s{sU0}')
        if n: a(f's_mov_b32 s{sACC+15}, s{sTS+2*(n-1)}')
        a(f's_cmp_eq_u32 s{sS}, 9')
        for k in range(n): a(f's_cselect_b32 s{sACC+k}, 0, s{sACC+k}')
        a(f's_cselect_b32 s{sACC+14}, s{sSPIN}, s{sACC+14}')
    if RT==1 and w==0:
        l=a.newlabel('rs')
        a(f's_and_b32 s8, s{sS}, 7'); a('s_cmp_lg_u32 s8, 0'); a(f's_cbranch_scc1 {l}')
        a(f's_lshr_b32 s8, s{sS}, 3')
        rtstamp(a,8,idx_s=8)
        a.label(l)
    a(f's_branch rec_enter_{tag}')
    a.label(f'rec_f0_{tag}')
    a('s_mov_b64 exec, vcc')
    emit(rl())
    a('s_mov_b64 exec, -1')
    emit(spin(0x10000))
    a(f's_cbranch_scc0 rec_rs_{tag}')
    a(f's_branch rec_go_{tag}')
```

```python
from common import *
from k_main import *
import os
E=lambda k,d: int(os.environ.get(k,str(d)))

R_K=0x0
R_V=0x2000
R_M=0x4000
R_QK=0x6000
R_O=0x7200
vT=0; vIDX=1; vL16=2; vQKW=3; vQR=4; vKR=5; vOW=6; vWO=7; vPST=8; vMST=9; NEG1=10; PM=14
MF=16; QA=48; KA_=56; VA=64; VC=72; ONES=80; VM0=84; VM1=86; KX=88
QFR=[16,20,120,124]
sS=72; sMa=73; sMb=74; sMc=75; sPa=76; sPb=77; sPc=78; sMa2=79; sKVM=80; sODD=82; sSPIN=84; sKB=85; sC=86
sU0=88; sU1=89; sKO=90; sVO=91; sFV=93; sHW=94; sRO=95
sPUB=96; sPR=97; sRG=98; sRG2=99; sHA=92; sHI=70; sFLA=100; sH13=101; sPUB0=63; sPq=64
sPM=68
sTS=4; sACC=32
STSEL=[x for x in os.environ.get('STSEL','').split(',') if x]
SOLO=E('SOLO',0)
SNAP=E('SNAP',0)
ABL=[x for x in os.environ.get('ABL','').split(',') if x]
HINT=0x3000
REP=E('REP',0); CONT=E('CONT',1); RSTR=E('RSTR',10240); MSL=0xA000 if REP else 8192
def wo_reg(f):
    j,tau=f>>1,f&1
    return wreg(2,tau,j)[1]

def delay(a,cyc):
    n=cyc//4
    while n>0:
        c=min(n,16); a(f's_nop {c-1}'); n-=c

def wo_lds(f):
    c,tile,t2=f>>2,(f>>1)&1,f&1
    return ((c-2)*2+t2)*16384+tile*2048

def gen_rec(a, stamps=False):
    global SPIN_MAX
    if stamps: SPIN_MAX=1<<30
    W=srd4(sWS)
    a.label('rec_start')
    a(f's_mov_b32 s{sH}, s{sROLE}')
    rtstamp(a,0)
    D1,D2,A0,A2,H0,H2=96,100,112,114,116,118
    a(f's_lshl_b32 s{sLB}, s{sW}, 12')
    a(f's_add_u32 s{sLB}, s{sLB}, {L_WO}')
    a(f's_lshl_b32 s13, s{sH}, 8')
    a(f's_lshl_b32 s12, s{sH}, 17')
    coop_addrs(a,D1,A0,[8192,1024],[],col_s=13)
    q=[]
    def issue(u):
        X,j=u>>3,u&7
        if X<3: coop_issue(a,u,D1,srd4([sWQ,sWK,sWV][X]),[f's_mov_b32 s{sT0}, {j<<19}'])
        else: coop_issue(a,u,D2,srd4(sWO),[f's_add_u32 s{sT0}, s12, {(j&1)*65536+(j>>1)*256}'])
        q.extend([('u',u)]*4)
    def wait_for(tag):
        idx=max(i for i,t in enumerate(q) if t==tag)
        a(f's_waitcnt vmcnt({len(q)-1-idx})')
        del q[:idx+1]
    def vm(text,tag):
        a(text); q.append(tag)
    for u in range(8): issue(u)
    coop_addrs(a,D1,A0,[],['R' if CONT else 'H','O'])
    for i in range(4): a(f'v_add_u32 v{H0+i}, 0x10000, v{A0+i}')
    a(f'v_lshlrev_b32 v{vL16}, 4, v0')
    a(f'v_add_u32 v{vWO}, s{sLB}, v{vL16}')
    a(f'v_add_u32 v{vWO}, 0x10000, v{vWO}')
    for r in range(NEG1,NEG1+4): a(f'v_mov_b32 v{r}, -1')
    a('v_and_b32 v19, 1, v0')
    a(f'v_mov_b32 v{vIDX}, 0x4444')
    a('v_mov_b32 v16, 0xeeee')
    a('v_cmp_eq_u32 vcc, 1, v19')
    a(f'v_cndmask_b32 v{vIDX}, v{vIDX}, v16, vcc')
    a(f's_mov_b32 s{sODD}, 0xaaaaaaaa'); a(f's_mov_b32 s{sODD+1}, 0xaaaaaaaa')
    a(f's_mov_b32 s{sPM}, 0x000f000f'); a(f's_mov_b32 s{sPM+1}, 0x000f000f')
    a('v_and_b32 v16, 15, v0')
    a('v_lshrrev_b32 v17, 4, v0')
    a(f'v_mul_u32_u24 v{vQKW}, {2*QK_RS}, v17')
    a(f'v_lshl_add_u32 v{vQKW}, v16, 2, v{vQKW}')
    a(f's_lshl_b32 s{sT1}, s{sW}, 6')
    a(f's_add_u32 s{sT1}, s{sT1}, {R_QK}')
    a(f'v_add_u32 v{vQKW}, s{sT1}, v{vQKW}')
    a('v_lshrrev_b32 v18, 1, v16')
    a(f'v_mul_u32_u24 v{vQR}, {QK_RS}, v18')
    a(f'v_lshl_add_u32 v{vQR}, v17, 4, v{vQR}')
    a(f'v_add_u32 v{vQR}, {R_QK}, v{vQR}')
    a('v_lshrrev_b32 v18, 2, v16')
    a('v_lshlrev_b32 v18, 1, v18')
    a('v_add_u32 v18, v18, v19')
    a(f'v_mul_u32_u24 v{vKR}, {QK_RS}, v18')
    a(f'v_lshl_add_u32 v{vKR}, v17, 4, v{vKR}')
    a(f'v_add_u32 v{vKR}, {R_QK+256}, v{vKR}')
    a('v_lshrrev_b32 v18, 1, v17')
    a(f'v_lshlrev_b32 v{vOW}, 8, v18')
    a('v_lshrrev_b32 v18, 1, v16')
    a(f'v_lshl_add_u32 v{vOW}, v18, 5, v{vOW}')
    a('v_and_b32 v18, 1, v17')
    a(f'v_lshl_add_u32 v{vOW}, v18, 4, v{vOW}')
    a(f'v_lshl_add_u32 v{vOW}, v19, 3, v{vOW}')
    a(f's_lshl_b32 s{sT1}, s{sW}, 9')
    a(f's_add_u32 s{sT1}, s{sT1}, {R_O}')
    a(f'v_add_u32 v{vOW}, s{sT1}, v{vOW}')
    a('v_lshrrev_b32 v18, 3, v0')
    a(f'v_lshlrev_b32 v{vPST}, 11, v18')
    a('v_and_b32 v18, 7, v0')
    a(f'v_lshl_add_u32 v{vPST}, v18, 3, v{vPST}')
    a(f's_lshl_b32 s{sT1}, s{sW}, 14')
    a(f's_lshl_b32 s{sT2}, s{sH}, 6')
    a(f's_add_u32 s{sT1}, s{sT1}, s{sT2}')
    a(f'v_add_u32 v{vPST}, s{sT1}, v{vPST}')
    a('v_lshrrev_b32 v18, 1, v17')
    a(f'v_lshlrev_b32 v{vMST}, 5, v18'); a('v_lshlrev_b32 v24, 10, v18')
    a('v_and_b32 v18, 3, v0')
    a(f'v_lshl_add_u32 v{vMST}, v18, 2, v{vMST}'); a('v_lshl_add_u32 v24, v18, 2, v24')
    a('v_and_b32 v18, 1, v17')
    a(f'v_lshl_add_u32 v{vMST}, v18, {4 if CONT else 8}, v{vMST}'); a('v_lshl_add_u32 v24, v18, 5, v24')
    a(f's_lshr_b32 s{sT1}, s{sH}, 3'); a(f's_lshl_b32 s{sT3}, s{sT1}, 6'); a(f's_lshl_b32 s{sT1}, s{sT1}, 9')
    a(f's_and_b32 s{sT2}, s{sH}, 1'); a(f's_lshl_b32 s{sT2}, s{sT2}, 4')
    a(f's_add_u32 s{sT3}, s{sT3}, s{sT2}')
    if CONT: a(f's_lshl_b32 s{sT2}, s{sT2}, 4')
    a(f's_add_u32 s{sT1}, s{sT1}, s{sT2}')
    a(f's_bfe_u32 s{sT2}, s{sH}, 0x20001'); a(f's_lshl_b32 s{sT0}, s{sT2}, 11'); a(f's_lshl_b32 s{sT2}, s{sT2}, 6')
    a(f's_add_u32 s{sT1}, s{sT1}, s{sT2}'); a(f's_add_u32 s{sT3}, s{sT3}, s{sT0}')
    a(f's_lshl_b32 s{sT2}, s{sW}, 11'); a(f's_add_u32 s{sT1}, s{sT1}, s{sT2}')
    a(f's_lshl_b32 s{sT2}, s{sW}, 8'); a(f's_add_u32 s{sT3}, s{sT3}, s{sT2}')
    a(f'v_add_u32 v{vMST}, s{sT1}, v{vMST}')
    if REP:
        a('v_lshrrev_b32 v18, 2, v16'); a(f'v_mul_u32_u24 v18, {RSTR}, v18'); a(f'v_add_u32 v{vMST}, v18, v{vMST}')
    a(f's_and_b32 s{sKB}, s{sH}, 3'); a(f's_mul_i32 s{sKB}, s{sKB}, {RSTR if REP else 0}')
    a(f's_lshl_b32 s{sT2}, s{sW}, 11'); a(f's_add_u32 s{sKB}, s{sKB}, s{sT2}')
    vm(f'buffer_load_dword v106, v24, {srd4(sM0)}, s{sT3} offen','m0')
    a('v_mov_b32 v24, 0x3f80'); a('v_mov_b32 v25, 0x3f800000'); a('v_mov_b32 v26, 0x3f803f80')
    a('v_and_b32 v18, 3, v16')
    for d in range(4):
        lo=4*(d&1)+2+(d>>1)
        a(f'v_cmp_eq_u32 vcc, {lo}, v16')
        a(f'v_cndmask_b32 v{ONES+d}, 0, v24, vcc')
        a(f'v_cmp_eq_u32 vcc, {lo+8}, v16')
        a(f'v_cndmask_b32 v{ONES+d}, v{ONES+d}, v25, vcc')
        a('v_cmp_eq_u32 vcc, 0, v18')
        a(f'v_cndmask_b32 v{ONES+d}, v{ONES+d}, v26, vcc')
    for r in (VM0,VM0+1,VM1,VM1+1,PM+1): a(f'v_mov_b32 v{r}, 0')
    a(f's_mov_b32 s{sC}, 0x3e0293ee'); a(f's_mov_b32 s{sC+1}, 0x3e0293ee')
    a(f's_mov_b32 s{sS}, 0')
    a(f's_mov_b32 s{sMa}, {MRING}'); a(f's_mov_b32 s{sMb}, {MRING+MSL}'); a(f's_mov_b32 s{sMc}, {MRING+2*MSL}')
    a(f's_mov_b32 s{sPa}, {PRING}'); a(f's_mov_b32 s{sPb}, {PRING+0x40000}'); a(f's_mov_b32 s{sPc}, {PRING+0x80000}')
    a(f's_mov_b32 s{sSPIN}, 0')
    a(f's_lshl_b32 s{sH13}, s{sH}, 13')
    a(f's_lshl_b32 s{sT1}, s{sW}, 11')
    a(f's_add_u32 s{sHW}, s{sH13}, s{sT1}')
    a(f's_add_u32 s{sKO}, s{sHW}, {KF}')
    a(f's_add_u32 s{sVO}, s{sHW}, {VF}')
    a(f's_lshl_b32 s{sRO}, s{sW}, 16')
    a(f's_lshl_b32 s{sT2}, s{sH}, 11')
    a(f's_add_u32 s{sRO}, s{sRO}, s{sT2}')
    a(f's_lshl_b32 s{sFLA}, s{sH}, 7')
    a(f's_add_u32 s{sFLA}, s{sFLA}, {RECFLAG}')
    a(f's_lshl_b32 s{sT2}, s{sW}, 2'); a(f's_add_u32 s{sFLA}, s{sFLA}, s{sT2}')
    a(f's_lshr_b32 s{sPUB}, s{sHW}, 1')
    a(f's_add_u32 s{sPUB0}, s{sPUB}, {KM}')
    a(f's_add_u32 s{sPUB}, s{sPUB}, {KM-(1<<17)}')
    a(f's_mov_b32 s{sFV}, 0')
    a(f's_mov_b32 s{sHI}, 0x01010101')
    a(f's_lshl_b32 s{sHA}, s{sH}, 8'); a(f's_add_u32 s{sHA}, s{sHA}, {KVFLAG}')
    for sl in range(3):
        a(f's_add_u32 s{sT1}, s{sHW}, {PRING+sl*0x40000}')
        vm(f'buffer_store_dwordx4 v[{NEG1}:{NEG1+3}], v{vL16}, {W}, s{sT1} offen sc1','i')
        vm(f'buffer_store_dwordx4 v[{NEG1}:{NEG1+3}], v{vL16}, {W}, s{sT1} offen offset:1024 sc1','i')
    vm(f'buffer_store_dword v{NEG1}, v{vMST}, {W}, s{sMb} offen sc1','i')
    vm(f'buffer_store_dword v{NEG1}, v{vMST}, {W}, s{sMc} offen sc1','i')
    a(f'v_lshrrev_b32 v107, 2, v{vL16}')
    def kvdma(f):
        a(f's_lshl_b32 s{sT1}, s{sW}, 11')
        a(f's_add_u32 m0, s{sT1}, {R_K}')
        f(f'buffer_load_dwordx4 v{vL16}, {W}, s{sKO} offen sc1 lds')
        f(f'buffer_load_dwordx4 v{vL16}, {W}, s{sKO} offen offset:1024 sc1 lds')
        a(f's_add_u32 m0, s{sT1}, {R_V}')
        f(f'buffer_load_dwordx4 v{vL16}, {W}, s{sVO} offen sc1 lds')
        f(f'buffer_load_dwordx4 v{vL16}, {W}, s{sVO} offen offset:1024 sc1 lds')
    def poll1(f):
        a(f's_mov_b32 s{sT1}, 192'); f(f'buffer_load_dword v108, off, {srd4(sDBG)}, s{sT1} sc1')
        a(f's_mov_b32 s{sT1}, 64'); f(f'buffer_load_dword v109, off, {srd4(sDBG)}, s{sT1} sc1')
    def poll2(f):
        f(f'buffer_load_dword v110, v107, {W}, s{sHA} offen sc1')
    TMPX=16; TMPW=88
    for u in range(32):
        X,j=u>>3,u&7
        wait_for(('u',u))
        a('s_barrier')
        if u>=1 and u+7<32: issue(u+7)
        if u>=29:
            for tau,b in enumerate((88,120)):
                for hh in range(2): a(f'ds_write_b128 v{vWO}, v[{b+4*hh}:{b+4*hh+3}] offset:{(u-29)*16384+tau*2048+hh*1024}')
            a('s_waitcnt lgkmcnt(0)')
        if u==28:
            for l in xbase(): a(l)
            for x in range(8):
                for hh in range(2): a(f'ds_write_b128 v{vT}, v[{TMPX+8*x+4*hh}:{TMPX+8*x+4*hh+3}] offset:{(x>>1)*16384+(x&1)*2048+hh*1024}')
                if x==3: a('s_waitcnt lgkmcnt(0)')
        if X<2: coop_reads(a,u,A0,H0,lambda tau: wreg(X,tau,j))
        elif X==2:
            done=a.newlabel('wv')
            for w in range(4):
                nx=a.newlabel('wv')
                if w<3:
                    a(f's_cmp_lg_u32 s{sW}, {w}'); a(f's_cbranch_scc1 {nx}')
                sj=2*QORD[w].index(j>>1)+(j&1)
                coop_reads(a,u,A0,H0,lambda tau: ('v',TMPX+8*(2*sj+tau)) if sj<4 else wreg(2,tau,sj))
                if w<3:
                    a(f's_branch {done}'); a.label(nx)
            a.label(done)
        elif u<28: coop_reads(a,u,A2,H2,lambda tau: ('v',wo_reg(((j>>1)*2+tau)*2+(j&1))))
        else: coop_reads(a,u,A2,H2,lambda tau: ('v',(88,120)[tau]))
        a('s_waitcnt lgkmcnt(0)')
        if u==8:
            vm(f'buffer_store_dword v106, v{vMST}, {W}, s{sMa} offen sc1','i')
        if u==17:
            a(f's_cmp_eq_u32 s{sXCC}, 0')
            a(f's_cselect_b32 s{sT0}, 1, 0x10001')
            a(f'v_mov_b32 v106, s{sT0}')
            a(f's_cmp_eq_u32 s{sW}, 0')
            a('s_cselect_b32 exec_lo, 1, 0')
            a('s_mov_b32 exec_hi, 0')
            a(f's_mov_b32 s{sT1}, 64')
            a(f'buffer_atomic_add v106, off, {srd4(sDBG)}, s{sT1}')
            a('s_mov_b64 exec, -1')
        if u==E('PU',27): poll1(lambda t: vm(t,'p'))
    a('s_barrier')
    for tau,b in enumerate((88,120)):
        for hh in range(2): a(f'ds_write_b128 v{vWO}, v[{b+4*hh}:{b+4*hh+3}] offset:{3*16384+tau*2048+hh*1024}')
    rtstamp(a,1)
    a.label('rec_chk')
    a('s_waitcnt vmcnt(0)')
    a(f'v_readfirstlane_b32 s{sT2}, v108')
    a(f'v_readfirstlane_b32 s{sT0}, v109')
    a(f's_add_u32 s{sSPIN}, s{sSPIN}, 1')
    a(f's_cmp_gt_u32 s{sSPIN}, {SPIN_MAX}')
    a('s_cbranch_scc1 rec_chk2')
    a(f's_cmp_lt_u32 s{sT2}, 160')
    a('s_cbranch_scc1 rec_again')
    a(f's_and_b32 s{sT2}, s{sT0}, 0xffff')
    a(f's_cmp_ge_u32 s{sT2}, 32')
    a('s_cbranch_scc1 rec_chk2')
    a.label('rec_again')
    a('s_sleep 8')
    poll1(a)
    a('s_branch rec_chk')
    a.label('rec_chk2')
    poll2(a)
    a(f's_add_u32 s{sSPIN}, s{sSPIN}, 1')
    a('s_waitcnt vmcnt(0)')
    a(f'v_cmp_eq_u32 s[{sKVM}:{sKVM+1}], s{sHI}, v110')
    a(f's_cmp_gt_u32 s{sSPIN}, {SPIN_MAX}')
    a('s_cbranch_scc1 rec_go')
    a(f's_bitcmp1_b64 s[{sKVM}:{sKVM+1}], 0')
    a('s_cbranch_scc0 rec_chk2')
    a.label('rec_go')
    kvdma(a)
    rtstamp(a,3)
    a('s_waitcnt lgkmcnt(0)')
    for t in house_salu(first=True): a(t)
    a(f's_cmp_eq_u32 s{sT0}, 32')
    a('s_cbranch_scc0 rec_slow')
    for w in range(4):
        a(f's_cmp_eq_u32 s{sW}, {w}')
        a(f's_cbranch_scc1 rec_redo_f{w}')
    a.label('rec_slow')
    for w in range(3):
        a(f's_cmp_eq_u32 s{sW}, {w}')
        a(f's_cbranch_scc1 rec_redo_s{w}')
    a('s_branch rec_redo_s3')
    for fast in (True,False):
        for w in range(4):
            gen_loop(a, fast, w, stamps)
    a.label('rec_fin')
    a(f'v_mov_b32 v{KA_+2}, v{VM0}')
    a(f'v_add_f32 v{VA+4}, v{VA+4}, v{VA+5}'); a(f'v_add_f32 v{VA+6}, v{VA+6}, v{VA+7}')
    a(f'v_cvt_pk_bf16_f32 v{KA_+3}, v{VA+4}, v{VA+6}')
    a(f's_add_u32 s{sU0}, s{sPUB0}, {(63&RM)<<17}')
    a(f'buffer_store_dwordx4 v[{KA_}:{KA_+3}], v{vL16}, {W}, s{sU0} offen sc1')
    if stamps:
        a('s_waitcnt lgkmcnt(0)')
        a(f's_sub_u32 s{sACC+14}, s{sSPIN}, s{sACC+14}')
        for k in range(16): a(f'v_writelane_b32 v126, s{sACC+k}, {k}')
        a(f's_lshl_b32 s{sU0}, s{sH}, 8')
        a(f's_lshl_b32 s{sU1}, s{sW}, 6')
        a(f's_add_u32 s{sU0}, s{sU0}, s{sU1}')
        a(f's_add_u32 s{sU0}, s{sU0}, 0x6000000')
        a(f'v_lshrrev_b32 v127, 2, v{vL16}')
        a('s_mov_b64 exec, 0xffff')
        a(f'buffer_store_dword v126, v127, {W}, s{sU0} offen')
        a('s_mov_b64 exec, -1')
    a('s_waitcnt vmcnt(0)')
    a(f'v_mov_b32 v124, 64')
    a('s_mov_b64 exec, 1')
    a(f'buffer_store_dword v124, off, {W}, s{sFLA} sc1')
    a('s_mov_b64 exec, -1')
    rtstamp(a,4)
    if E('WB',0):
        a(f's_cmp_lg_u32 s{sH}, 0')
        a('s_cbranch_scc1 main_done')
        a('s_waitcnt vmcnt(0)')
        a('buffer_wbl2 sc1')
    a('s_branch main_done')

def xreg(x): return [88,96,104,112,120,16,104,112][x]
def xbase(): return [f'v_add_u32 v{vT}, 0xffff0000, v{vWO}']
def x_reads(lo,hi):
    r=[]
    for x in range(lo,hi):
        b=xreg(x)
        r+=[f'ds_read_b128 v[{b}:{b+3}], v{vT} offset:{(x>>1)*16384+(x&1)*2048}', f'ds_read_b128 v[{b+4}:{b+7}], v{vT} offset:{(x>>1)*16384+(x&1)*2048+1024}']
    return r
def zero_acc():
    return [f'v_mov_b64 v[{r}:{r+1}], 0' for r in range(VA+6,QA-2,-2)]
def v_reads(w):
    return [f'ds_read_b128 v[{VC+4*t}:{VC+4*t+3}], v{vL16} offset:{R_V+w*2048+t*1024}' for t in range(2)]
def rot_m():
    return [f's_mov_b32 s{sU0}, s{sMa}', f's_mov_b32 s{sMa}, s{sMb}', f's_mov_b32 s{sMb}, s{sMc}', f's_mov_b32 s{sMc}, s{sU0}', f's_add_u32 s{sMa2}, s{sMa}, s{sKB}']
def house_salu(first=False):
    r=[]
    if not first:
        r+=[f's_mov_b32 s{sU0}, s{sPa}', f's_mov_b32 s{sPa}, s{sPb}', f's_mov_b32 s{sPb}, s{sPc}', f's_mov_b32 s{sPc}, s{sU0}',
            f's_and_b32 s{sU0}, s{sS}, {RM}', f's_lshl_b32 s{sU0}, s{sU0}, 17', f's_add_u32 s{sPUB}, s{sPUB0}, s{sU0}', f's_mov_b32 s{sFV}, s{sS}',
            f's_add_u32 s{sS}, s{sS}, 1']
    if first: r+=[f's_add_u32 s{sMa2}, s{sMa}, s{sKB}']
    r+=[
        f's_add_u32 s{sU1}, s{sS}, 1', f's_min_u32 s{sU1}, s{sU1}, 63',
        f's_and_b32 s{sU0}, s{sU1}, {RM}', f's_lshl_b32 s{sU0}, s{sU0}, 18', f's_add_u32 s{sU0}, s{sU0}, s{sHW}',
        f's_add_u32 s{sKO}, s{sU0}, {KF}', f's_add_u32 s{sVO}, s{sU0}, {VF}',
        f's_add_u32 s{sPR}, s{sPc}, s{sRO}', f's_add_u32 s{sRG}, s{sPa}, s{sRO}']
    r+=[f's_add_u32 s{sPq+c}, s{sPa}, {c*65536}' for c in range(1,4)]
    return r

def gen_loop(a, fast, w, stamps):
    tag=('f' if fast else 's')+str(w)
    sc='' if fast else ' sc1'
    W=srd4(sWS)
    nst=[0]; nall=[0]
    def stamp():
        nall[0]+=1
        if stamps and (not STSEL or str(nall[0]-1) in STSEL):
            k=nst[0]; nst[0]+=1
            return [f'{"s_memrealtime" if SNAP else "s_memtime"} s[{sTS+2*k}:{sTS+2*k+1}]']
        return []
    def emit(lst):
        for t in lst: a(t)
    def sm(X,tau,j):
        k,b=wreg(X,tau,j if X==2 else 2*QORD[w][j>>1]+(j&1))
        if X==2 and j<4: b=xreg(2*j+tau)
        acc=[QA,KA_,VA][X]+4*tau
        return f'v_smfmac_f32_16x16x64_bf16 v[{acc}:{acc+3}], v[{MF+4*j}:{MF+4*j+3}], {k}[{b}:{b+7}], v{vIDX}'
    def moff(j): return R_M+(2*QORD[w][j>>1]+(j&1))*1024
    def gl(b,c):
        return [f'buffer_load_dwordx4 v[{b+4*L}:{b+4*L+3}], v{vL16}, {W}, s{sMa2} offen offset:{L*1024} sc1' for L in range(2)]
    def spin(inc):
        return [f's_add_u32 s{sSPIN}, s{sSPIN}, {inc if stamps else 1}', f's_cmp_gt_u32 s{sSPIN}, {SPIN_MAX}']
    T=vT; C2=PM
    def chk(b):
        return [f'v_max3_u32 v{T}, v{b}, v{b+1}, v{b+2}', f'v_max3_u32 v{C2}, v{b+3}, v{b+4}, v{b+5}',
                f'v_max3_u32 v{T}, v{T}, v{b+6}, v{b+7}', f'v_max_u32 v{T}, v{T}, v{C2}', f'v_cmp_eq_u32 vcc, -1, v{T}']
    a.label(f'rec_redo_{tag}')
    emit(gl(MF,w))
    emit(xbase()+x_reads(0,4)+zero_acc())
    a('s_waitcnt vmcnt(0)')
    emit(v_reads(w))
    a('s_waitcnt lgkmcnt(0)')
    a(f's_branch rec_enter_{tag}')
    a.label(f'rec_g0_{tag}')
    a('s_mov_b64 exec, vcc')
    emit(gl(MF,w))
    a('s_mov_b64 exec, -1')
    emit(spin(1))
    a(f's_cbranch_scc0 rec_enter_{tag}')
    a(f's_branch rec_ok0_{tag}')
    a.label(f'rec_lf_{tag}')
    a(f'v_mov_b32 v{PM}, s{sS}')
    a('s_waitcnt vmcnt(8)')
    a('s_mov_b64 exec, 1')
    a(f'buffer_store_dword v{PM}, off, {W}, s{sFLA} sc1')
    a('s_mov_b64 exec, -1')
    if E('FLM',2)==2: a(f's_branch rec_lfx_{tag}')
    a.label(f'rec_kvw_{tag}')
    a(f's_add_u32 s{sT2}, s{sT2}, 1')
    a(f'v_lshrrev_b32 v{PM}, 2, v{vL16}')
    a(f'buffer_load_dword v{PM}, v{PM}, {W}, s{sHA} offen sc1')
    a('s_waitcnt vmcnt(0)')
    a(f'v_cmp_eq_u32 s[{sKVM}:{sKVM+1}], s{sHI}, v{PM}')
    a(f's_cmp_gt_u32 s{sT2}, {1<<22}')
    a(f's_cbranch_scc1 rec_kvok_{tag}')
    a(f's_bitcmp1_b64 s[{sKVM}:{sKVM+1}], s{sU1}')
    a(f's_cbranch_scc0 rec_kvw_{tag}')
    a(f's_branch rec_kvok_{tag}')
    a('.p2align 6')
    a.label(f'rec_enter_{tag}')
    if SOLO: a('s_waitcnt vmcnt(0)')
    for _ in range(E(f'SPG{w}',E('SPG',1))):
        emit(chk(MF)); a(f's_branch rec_ok0_{tag}' if SOLO else f's_cbranch_vccz rec_ok0_{tag}')
        if E('TH',0):
            a(f's_bcnt1_i32_b64 s{sT0}, vcc'); a(f's_cmp_lt_u32 s{sT0}, {E("TH",0)}'); a(f's_cbranch_scc1 rec_g0_{tag}')
    emit(chk(MF))
    a(f's_cbranch_vccnz rec_g0_{tag}')
    a.label(f'rec_ok0_{tag}')
    emit(stamp())
    seq=[]; ex={}
    def put(i,*ops): ex.setdefault(i,[]).extend(ops)
    def grp(X,c): return [sm(X,tau,j) for j in (2*c,2*c+1) for tau in range(2)]
    seq+=grp(2,0)+grp(0,0)+grp(1,0)
    seq+=grp(0,1)+grp(0,2)+grp(0,3)
    seq+=grp(1,1)+grp(1,2)+grp(1,3)
    seq+=grp(2,1)
    vv=[sm(2,0,4),sm(2,0,5),sm(2,0,6),sm(2,0,7),sm(2,1,4),sm(2,1,5),sm(2,1,6),sm(2,1,7)]
    seq+=vv[0:6]
    SX=QA; SM=KA_+4; KMF=KX; T2=KA_+2
    def sx(mu,u):
        c = '0' if u==0 else f'v[{SX+4*mu}:{SX+4*mu+3}]'
        f=KX+4*(mu*4+u)
        return f'v_mfma_f32_16x16x32_bf16 v[{SX+4*mu}:{SX+4*mu+3}], v[{f}:{f+3}], v[{QFR[u]}:{QFR[u]+3}], {c}'
    seq+=[sx(0,u) for u in range(4)]+[sx(1,u) for u in range(4)]
    seq+=[vv[6]]
    for u in range(4):
        c='0' if u==0 else f'v[{SM}:{SM+3}]'
        seq.append(f'v_mfma_f32_16x16x32_bf16 v[{SM}:{SM+3}], v[{KMF+4*u}:{KMF+4*u+3}], v[{QFR[u]}:{QFR[u]+3}], {c}')
    seq+=[vv[7]]
    mw=[f'ds_write_b128 v{vL16}, v[{MF}:{MF+3}] offset:{moff(0)}', f'ds_write_b128 v{vL16}, v[{MF+4}:{MF+7}] offset:{moff(1)}']
    put(0,mw[0]); put(1,mw[1])
    B1=E('B1',6)
    mr=[f'ds_read_b128 v[{MF+4*j}:{MF+4*j+3}], v{vL16} offset:{moff(j)}' for j in range(2,8)]
    put(B1,'s_waitcnt lgkmcnt(0)','s_barrier')
    put(B1,mr[0]); put(B1+1,*mr[1:3]); put(B1+2,*mr[3:5]); put(B1+3,mr[5])
    put(11,'s_waitcnt lgkmcnt(5)'); put(13,'s_waitcnt lgkmcnt(4)'); put(15,'s_waitcnt lgkmcnt(0)')
    kx=[f'ds_read_b128 v[{KX+4*f}:{KX+4*f+3}], v{vL16} offset:{R_K+f*1024}' for f in range(8)]
    for f in range(4): put(16+f, kx[f])
    put(10, f's_bitcmp1_b64 s[{sKVM}:{sKVM+1}], s{sU1}', f's_cbranch_scc0 rec_kvw_{tag}', f'rec_kvok_{tag}:')
    put(11, f's_mov_b32 m0, {R_V+w*2048}')
    put(12, f'buffer_load_dwordx4 v{vL16}, {W}, s{sVO} offen sc1 lds')
    put(13, f'buffer_load_dwordx4 v{vL16}, {W}, s{sVO} offen offset:1024 sc1 lds')
    R_F=0x7A00+w*256
    put(8, f'v_lshrrev_b32 v{T}, 2, v{vL16}')
    put(14, f's_mov_b32 m0, {R_F}')
    put(15, f'buffer_load_dword v{T}, {W}, s{sHA} offen sc1 lds')
    put(16,*xbase())
    put(19,'s_waitcnt vmcnt(4)')
    xr=x_reads(4,8)
    for i in range(8): put(20+i, xr[i])
    rs=[f'buffer_store_dwordx4 v[{NEG1}:{NEG1+3}], v{vL16}, {W}, s{sPR} offen{sc}',
        f'buffer_store_dwordx4 v[{NEG1}:{NEG1+3}], v{vL16}, {W}, s{sPR} offen offset:1024{sc}',
        f's_mov_b64 exec, s[{sPM}:{sPM+1}]', f'buffer_store_dword v{NEG1}, v{vMST}, {W}, s{sMc} offen{sc}', 's_mov_b64 exec, -1']
    if REP: rs=rs[:2]+[rs[3]]
    if E('RSA',1):
        put(E('RS0',20)+(w&1), rs[0]); put(E('RS1',32)+(w&1), rs[1]); put(E('RS2',28),*rs[2:])
    put(9, f'buffer_store_dwordx4 v[120:123], v{vL16}, {W}, s{sPUB} offen sc1')
    FLM=E('FLM',2)
    if FLM==0:
        put(17, f'v_mov_b32 v{PM}, s{sS}')
        put(57, 's_waitcnt vmcnt(8)', 's_mov_b64 exec, 1', f'buffer_store_dword v{PM}, off, {W}, s{sFLA} sc1', 's_mov_b64 exec, -1')
    else:
        if w==0:
            put(17, f'v_mov_b32 v{PM}, s{sFV}')
            put(31, f'v_lshrrev_b32 v{T}, 2, v{vL16}')
            put(33, f's_cmp_lt_u32 s{sS}, {E("LF",56)+1}')
            put(34, 's_cselect_b64 exec, 15, 0' if FLM==2 else 's_mov_b64 exec, 15', f'buffer_store_dword v{PM}, v{T}, {W}, s{sFLA} offen sc1', 's_mov_b64 exec, -1')
        if FLM==2:
            put(55, f's_cmp_ge_u32 s{sS}, {E("LF",56)}')
            put(56, f's_cbranch_scc1 rec_lf_{tag}', f'rec_lfx_{tag}:')
            put(57, f's_cmp_eq_u32 s{sS}, 63')
    def pp(acc,d0,d1):
        return [f'v_add_f32 v{acc}, v{acc}, v{acc+1}', f'v_add_f32 v{acc+2}, v{acc+2}, v{acc+3}',
                f'v_add_f32 v{acc+4}, v{acc+4}, v{acc+5}', f'v_add_f32 v{acc+6}, v{acc+6}, v{acc+7}',
                f'v_cvt_pk_bf16_f32 v{d0}, v{acc}, v{acc+4}', f'v_cvt_pk_bf16_f32 v{d1}, v{acc+2}, v{acc+6}']
    q=pp(QA,QA,QA+1)
    for i in range(6): put(24+i,q[i])
    put(30, f'ds_write2_b32 v{vQKW}, v{QA}, v{QA+1} offset0:0 offset1:{QK_RS//4}')
    qf=[f'ds_read_b128 v[{QFR[u]}:{QFR[u]+3}], v{vQR} offset:{u*64}' for u in range(4)]
    put(35,'s_waitcnt lgkmcnt(1)')
    put(37,'s_waitcnt lgkmcnt(0)','s_barrier'); put(38,*qf[0:2]); put(39,*qf[2:4])
    put(40,*kx[4:6]); put(41,*kx[6:8])
    k=pp(KA_,KA_,KA_+1)
    for i in range(6): put(36+i,k[i])
    put(42, f'ds_write2_b32 v{vQKW}, v{KA_}, v{KA_+1} offset0:64 offset1:{QK_RS//4+64}')
    put(45, 's_waitcnt lgkmcnt(5)')
    WA=[24,28,32,36,72,76,48,52]
    z0=[f'v_mov_b64 v[{r}:{r+1}], 0' for r in range(24,40,2)]
    kmf=[f'ds_read_b128 v[{KMF+4*u}:{KMF+4*u+3}], v{vKR} offset:{u*64}' for u in range(4)]
    put(44,z0[0]); put(45,z0[1]); put(46,*z0[2:4]); put(47,*z0[4:6]); put(53,*z0[6:8])
    put(47, f's_mov_b32 m0, {R_K+w*2048}')
    put(48,'s_waitcnt lgkmcnt(0)','s_barrier',kmf[0]); put(49,*kmf[1:4])
    put(50, f'buffer_load_dwordx4 v{vL16}, {W}, s{sKO} offen sc1 lds')
    put(51, f'buffer_load_dwordx4 v{vL16}, {W}, s{sKO} offen offset:1024 sc1 lds')
    put(50, f'v_add_f32 v{VA}, v{VA}, v{VA+1}', f'v_add_f32 v{VA+2}, v{VA+2}, v{VA+3}')
    put(52, f'v_cvt_pk_bf16_f32 v{VM0}, v{VA}, v{VA+2}', f'v_max3_f32 v{T}, v{SX}, v{SX+1}, v{SX+2}')
    put(54, 's_waitcnt lgkmcnt(0)')
    WIN=[104,112,88,96,16,120,40,64]
    def wrd(f):
        b=WIN[f]
        return [f'ds_read_b128 v[{b}:{b+3}], v{vWO} offset:{wo_lds(f+8)}', f'ds_read_b128 v[{b+4}:{b+7}], v{vWO} offset:{wo_lds(f+8)+1024}']
    put(55,*wrd(0)); put(56,*wrd(1))
    put(57, f'v_max3_f32 v{T2}, v{SX+3}, v{SX+4}, v{SX+5}', f'v_max3_f32 v{T}, v{T}, v{SX+6}, v{SX+7}')
    put(58, f'v_max_f32 v{T}, v{T}, v{T2}')
    put(53, f's_cmp_eq_u32 s{sS}, 63')
    put(59,'s_cbranch_scc1 rec_fin',*wrd(2))
    put(58,*wrd(3))
    sta=[int(x) for x in os.environ.get('STA','17,37,58').split(',')]
    for i,m in enumerate(seq):
        a(m)
        ops=ex.get(i,[])
        if ABL:
            ops=[o for o in ops if not any(p in o for p in ABL)]
        if i in sta: emit(stamp())
        emit([o for o in ops if not o.startswith('v_')]); emit([o for o in ops if o.startswith('v_')])
    assert max(ex)<len(seq)
    B=[]
    B+=[f'v_max3_f32 v{T}, v{T}, v{SM}, v{SM+1}', f'v_mov_b32 v{T2}, v{T}']+wrd(4)
    B+=[f'v_permlane16_swap_b32 v{T2}, v{T}', f'v_max_f32 v{T}, v{T2}, v{T}', f'v_mov_b32 v{T2}, v{T}',
        f'v_add_f32 v{VA+4}, v{VA+4}, v{VA+5}', f'v_add_f32 v{VA+6}, v{VA+6}, v{VA+7}',
        f'v_permlane32_swap_b32 v{T2}, v{T}', f'v_max_f32 v{T}, v{T2}, v{T}', f'v_mul_f32 v{T2}, s{sC}, v{T}']
    for r in (SM,SX,SX+2,SX+4,SX+6):
        B.append(f'v_pk_fma_f32 v[{r}:{r+1}], v[{r}:{r+1}], s[{sC}:{sC+1}], v[{T2}:{T2+1}] op_sel_hi:[1,1,0] neg_lo:[0,0,1] neg_hi:[0,0,1]')
    B+=[f'v_exp_f32 v{SM}, v{SM}', f'v_exp_f32 v{SM+1}, v{SM+1}', f'v_cvt_pk_bf16_f32 v{VM1}, v{VA+4}, v{VA+6}', f'v_cvt_pk_bf16_f32 v{PM}, v{SM}, v{SM+1}']
    OA=VA; LA=SM; PX=SX
    exs=[f'v_exp_f32 v{r}, v{r}' for r in range(SX,SX+8)]
    B+=exs[0:2]+[f'v_mfma_f32_16x16x16_bf16 v[{LA}:{LA+3}], v[{ONES}:{ONES+1}], v[{PM}:{PM+1}], 0']
    B+=exs[2:4]+[f'v_mfma_f32_16x16x16_bf16 v[{OA}:{OA+3}], v[{VM0}:{VM0+1}], v[{PM}:{PM+1}], 0']
    B+=exs[4:6]+[f'v_mfma_f32_16x16x16_bf16 v[{OA+4}:{OA+7}], v[{VM1}:{VM1+1}], v[{PM}:{PM+1}], 0']
    B+=exs[6:8]+[f'v_cvt_pk_bf16_f32 v{PX+i}, v{SX+2*i}, v{SX+2*i+1}' for i in range(4)]
    B+=wrd(5)
    B+=[f'v_mfma_f32_16x16x32_bf16 v[{LA}:{LA+3}], v[{ONES}:{ONES+3}], v[{PX}:{PX+3}], v[{LA}:{LA+3}]']
    B+=wrd(6)
    B+=[f'v_mfma_f32_16x16x32_bf16 v[{OA}:{OA+3}], v[{VC}:{VC+3}], v[{PX}:{PX+3}], v[{OA}:{OA+3}]']
    B+=[f'v_mfma_f32_16x16x32_bf16 v[{OA+4}:{OA+7}], v[{VC+4}:{VC+7}], v[{PX}:{PX+3}], v[{OA+4}:{OA+7}]',
        f'v_rcp_f32 v{LA}, v{LA}']
    z1=[f'v_mov_b64 v[{r}:{r+1}], 0' for r in list(range(72,80,2))+list(range(48,56,2))]
    B+=z1[0:7]
    B+=[f'v_cndmask_b32 v{OA+i}, v{OA+i}, v{OA+4+i}, s[{sODD}:{sODD+1}]' for i in range(4)]
    B+=[f'v_pk_mul_f32 v[{OA+i}:{OA+i+1}], v[{OA+i}:{OA+i+1}], v[{LA}:{LA+1}] op_sel_hi:[1,0]' for i in (0,2)]
    B+=[f'v_cvt_pk_bf16_f32 v{OA+4}, v{OA}, v{OA+1}', f'v_cvt_pk_bf16_f32 v{OA+5}, v{OA+2}, v{OA+3}', f'ds_write_b64 v{vOW}, v[{OA+4}:{OA+5}]']
    emit(B)
    if not E('RSA',1): emit(rs[:1]+rs[2:])
    emit(z1[7:8])
    emit(rot_m())
    a('s_waitcnt lgkmcnt(0)')
    a('s_barrier')
    OFR=56
    a(f'ds_read_b128 v[{OFR}:{OFR+3}], v{vL16} offset:{R_O}')
    a(f'ds_read_b128 v[{OFR+4}:{OFR+7}], v{vL16} offset:{R_O+1024}')
    emit(wrd(7))
    if not E('RSA',1): emit(rs[1:2])
    RA=124; RB=24
    vq=[]
    def rl():
        vq.extend(['r','r'])
        return [f'buffer_load_dwordx4 v[{RB+4*L}:{RB+4*L+3}], v{vL16}, {W}, s{sRG2} offen offset:{L*1024} sc1' for L in range(2)]
    def epi(T_):
        r=WA[T_]; d=WA[T_&6]+(T_&1)
        return [f'v_add_f32 v{r}, v{r}, v{r+1}', f'v_add_f32 v{r+2}, v{r+2}, v{r+3}', f'v_cvt_pk_bf16_f32 v{d}, v{r}, v{r+2}']
    def pst(c):
        vq.append('s')
        return f'buffer_store_dwordx2 v[{WA[2*c]}:{WA[2*c]+1}], v{vPST}, {W}, s{sPa if c==0 else sPq+c} offen{sc}'
    pend=[]
    RL=[E('RL0',99),E('RL1',99),99,99][w]
    a(f's_mov_b32 s{sRG2}, s{sRG}')
    a('s_waitcnt lgkmcnt(3)')
    for i in range(16):
        T_,t2=i>>1,i&1
        b = wo_reg(i) if i<8 else WIN[i-8]
        a(f'v_smfmac_f32_16x16x64_bf16 v[{WA[T_]}:{WA[T_]+3}], v[{OFR+4*t2}:{OFR+4*t2+3}], v[{b}:{b+7}], v{vIDX}')
        if i==1: emit(stamp())
        if i==RL: emit(rl())
        if i in (7,11,15): a(pst((i-7)//4))
        if i==0: a('s_waitcnt lgkmcnt(2)')
        if i==12: a('s_waitcnt lgkmcnt(0)')
        if i>=3 and (i&1)==1: pend+=epi((i-3)//2)
        for _ in range(2 if i&1 else 1):
            if pend: a(pend.pop(0))
    emit(pend)
    if RL==16: emit(rl())
    emit(epi(7))
    a(pst(3))
    emit(stamp())
    neg=lambda b: [f'v_mov_b64 v[{r}:{r+1}], -1' for r in range(b,b+8,2)]
    hsv=house_salu(); nh=E('NH',[0,0,6,10][w])
    hk=neg(RB)+zero_acc()+neg(MF)+xbase()+x_reads(0,4)+[f'ds_read2_b32 v[120:121], v{vQKW} offset0:64 offset1:{QK_RS//4+64}', f'v_mov_b32 v122, v{VM0}', f'v_mov_b32 v123, v{VM1}']+hsv[:nh]; hsv=hsv[nh:]
    n=E(f'A{w}',[4,8,20,28][w])
    emit(hk[:n]); emit(rl()); emit(hk[n:])
    a('s_waitcnt vmcnt(6)')
    mm=[f'v_mfma_f32_16x16x32_bf16 v[{RA}:{RA+3}], v[{ONES}:{ONES+3}], v[{RB}:{RB+3}], 0',
        f'v_mfma_f32_16x16x32_bf16 v[{RA}:{RA+3}], v[{ONES}:{ONES+3}], v[{RB+4}:{RB+7}], v[{RA}:{RA+3}]']
    c=chk(RB)
    if SOLO: a('s_waitcnt vmcnt(0)')
    a.label(f'rec_rs_{tag}')
    for _ in range(E(f'SPR{w}',E('SPR',1))):
        emit(c[:3]); a(mm[0]); emit(c[3:]); a(mm[1]); a(f's_branch rec_go_{tag}' if SOLO else f's_cbranch_vccz rec_go_{tag}')
        if E('TH',0):
            a(f's_bcnt1_i32_b64 s{sT0}, vcc'); a(f's_cmp_lt_u32 s{sT0}, {E("TH",0)}'); a(f's_cbranch_scc1 rec_f0_{tag}')
    emit(c[:3]); a(mm[0]); emit(c[3:]); a(mm[1])
    a(f's_cbranch_vccnz rec_f0_{tag}')
    a.label(f'rec_go_{tag}')
    a(f'v_lshrrev_b32 v{T}, 2, v{vL16}')
    a(f'ds_read_b32 v{PM}, v{T} offset:{R_F}')
    emit(v_reads(w))
    for sh in (4,8):
        for r in (2,3): a(f'v_add_f32 v{RA+r}, v{RA+r}, v{RA+r} row_ror:{sh} row_mask:0xf bank_mask:0xf')
    if not REP: a(f's_mov_b64 exec, s[{sPM}:{sPM+1}]')
    a(f'v_cvt_pk_bf16_f32 v{RA}, v{RA+2}, v{RA+3}')
    a(f'buffer_store_dword v{RA}, v{vMST}, {W}, s{sMa} offen{sc}')
    if not REP: a('s_mov_b64 exec, -1')
    emit(stamp())
    emit(hsv)
    a('s_waitcnt lgkmcnt(0)')
    a(f'v_cmp_eq_u32 s[{sKVM}:{sKVM+1}], s{sHI}, v{PM}')
    emit(gl(MF,w))
    emit(stamp())
    if stamps:
        a('s_waitcnt lgkmcnt(0)')
        n=nst[0]
        if SNAP:
            for j in range(3):
                a(f's_cmp_eq_u32 s{sS}, {SNAP+j}')
                for k in range(n): a(f's_cselect_b32 s{sACC+4*j+k}, s{sTS+2*k}, s{sACC+4*j+k}')
            n=0
        for k in range(n):
            prev = f's{sACC+15}' if k==0 else f's{sTS+2*(k-1)}'
            a(f's_sub_u32 s{sU0}, s{sTS+2*k}, {prev}')
            a(f's_add_u32 s{sACC+k}, s{sACC+k}, s{sU0}')
        if n: a(f's_mov_b32 s{sACC+15}, s{sTS+2*(n-1)}')
        a(f's_cmp_eq_u32 s{sS}, 9')
        for k in range(n): a(f's_cselect_b32 s{sACC+k}, 0, s{sACC+k}')
        a(f's_cselect_b32 s{sACC+14}, s{sSPIN}, s{sACC+14}')
    if RT==1 and w==0:
        l=a.newlabel('rs')
        a(f's_and_b32 s8, s{sS}, 7'); a('s_cmp_lg_u32 s8, 0'); a(f's_cbranch_scc1 {l}')
        a(f's_lshr_b32 s8, s{sS}, 3')
        rtstamp(a,8,idx_s=8)
        a.label(l)
    a(f's_branch rec_enter_{tag}')
    a.label(f'rec_f0_{tag}')
    a('s_mov_b64 exec, vcc')
    emit(rl())
    a('s_mov_b64 exec, -1')
    emit(spin(0x10000))
    a(f's_cbranch_scc0 rec_rs_{tag}')
    a(f's_branch rec_go_{tag}')
```
